```python
import torch

def _softmax(x, axis=-1):
    return torch.softmax(x, dim=axis)

def _gelu(x):
    return torch.nn.functional.gelu(x, approximate='tanh')

def _silu(x):
    return torch.nn.functional.silu(x)

def _sigmoid(x):
    return torch.sigmoid(x)

def _layernorm(x, axis=-1, eps=1e-05):
    m = x.mean(dim=axis, keepdim=True)
    v = x.var(dim=axis, keepdim=True, unbiased=False)
    return (x - m) / torch.sqrt(v + eps)

def _scatter_add(tgt, idx, src, axis=0):
    return tgt.clone().index_add_(axis, idx, src)

def _segment_sum(src, seg, n):
    out = torch.zeros((n,) + src.shape[1:], dtype=src.dtype)
    return out.index_add_(0, seg, src)

def _pad(x, pw):
    flat = tuple((v for pair in reversed(pw) for v in pair))
    return torch.nn.functional.pad(x, flat)
kernel_name = 'adaLN_cond__ssm_conv_h3__glu_gated_reglu__prompt'

def setup_inputs():

    _w = lambda a: (lambda t: t.to(torch.bfloat16) if t.is_floating_point() else t)(torch.as_tensor(a))

    def _A_setup():
        B, S, D = (1, 2048, 448)
        ks = 4
        return {'q': _w((lambda *s: torch.randn(*s, dtype=torch.bfloat16) * 0.05)(B, S, D)), 'k': _w((lambda *s: torch.randn(*s, dtype=torch.bfloat16) * 0.8)(B, S, D)), 'v': _w((lambda *s: torch.randn(*s, dtype=torch.bfloat16) * 0.8)(B, S, D)), 'shift_k': _w((lambda *s: torch.randn(*s, dtype=torch.bfloat16) * 0.8)(D, ks) * 0.5), 'ssm_k': _w((lambda *s: torch.randn(*s, dtype=torch.bfloat16) * 0.8)(D, S) * (1.0 / S ** 0.5)), 'ssm_D': _w((lambda *s: torch.randn(*s, dtype=torch.bfloat16) * 0.8)(D))}
    _A_in = _A_setup()

    def _B_setup():
        B, S, D, F = (1, 2048, 448, 1792)
        return {'x': _w((lambda *s: torch.randn(*s, dtype=torch.bfloat16) * 0.05)(B, S, D)), 'W_gate': _w((lambda *s: torch.randn(*s, dtype=torch.bfloat16) * 0.8)(D, F) * (2.0 / D) ** 0.5), 'W_up': _w((lambda *s: torch.randn(*s, dtype=torch.bfloat16) * 0.8)(D, F) * (2.0 / D) ** 0.5), 'W_down': _w((lambda *s: torch.randn(*s, dtype=torch.bfloat16) * 0.8)(F, D) * (1.0 / F) ** 0.5)}
    _B_in = _B_setup()
    return {'A_q': _A_in['q'], 'A_k': _A_in['k'], 'A_v': _A_in['v'], 'A_shift_k': _A_in['shift_k'], 'A_ssm_k': _A_in['ssm_k'], 'A_ssm_D': _A_in['ssm_D'], 'B_x': _B_in['x'], 'B_W_gate': _B_in['W_gate'], 'B_W_up': _B_in['W_up'], 'B_W_down': _B_in['W_down'], 'c': _w((lambda *s: torch.randn(*s, dtype=torch.bfloat16) * 0.2)(1, 448) * 8.0), 'w_mod': _w((lambda *s: torch.randn(*s, dtype=torch.bfloat16) * 0.2)(448, 6 * 448) * 448 ** (-0.5) * 8.0)}

def reference(A_q, A_k, A_v, A_shift_k, A_ssm_k, A_ssm_D, B_x, B_W_gate, B_W_up, B_W_down, c, w_mod):

    def _A_ref(q, k, v, shift_k, ssm_k, ssm_D):
        B, S, D = q.shape
        ks = shift_k.shape[-1]
        k_pad = _pad(k, ((0, 0), (ks - 1, 0), (0, 0)))
        k_shift = torch.zeros_like(k)
        for t in range(ks):
            k_shift = k_shift + k_pad[:, t:t + S, :] * shift_k[:, ks - 1 - t][None, None, :]
        kv = k_shift * v
        L = 2 * S
        kv_pad = _pad(kv, ((0, 0), (0, S), (0, 0)))
        kf_pad = _pad(ssm_k, ((0, 0), (0, S)))
        kv_f = (lambda x, axes=(-2, -1): torch.fft.rfft2(x.float(), dim=axes))(kv_pad[:, None, :, :], axes=(1, 2))
        kf_f = (lambda x, axes=(-2, -1): torch.fft.rfft2(x.float(), dim=axes))(kf_pad[:, None, :], axes=(1, 2))
        kf_f = (lambda x, *d: x.permute(*d))(kf_f, 1, 2, 0)
        y_f = kv_f * kf_f[None, :, :, :]
        y = (lambda x, s, axes=(-2, -1): torch.fft.irfft2(x, s=s, dim=axes).to(torch.bfloat16))(y_f, (1, L), axes=(1, 2))[:, 0, :S, :]
        y = y + kv * ssm_D[None, None, :]
        return q * y

    def _B_ref(x, W_gate, W_up, W_down):
        gate = torch.einsum('bsd,df->bsf', x, W_gate)
        up = torch.einsum('bsd,df->bsf', x, W_up)
        gate = gate * (lambda x, dt: x.to(dt))(gate > 0, gate.dtype)
        h = gate * up
        return torch.einsum('bsf,fd->bsd', h, W_down)
    x = A_q
    mod = (_silu(c) @ w_mod).reshape(c.shape[0], 6, 1, -1)
    sa, ca, ga, sb, cb, gb = (mod[:, 0].clone(), mod[:, 1].clone(), mod[:, 2].clone(), mod[:, 3].clone(), mod[:, 4].clone(), mod[:, 5].clone())
    h = _layernorm(x, axis=-1) * (1 + ca) + sa
    x = x + ga * _A_ref(h, A_k, A_v, A_shift_k, A_ssm_k, A_ssm_D)
    h = _layernorm(x, axis=-1) * (1 + cb) + sb
    x = x + gb * _B_ref(h, B_W_gate, B_W_up, B_W_down)
    return x
```

```python
import re

TRANS = ("v_exp_f32", "v_log_f32", "v_rcp_f32", "v_rsq_f32", "v_sqrt_f32", "v_sin_f32", "v_cos_f32")
_reg_re = re.compile(r"\b([vas])(?:(\d+)\b|\[(\d+):(\d+)\])")

def regs_of(tok):
    out = set()
    for m in _reg_re.finditer(tok):
        k = m.group(1)
        if m.group(2) is not None:
            out.add((k, int(m.group(2))))
        else:
            out.update((k, i) for i in range(int(m.group(3)), int(m.group(4)) + 1))
    if re.search(r"\bvcc\b", tok): out.update({("s", 106), ("s", 107)})
    if re.search(r"\bm0\b", tok): out.add(("s", 124))
    if re.search(r"\bexec\b", tok): out.update({("s", 126), ("s", 127)})
    return out

class Ins:
    def __init__(self, text):
        self.text = text
        t = text.split(";")[0].strip()
        self.is_label = t.endswith(":")
        self.is_dir = t.startswith(".")
        parts = t.split(None, 1)
        self.op = parts[0] if parts else ""
        ops = [o.strip() for o in parts[1].split(",")] if len(parts) > 1 else []
        if ops:
            last = ops[-1].split()
            ops[-1] = last[0] if last else ""
        for n, o in enumerate(ops):
            if " " in o:
                ops = ops[:n] + [o.split()[0]]
                break
        self.ops = ops
        op = self.op
        self.mfma = op.startswith("v_mfma")
        self.valu = op.startswith("v_") and not self.mfma
        self.salu = op.startswith("s_")
        self.ds = op.startswith("ds_")
        self.vmem = op.startswith("buffer_") or op.startswith("global_")
        self.dpp = "_dpp" in op
        self.perml = op.startswith("v_permlane")
        self.rdlane = op.startswith("v_readlane") or op.startswith("v_readfirstlane")
        self.trans = op.replace("_e32", "").replace("_e64", "") in TRANS
        self.dot = op.startswith("v_dot")
        self.dma = self.vmem and re.search(r"\blds\b", t) is not None
        self.store = self.vmem and ("store" in op or "atomic" in op)
        self.widest = self.store and ("x4" in op or "x3" in op)
        R = [regs_of(o) for o in ops]
        w, r = set(), set()
        if self.is_label or self.is_dir or not R:
            pass
        elif self.mfma:
            w = R[0]; r = R[1] | R[2] | R[3]
            self.a, self.b, self.c = R[1], R[2], R[3]
            self.passes = 8 if "32x32" in op else 4
        elif self.perml:
            w = R[0] | R[1]; r = R[0] | R[1]
        elif self.valu:
            w = R[0]; r = set().union(*R[1:]) if len(R) > 1 else set()
            if "fmac" in op or "dot2c" in op or self.dpp: r |= R[0]
            if "_co_" in op: w |= R[1]
        elif self.ds:
            if "write" in op: r = set().union(*R)
            else:
                w = R[0]; r = set().union(*R[1:])
                if "d16" in op: r |= R[0]
        elif self.vmem:
            if self.store or self.dma: r = set().union(*R)
            else: w = R[0]; r = set().union(*R[1:])
            if self.dma: r.add(("s", 124))
            if self.store:
                self.data = R[0] if op.startswith("buffer_") else R[1]
        elif self.salu:
            if op.startswith("s_cmp") or op.startswith("s_cbranch") or op in ("s_waitcnt", "s_nop", "s_barrier", "s_branch", "s_setprio", "s_endpgm", "s_sleep"):
                r = set().union(*R)
            else:
                w = R[0]; r = set().union(*R[1:]) if len(R) > 1 else set()
                if "saveexec" in op: w = w | {("s", 126), ("s", 127)}
        self.w, self.r = w, r
    def states(self):
        if self.is_label or self.is_dir: return 0
        if self.op == "s_nop": return int(self.ops[0]) + 1
        return 1

def need(p, c):
    n = 0
    pv = {x for x in p.w if x[0] != "s"}
    ps = {x for x in p.w if x[0] == "s"}
    if p.valu:
        if c.mfma and pv & c.r: n = max(n, 2)
        if (c.dpp or c.perml) and pv & c.r: n = max(n, 2)
        if c.rdlane and pv & c.r: n = max(n, 1)
        if p.trans and c.valu and not c.trans and pv & c.r: n = max(n, 1)
        if p.dot and (c.valu or c.mfma or c.vmem or c.ds) and pv & (c.r | c.w):
            if not (c.op == p.op and pv == c.w): n = max(n, 3)
        if ps & c.r:
            if c.vmem: n = max(n, 5)
            elif c.rdlane: n = max(n, 4)
            elif c.valu: n = max(n, 2)
            elif c.salu: n = max(n, 1)
    if p.mfma:
        big = 12 if p.passes == 8 else 8
        if c.mfma:
            if p.w & (c.a | c.b): n = max(n, big)
            if p.w & c.c and not (p.w == c.c and p.passes == c.passes): n = max(n, big - 2)
            if p.w & c.w and not (p.w == c.c): n = max(n, big - 2)
        elif p.w & (c.r | c.w): n = max(n, big)
        if c.valu and p.c & c.w: n = max(n, 7 if p.passes == 8 else 3)
    if p.widest and p.data & c.w: n = max(n, 2)
    if p.salu and ("s", 124) in p.w and c.dma: n = max(n, 1)
    return n

class Tok:
    def __init__(self, kind): self.kind = kind; self.done = False

class Emit:
    def __init__(self):
        self.ins = []
        self.vm = []
        self.lg = []
        self.nlab = 0
    def __call__(self, text):
        for ln in text.split("\n"):
            ln = ln.strip()
            if ln: self._one(ln)
    def _one(self, text):
        c = Ins(text)
        if not (c.is_label or c.is_dir):
            dist = 0; pad = 0
            for p in reversed(self.ins):
                if dist >= 20: break
                if not (p.is_label or p.is_dir):
                    pad = max(pad, need(p, c) - dist)
                dist += p.states()
            if pad > 0: self.ins.append(Ins(f"s_nop {pad-1}"))
        self.ins.append(c)
        tok = None
        if c.vmem:
            tok = Tok("vm"); self.vm.append(tok)
        elif c.ds:
            tok = Tok("lg"); self.lg.append(tok)
        self.last = tok
        return tok
    def op(self, text):
        return self._one(text)
    def wait(self, *toks):
        parts = []
        for kind, q, cap, name in (("vm", self.vm, 63, "vmcnt"), ("lg", self.lg, 15, "lgkmcnt")):
            idx = [q.index(t) for t in toks if t is not None and t.kind == kind and not t.done]
            if not idx: continue
            n = min(len(q) - 1 - max(idx), cap)
            k = len(q) - n
            for t in q[:k]: t.done = True
            del q[:k]
            parts.append(f"{name}({n})")
        if parts: self._one("s_waitcnt " + " ".join(parts))
    def waitall(self, vm=True, lg=True):
        parts = []
        if vm:
            for t in self.vm: t.done = True
            self.vm = []; parts.append("vmcnt(0)")
        if lg:
            for t in self.lg: t.done = True
            self.lg = []; parts.append("lgkmcnt(0)")
        self._one("s_waitcnt " + " ".join(parts))
    def forget(self):
        self.vm = []; self.lg = []
    def label(self, name): self._one(name + ":")
    def newlabel(self, p="L"):
        self.nlab += 1
        return f"{p}_{self.nlab}"
    def text(self):
        return "\n".join(("" if i.is_label else "    ") + i.text for i in self.ins)

def weave(main, fill, start=0, end=None):
    end = len(main) if end is None else end
    n = max(end - start, 1)
    done = 0
    for i, m in enumerate(main):
        m()
        if start <= i < end:
            upto = (len(fill) * (i - start + 1) + n - 1) // n
            while done < upto:
                fill[done](); done += 1
    while done < len(fill):
        fill[done](); done += 1
```

```python
import sys
from emit import Emit, weave

NAME = "adaLN_cond__ssm_conv_h3__glu_gated_reglu__prompt"
S, D, F = 2048, 448, 1792

WS_EPOCH = 0
WS_ST1 = 0x1000
WS_MOD = 0x5000
WS_ST2 = 0x8000
WS_KVG = 0x10000
WS_XG = WS_KVG + 3670016
WS_A1 = WS_XG + 3670016
WS_X1 = WS_A1 + 1835008
WS_HH = WS_X1 + 1835008
WS_STAMP = WS_HH + 7340032
WS_SIZE = WS_STAMP + 256 * 4 * 128

L_WST = 0
L_TK = 114688
L_UR = L_TK + 17024
L_ST = L_UR + 9216
L_VEC = L_ST + 16384
L_RING = 114688
L_X1 = L_RING + 40960
L_RED = 57344
LDS_BYTES = 163840
BIG = 0x7fffff00
SPIN = 1 << 15

SRD_K, SRD_V, SRD_X, SRD_WS = "s[4:7]", "s[8:11]", "s[12:15]", "s[16:19]"
SRD_SH, SRD_SSM, SRD_WG, SRD_WU, SRD_WD, SRD_OUT = "s[20:23]", "s[24:27]", "s[28:31]", "s[32:35]", "s[36:39]", "s[40:43]"
SRD_C, SRD_WM = "s[4:7]", "s[8:11]"
TAG = "s[46:47]"
sW, sX, sJQ, sJR, sI, sD0, sRB, sFS = "s48", "s49", "s50", "s51", "s52", "s53", "s54", "s55"
sMASK, sSPIN, sDV = "s56", "s57", "s58"
sT = ["s%d" % i for i in range(60, 72)]
sC = ["s[72:73]", "s[74:75]", "s[76:77]", "s[78:79]"]
sRET = "s[80:81]"
sP = ["s%d" % i for i in range(82, 90)]
STAMP0 = 90


def v(a, n=1): return f"v{a}" if n == 1 else f"v[{a}:{a+n-1}]"
def a_(a, n=1): return f"a{a}" if n == 1 else f"a[{a}:{a+n-1}]"


class Gen:
    def __init__(self, stop=99, diag=False):
        self.e = Emit()
        self.stop = stop
        self.diag = diag
        self.tail = []

    def stamp(self, k):
        if self.diag:
            e = self.e
            e.waitall(vm=False)
            e("s_memrealtime s[44:45]")
            e("s_waitcnt lgkmcnt(0)")
            e(f"s_mov_b32 s{STAMP0+k}, s44")

    def srd(self, srd, off, nbytes):
        e = self.e
        b = int(srd[2:srd.index(":")])
        e(f"s_load_dwordx2 s[{b}:{b+1}], s[0:1], {off}")
        e(f"s_mov_b32 s{b+2}, {nbytes}")
        e(f"s_mov_b32 s{b+3}, 0x20000")

    def finish(self):
        e = self.e
        if self.diag:
            e.waitall()
            e(f"s_lshl_b32 {sT[0]}, s2, 2")
            e(f"s_add_u32 {sT[0]}, {sT[0]}, {sW}")
            e(f"s_lshl_b32 {sT[0]}, {sT[0]}, 7")
            e(f"s_add_u32 {sT[0]}, {sT[0]}, {WS_STAMP}")
            e(f"v_mov_b32 v1, {sT[0]}")
            for k in range(12):
                e(f"v_mov_b32 v2, s{STAMP0+k}")
                e(f"buffer_store_dword v2, v1, {SRD_WS}, 0 offen offset:{4*k}")
        e("s_endpgm")

    def tagcheck(self, quads):
        e = self.e
        for n, q in enumerate(quads):
            dst = "vcc" if n == 0 else sC[(n - 1) % 4]
            e(f"v_cmp_ne_u64 {dst}, {TAG}, {v(q+2,2)}")
            if n >= 2: e(f"s_or_b64 vcc, vcc, {sC[(n-2)%4]}")
        if len(quads) > 1: e(f"s_or_b64 vcc, vcc, {sC[(len(quads)-2)%4]}")

    def sentcheck(self, regs, tmp, acc=False):
        e = self.e
        if acc:
            for n, r in enumerate(regs): e(f"v_accvgpr_read_b32 {v(tmp+n)}, {a_(r)}")
            regs = [tmp + n for n in range(len(regs))]
        cur = regs[0]; rest = regs[1:]
        while rest:
            if len(rest) >= 2:
                e(f"v_max3_u32 {v(tmp)}, {v(cur)}, {v(rest[0])}, {v(rest[1])}"); rest = rest[2:]
            else:
                e(f"v_max_u32 {v(tmp)}, {v(cur)}, {v(rest[0])}"); rest = rest[1:]
            cur = tmp
        e(f"v_cmp_eq_u32 vcc, -1, {v(cur)}")

    def poll(self, loads, check):
        e = self.e
        top, out = e.newlabel("poll"), e.newlabel("pollend")
        e(f"s_mov_b32 {sSPIN}, {SPIN}")
        e.label(top)
        loads()
        e.waitall(lg=False)
        check()
        e(f"s_cbranch_vccz {out}")
        e(f"s_sub_u32 {sSPIN}, {sSPIN}, 1")
        e(f"s_cbranch_scc0 {top}")
        e.label(out)

    def checked(self, loads, check):
        e = self.e
        stub, back = e.newlabel("retry"), e.newlabel("back")
        check()
        e(f"s_cbranch_vccnz {stub}")
        e.label(back)
        def emit_stub():
            e.forget()
            e.label(stub)
            e("s_nop 7")
            self.poll(loads, check)
            e(f"s_branch {back}")
        self.tail.append(emit_stub)

    def bfround(self, r):
        e = self.e
        e(f"v_cvt_pk_bf16_f32 {v(r)}, {v(r)}, {v(r)}")
        e(f"v_lshlrev_b32 {v(r)}, 16, {v(r)}")

    def stats_finish(self, rs, rq, neg):
        e = self.e
        e(f"v_mul_f32 {v(rs)}, 0x3b124925, {v(rs)}")
        e(f"v_mul_f32 {v(rq)}, 0x3b124925, {v(rq)}")
        e(f"v_fma_f32 {v(rq)}, -{v(rs)}, {v(rs)}, {v(rq)}")
        e(f"v_max_f32 {v(rq)}, 0, {v(rq)}")
        self.bfround(rq)
        e(f"v_add_f32 {v(rq)}, 0x3727c5ac, {v(rq)}")
        self.bfround(rq)
        e(f"v_sqrt_f32 {v(rq)}, {v(rq)}")
        e(f"v_cvt_pk_bf16_f32 {v(rs)}, {'-' if neg else ''}{v(rs)}, {v(rq)}")

    def ln1_loads(self, va, dst):
        e = self.e
        e(f"v_lshrrev_b32 {v(va)}, 5, v0")
        e(f"s_lshl_b32 {sT[0]}, s2, 3")
        e(f"v_add_u32 {v(va)}, {sT[0]}, {v(va)}")
        e(f"v_mul_u32_u24 {v(va)}, 896, {v(va)}")
        e(f"v_and_b32 {v(dst)}, 31, v0")
        e(f"v_lshl_add_u32 {v(va)}, {v(dst)}, 4, {v(va)}")
        e(f"v_cmp_gt_u32 vcc, 28, {v(dst)}")
        e(f"v_mov_b32 {v(dst)}, {BIG}")
        e(f"v_cndmask_b32 {v(va)}, {v(dst)}, {v(va)}, vcc")
        e.op(f"buffer_load_dwordx4 {v(dst,4)}, {v(va)}, {SRD_X}, 0 offen")
        return e.op(f"buffer_load_dwordx4 {v(dst+4,4)}, {v(va)}, {SRD_X}, 0 offen offset:448")

    def ln1_stats(self, src, g, before_store):
        e = self.e
        s_, q_ = g, g + 1
        e(f"s_mov_b32 {sT[1]}, 0x3f803f80")
        e(f"v_mov_b32 {v(s_)}, 0")
        e(f"v_mov_b32 {v(q_)}, 0")
        for i in range(8):
            e(f"v_dot2c_f32_bf16 {v(s_)}, {sT[1]}, {v(src+i)}")
            e(f"v_dot2c_f32_bf16 {v(q_)}, {v(src+i)}, {v(src+i)}")
        for ctl in ("quad_perm:[1,0,3,2]", "quad_perm:[2,3,0,1]", "row_half_mirror", "row_mirror"):
            e(f"v_add_f32_dpp {v(s_)}, {v(s_)}, {v(s_)} {ctl} row_mask:0xf bank_mask:0xf")
            e(f"v_add_f32_dpp {v(q_)}, {v(q_)}, {v(q_)} {ctl} row_mask:0xf bank_mask:0xf")
        e(f"v_mov_b32 {v(src)}, {v(s_)}")
        e(f"v_mov_b32 {v(src+1)}, {v(q_)}")
        e(f"v_permlane16_swap_b32 {v(s_)}, {v(src)}")
        e(f"v_permlane16_swap_b32 {v(q_)}, {v(src+1)}")
        e(f"v_add_f32 {v(s_)}, {v(s_)}, {v(src)}")
        e(f"v_add_f32 {v(q_)}, {v(q_)}, {v(src+1)}")
        self.stats_finish(s_, q_, False)
        e(f"v_mov_b32 {v(q_)}, {v(s_)}")
        e(f"s_lshl_b32 {sT[0]}, s2, 2")
        e(f"s_add_u32 {sT[0]}, {sT[0]}, {sW}")
        e(f"s_lshl_b32 {sT[0]}, {sT[0]}, 4")
        e(f"s_add_u32 {sT[0]}, {sT[0]}, {WS_ST1}")
        e(f"v_permlane32_swap_b32 {v(s_)}, {v(q_)}")
        e(f"v_and_b32 {v(src)}, 63, v0")
        e(f"v_lshlrev_b32 {v(src)}, 25, {v(src)}")
        before_store()
        e(f"buffer_store_dwordx4 {v(g,4)}, {v(src)}, {SRD_WS}, {sT[0]} offen sc1")

    def tr_addr(self, dst, tmp, hmul):
        e = self.e
        e(f"v_bfe_u32 {v(dst)}, v0, 2, 2")
        e(f"v_bfe_u32 {v(tmp)}, v0, 5, 1")
        e(f"v_mad_u32_u24 {v(dst)}, {v(tmp)}, {hmul}, {v(dst)}")
        e(f"v_lshlrev_b32 {v(dst)}, 6, {v(dst)}")
        e(f"v_bfe_u32 {v(tmp)}, v0, 4, 1")
        e(f"v_lshl_add_u32 {v(dst)}, {v(tmp)}, 5, {v(dst)}")
        e(f"v_and_b32 {v(tmp)}, 3, v0")
        e(f"v_lshl_add_u32 {v(dst)}, {v(tmp)}, 3, {v(dst)}")

    def unit_addr(self, dst, tmp, rowbytes):
        e = self.e
        e(f"v_bfe_u32 {v(dst)}, v0, 2, 3")
        e(f"v_mul_u32_u24 {v(dst)}, {rowbytes}, {v(dst)}")
        e(f"v_bfe_u32 {v(tmp)}, v0, 5, 1")
        e(f"v_lshl_add_u32 {v(dst)}, {v(tmp)}, 6, {v(dst)}")
        e(f"v_and_b32 {v(tmp)}, 3, v0")
        e(f"v_lshl_add_u32 {v(dst)}, {v(tmp)}, 4, {v(dst)}")

    def load_tag(self):
        e = self.e
        e(f"s_load_dwordx2 {TAG}, s[16:17], {WS_EPOCH}")

    def make_tag(self):
        e = self.e
        e("s_add_u32 s46, s46, 0x7f4a7c15")
        e("s_addc_u32 s47, s47, 0x9e3779b9")

    def build(self):
        e = self.e
        e("s_cmp_ge_u32 s2, 256")
        e("s_cbranch_scc1 L_exit")
        self.srd(SRD_X, 0, 1835008)
        self.srd(SRD_WS, 112, WS_SIZE)
        e("s_getpc_b64 s[44:45]")
        e(f"s_bfe_u32 {sT[0]}, s2, 0x10003")
        e(f"s_lshl_b32 {sT[0]}, {sT[0]}, 14")
        e(f"v_lshl_add_u32 v1, v0, 6, {sT[0]}")
        e("v_min_u32 v1, L_end - L_pc - 4, v1")
        e.label("L_pc")
        e.op("global_load_dword v1, v1, s[44:45]")
        e(f"s_and_b32 {sX}, s2, 7")
        e(f"s_lshr_b32 {sT[0]}, s2, 3")
        e(f"s_mul_i32 {sJQ}, {sT[0]}, 37")
        e(f"s_lshr_b32 {sJQ}, {sJQ}, 8")
        e(f"s_mul_i32 {sJR}, {sJQ}, 7")
        e(f"s_sub_u32 {sJR}, {sT[0]}, {sJR}")
        e("v_lshrrev_b32 v2, 6, v0")
        e(f"s_mov_b32 {sMASK}, 0xffff0000")
        e(f"v_readfirstlane_b32 {sW}, v2")
        if self.diag:
            for k in range(12): e(f"s_mov_b32 s{STAMP0+k}, 0")
        e(f"s_cmp_ge_u32 {sT[0]}, 28")
        e("s_cbranch_scc1 L_helper")
        vm0 = list(e.vm)
        self.main()
        e.forget(); e.vm = list(vm0)
        for t in vm0: t.done = False
        e.label("L_helper")
        self.helper()
        for t in self.tail: t()
        e.label("L_exit")
        e("s_endpgm")
        e.label("L_end")
        return e.text()

    def main(self):
        e = self.e
        self.srd(SRD_K, 8, 1835008)
        self.srd(SRD_V, 16, 1835008)
        self.srd(SRD_SH, 24, 3584)
        self.srd(SRD_SSM, 32, 1835008)
        e("s_load_dwordx2 s[88:89], s[0:1], 40")
        self.srd(SRD_WG, 56, 1605632)
        self.srd(SRD_WU, 64, 1605632)
        self.srd(SRD_WD, 72, 1605632)
        self.srd(SRD_OUT, 96, 1835008)
        e(f"s_lshl_b32 {sI}, {sX}, 2")
        e(f"s_add_u32 {sI}, {sI}, {sJQ}")
        e(f"s_lshl_b32 {sD0}, {sJR}, 5")
        e(f"s_add_u32 {sD0}, {sD0}, {sI}")
        e(f"s_lshl_b32 {sD0}, {sD0}, 1")
        e(f"s_mul_i32 {sT[0]}, {sI}, 57344")
        e(f"s_lshl_b32 {sT[1]}, {sJR}, 7")
        e(f"s_add_u32 {sT[0]}, {sT[0]}, {sT[1]}")
        e("v_lshrrev_b32 v2, 4, v0")
        e("v_and_b32 v5, 15, v0")
        e("v_mul_u32_u24 v2, 3584, v2")
        e(f"v_lshl_add_u32 v6, v5, 3, {sT[0]}")
        e("v_add_u32 v2, v2, v6")
        e("v_subrev_u32 v3, 2688, v2")
        e(f"s_lshl_b32 {sT[1]}, {sJR}, 9")
        e(f"v_lshl_add_u32 v5, v5, 5, {sT[1]}")
        e(f"s_and_b32 {sT[1]}, {sW}, 1")
        e(f"s_lshr_b32 {sT[2]}, {sW}, 1")
        e(f"s_mul_i32 {sT[1]}, {sT[1]}, 3584")
        e(f"s_mul_i32 {sT[2]}, {sT[2]}, 28672")
        e(f"s_add_u32 {sT[1]}, {sT[1]}, {sT[2]}")
        e("v_bfe_u32 v4, v0, 4, 2")
        e("v_mul_u32_u24 v4, 7168, v4")
        e(f"v_add3_u32 v4, v4, v6, {sT[1]}")
        e("s_waitcnt lgkmcnt(0)")
        self.stamp(0)
        K, V_, SH, X, SS, LR = 32, 46, 56, 64, 72, 84
        for r in range(3): e.op(f"buffer_load_dwordx2 {v(K+2*r,2)}, v3, {SRD_K}, 0 offen offset:{896*r}")
        for r in range(4): e.op(f"buffer_load_dwordx2 {v(K+6+2*r,2)}, v2, {SRD_K}, 0 offen offset:{896*r}")
        e.op(f"buffer_load_dwordx4 {v(SH,4)}, v5, {SRD_SH}, 0 offen")
        tK = e.op(f"buffer_load_dwordx4 {v(SH+4,4)}, v5, {SRD_SH}, 0 offen offset:16")
        for r in range(4): tV = e.op(f"buffer_load_dwordx2 {v(V_+2*r,2)}, v2, {SRD_V}, 0 offen offset:{896*r}")
        self.load_tag()
        e(f"s_lshl_b32 {sT[1]}, {sD0}, 1")
        e(f"s_load_dword {sDV}, s[88:89], {sT[1]}")
        for r in range(4): tX = e.op(f"buffer_load_dwordx2 {v(X+2*r,2)}, v4, {SRD_X}, 0 offen offset:{896*r}")
        tL = self.ln1_loads(6, LR)
        e(f"s_lshl_b32 {sT[1]}, {sD0}, 12")
        e(f"v_lshl_add_u32 v6, v0, 5, {sT[1]}")
        e("v_and_b32 v7, 127, v0")
        e("v_cmp_ne_u32 vcc, 0, v7")
        e("v_subrev_u32 v7, 4, v6")
        e(f"v_mov_b32 v8, {BIG}")
        e("v_cndmask_b32 v7, v8, v7, vcc")
        e.op(f"buffer_load_dwordx4 {v(SS,4)}, v6, {SRD_SSM}, 0 offen")
        e.op(f"buffer_load_dwordx4 {v(SS+4,4)}, v6, {SRD_SSM}, 0 offen offset:16")
        tS = e.op(f"buffer_load_dword {v(SS+8)}, v7, {SRD_SSM}, 0 offen")
        e("v_and_b32 v9, 63, v0")
        e(f"s_lshl_b32 {sT[1]}, {sW}, 12")
        e(f"v_lshl_add_u32 v9, v9, 4, {sT[1]}")
        for i in range(4): e(f"v_mov_b32 v{12+i}, -1")
        e(f"s_mul_i32 {sT[1]}, {sX}, 28")
        e(f"s_lshr_b32 {sT[2]}, s2, 3")
        e(f"s_add_u32 {sT[1]}, {sT[1]}, {sT[2]}")
        e(f"s_lshl_b32 {sT[1]}, {sT[1]}, 14")
        e(f"s_add_u32 {sT[1]}, {sT[1]}, {WS_A1}")
        for i in range(4): tC = e.op(f"buffer_store_dwordx4 v[12:15], v9, {SRD_WS}, {sT[1]} offen offset:{1024*i} sc1")
        e("v_bfe_u32 v2, v0, 2, 4")
        e("v_and_b32 v3, 3, v0")
        e("v_lshlrev_b32 v4, 15, v2")
        e("v_lshl_add_u32 v4, v3, 4, v4")
        e("v_lshlrev_b32 v2, 2, v2")
        e("v_lshl_add_u32 v5, v3, 6, v2")
        e("v_xor_b32 v3, 0xc0, v5")
        e(f"s_lshl_b32 {sT[0]}, {sJR}, 19")
        e(f"s_lshl_b32 {sT[1]}, {sI}, 8")
        e(f"s_lshl_b32 {sT[2]}, {sW}, 6")
        e(f"s_add_u32 {sT[1]}, {sT[1]}, {sT[2]}")
        e(f"s_sub_u32 {sT[4]}, {sT[0]}, {sT[1]}")
        e(f"s_add_u32 {sT[4]}, {sT[4]}, {WS_KVG + 508*16}")
        e(f"s_lshr_b32 {sT[1]}, {sI}, 2")
        e(f"s_lshl_b32 {sT[1]}, {sT[1]}, 10")
        e(f"s_and_b32 {sT[2]}, {sI}, 3")
        e(f"s_lshl_b32 {sT[2]}, {sT[2]}, 6")
        e(f"s_lshl_b32 {sT[3]}, {sW}, 8")
        e(f"s_add_u32 {sT[1]}, {sT[1]}, {sT[2]}")
        e(f"s_add_u32 {sT[1]}, {sT[1]}, {sT[3]}")
        e(f"s_add_u32 {sT[8]}, {sT[0]}, {sT[1]}")
        e(f"s_add_u32 {sT[8]}, {sT[8]}, {WS_XG}")
        for c in range(1, 4):
            e(f"s_add_u32 {sT[4+c]}, {sT[4]}, {8192*c}")
            e(f"s_add_u32 {sT[8+c]}, {sT[8]}, {8192*c}")
        e("s_waitcnt lgkmcnt(0)")
        self.make_tag()
        G, G2, GS = 128, 144, 160
        for q in list(range(G, G+32, 4)) + [GS]:
            e(f"v_mov_b32 {v(q+2)}, s46")
            e(f"v_mov_b32 {v(q+3)}, s47")
        WF, KF, AC, VF, PK = 96, 176, 112, 208, 224
        e.wait(tK)
        for c in range(4):
            for j in range(4):
                src = v(SH + 2*c + j//2)
                if j & 1: e(f"v_and_b32 {v(WF+4*j+c)}, {sMASK}, {src}")
                else: e(f"v_lshlrev_b32 {v(WF+4*j+c)}, 16, {src}")
        for r in range(7):
            for c in range(4):
                src = v(K + 2*r + c//2)
                if c & 1: e(f"v_and_b32 {v(KF+4*r+c)}, {sMASK}, {src}")
                else: e(f"v_lshlrev_b32 {v(KF+4*r+c)}, 16, {src}")
        for j in (3, 2, 1, 0):
            for r in range(4):
                for p in (0, 2):
                    d_, k_, w_ = v(AC+4*r+p, 2), v(KF+4*(r+3-j)+p, 2), v(WF+4*j+p, 2)
                    if j == 3: e(f"v_pk_mul_f32 {d_}, {k_}, {w_}")
                    else: e(f"v_pk_fma_f32 {d_}, {k_}, {w_}, {d_}")
        e.wait(tV)
        for r in range(4):
            for c in range(4):
                src = v(V_ + 2*r + c//2)
                if c & 1: e(f"v_and_b32 {v(VF+4*r+c)}, {sMASK}, {src}")
                else: e(f"v_lshlrev_b32 {v(VF+4*r+c)}, 16, {src}")
        for r in range(4):
            for p in (0, 2):
                e(f"v_pk_mul_f32 {v(AC+4*r+p,2)}, {v(AC+4*r+p,2)}, {v(VF+4*r+p,2)}")
        tb = []
        for c in range(4):
            e(f"v_cvt_pk_bf16_f32 {v(PK+2*c)}, {v(AC+12+c)}, {v(AC+8+c)}")
            e(f"v_cvt_pk_bf16_f32 {v(PK+2*c+1)}, {v(AC+4+c)}, {v(AC+c)}")
            e.op(f"ds_bpermute_b32 {v(G+4*c)}, v3, {v(PK+2*c)}")
            tb.append(e.op(f"ds_bpermute_b32 {v(G+4*c+1)}, v3, {v(PK+2*c+1)}"))
        for c in range(4):
            e.wait(tb[c])
            e.op(f"buffer_store_dwordx4 {v(G+4*c,4)}, v4, {SRD_WS}, {sT[4+c]} offen sc1")
        self.stamp(1)
        e(f"s_mov_b32 {sT[0]}, 0x05040100")
        e(f"s_mov_b32 {sT[1]}, 0x07060302")
        e.wait(tX)
        tb = []
        for c in range(4):
            e(f"v_perm_b32 {v(PK+2*c)}, {v(X+2+c//2)}, {v(X+c//2)}, {sT[c&1]}")
            e(f"v_perm_b32 {v(PK+2*c+1)}, {v(X+6+c//2)}, {v(X+4+c//2)}, {sT[c&1]}")
            e.op(f"ds_bpermute_b32 {v(G2+4*c)}, v5, {v(PK+2*c)}")
            tb.append(e.op(f"ds_bpermute_b32 {v(G2+4*c+1)}, v5, {v(PK+2*c+1)}"))
        for c in range(4):
            e.wait(tb[c])
            e.op(f"buffer_store_dwordx4 {v(G2+4*c,4)}, v4, {SRD_WS}, {sT[8+c]} offen sc1")
        e.wait(tL)
        self.ln1_stats(LR, GS, lambda: e.wait(tC))
        if self.stop <= 1: return self.finish()

        e(f"s_lshr_b32 {sRB}, {sX}, 1")
        e(f"s_lshl_b32 {sRB}, {sRB}, 2")
        e(f"s_add_u32 {sRB}, {sRB}, {sJQ}")
        e(f"s_and_b32 {sFS}, {sX}, 1")
        e(f"s_mul_i32 {sFS}, {sFS}, 7")
        e(f"s_add_u32 {sFS}, {sFS}, {sJR}")
        e("v_bfe_u32 v10, v0, 2, 4")
        e("v_mul_u32_u24 v10, 3584, v10")
        e("v_and_b32 v2, 3, v0")
        e(f"s_lshl_b32 {sT[0]}, {sFS}, 8")
        e(f"s_lshl_b32 {sT[1]}, {sW}, 6")
        e(f"s_add_u32 {sT[0]}, {sT[0]}, {sT[1]}")
        e(f"v_lshl_add_u32 v2, v2, 4, {sT[0]}")
        e("v_add_u32 v10, v10, v2")
        e(f"s_mul_i32 {sT[0]}, {sW}, 28672")
        for g in range(4):
            e(f"s_add_u32 {sT[1]}, {sJQ}, {g}")
            e(f"s_and_b32 {sT[1]}, {sT[1]}, 3")
            e(f"s_mul_i32 {sP[g]}, {sT[1]}, {7*57344}")
            e(f"s_mul_i32 {sT[1]}, {sT[1]}, 7168")
            e(f"s_add_u32 {sT[4+g]}, {sT[1]}, {sT[0]}")
        def wdma(srd, n):
            g, i = divmod(n, 7)
            e(f"s_add_u32 m0, {sT[4+g]}, {L_WST + 1024*i}")
            e(f"s_add_u32 {sT[1]}, {sP[g]}, {57344*i}")
            return e.op(f"buffer_load_dwordx4 v10, {srd}, {sT[1]} offen lds")
        for n in range(28): wdma(SRD_WG, n)
        e.wait(tS)
        CB = 96
        e(f"v_alignbit_b32 {v(CB)}, {v(SS)}, {v(SS+8)}, 16")
        for i in range(1, 8): e(f"v_alignbit_b32 {v(CB+i)}, {v(SS+i)}, {v(SS+i-1)}, 16")
        e("v_lshrrev_b32 v2, 7, v0")
        e("v_mul_u32_u24 v2, 8512, v2")
        e("v_and_b32 v3, 127, v0")
        e("v_lshl_add_u32 v2, v3, 5, v2")
        e("v_add_u32 v2, %d, v2" % (L_TK + 80))
        e.op(f"ds_write_b128 v2, {v(SS,4)}")
        e.op(f"ds_write_b128 v2, {v(SS+4,4)} offset:16")
        e.op(f"ds_write_b128 v2, {v(CB,4)} offset:4256")
        e.op(f"ds_write_b128 v2, {v(CB+4,4)} offset:4272")
        for i in range(4): e(f"v_mov_b32 v{16+i}, 0")
        e("v_and_b32 v2, 3, v0")
        e("v_mul_u32_u24 v2, 4256, v2")
        e("v_bfe_u32 v3, v0, 2, 4")
        e("v_min_u32 v3, 4, v3")
        e("v_lshl_add_u32 v2, v3, 4, v2")
        e("v_add_u32 v2, %d, v2" % L_TK)
        e.op("ds_write_b128 v2, v[16:19]")
        e("v_and_b32 v2, 1, v0")
        e("v_mul_u32_u24 v2, 4608, v2")
        e("v_bfe_u32 v3, v0, 1, 5")
        e("v_lshl_add_u32 v2, v3, 4, v2")
        e("v_add_u32 v2, %d, v2" % (L_UR + 4096))
        e.op("ds_write_b128 v2, v[16:19]")
        e("v_and_b32 v2, 7, v0")
        e("v_or_b32 v2, 1, v2")
        e("v_bfe_u32 v3, v0, 3, 1")
        e("v_lshl_add_u32 v2, v3, 5, v2")
        e("v_bfe_u32 v3, v0, 4, 2")
        e("v_lshl_add_u32 v2, v3, 3, v2")
        e("v_lshlrev_b32 v2, 1, v2")
        e("v_and_b32 v3, 1, v0")
        e("v_mul_u32_u24 v3, 4256, v3")
        e("v_sub_u32 v2, v2, v3")
        e(f"s_lshr_b32 {sT[0]}, {sW}, 1")
        e(f"s_mul_i32 {sT[0]}, {sT[0]}, 8512")
        e(f"s_and_b32 {sT[1]}, {sW}, 1")
        e(f"s_lshl_b32 {sT[1]}, {sT[1]}, 8")
        e(f"s_add_u32 {sT[0]}, {sT[0]}, {sT[1]}")
        e(f"s_add_u32 {sT[0]}, {sT[0]}, {L_TK + 4256 + 2}")
        e(f"v_add_u32 v2, {sT[0]}, v2")
        e.waitall(vm=False)
        e("s_barrier")
        TA = 128
        for pp in range(4):
            for p in (2*pp, 2*pp+1):
                for rl in range(4):
                    o = rl*16 + (p & 1)*128
                    d_ = TA + (rl*8 + p)*4
                    e.op(f"ds_read2_b32 {a_(d_,2)}, v2 offset0:{o} offset1:{o+1}")
                    e.op(f"ds_read2_b32 {a_(d_+2,2)}, v2 offset0:{o+2} offset1:{o+3}")
            if pp < 3: e("v_add_u32 v2, 1024, v2")
        e(f"s_lshl_b32 {sT[0]}, {sD0}, 13")
        e(f"s_add_u32 {sP[4]}, {sT[0]}, {WS_KVG}")
        e(f"s_add_u32 {sP[5]}, {sT[0]}, {WS_XG}")
        e(f"s_lshr_b32 {sT[0]}, {sW}, 1")
        e(f"s_mul_i32 {sT[2]}, {sT[0]}, 4608")
        e(f"s_add_u32 {sT[2]}, {sT[2]}, {L_UR}")
        e(f"s_and_b32 {sT[3]}, {sW}, 1")
        e(f"s_lshl_b32 {sT[1]}, {sT[3]}, 11")
        e(f"s_add_u32 {sT[1]}, {sT[1]}, {sT[2]}")
        e("v_and_b32 v3, 63, v0")
        e(f"v_lshl_add_u32 v3, v3, 3, {sT[1]}")
        self.tr_addr(11, 4, 8)
        e(f"s_mul_i32 {sT[0]}, {sW}, 28672")
        e(f"v_add_u32 v4, {sT[0]}, v11")
        e("v_and_b32 v5, 3, v0")
        e("v_bfe_u32 v6, v0, 2, 2")
        e("v_lshlrev_b32 v8, 4, v5")
        e("v_lshl_add_u32 v5, v6, 3, v5")
        e("v_mul_u32_u24 v6, 57344, v6")
        e("v_add_u32 v8, v8, v6")
        e("v_bfe_u32 v6, v0, 4, 1")
        e("v_bfe_u32 v16, v0, 5, 1")
        e("v_lshl_add_u32 v7, v5, 1, v6")
        e("v_lshl_add_u32 v7, v16, 3, v7")
        e("v_mul_u32_u24 v6, 229376, v6")
        e("v_mul_u32_u24 v16, 28672, v16")
        e("v_add3_u32 v8, v8, v6, v16")
        e("v_bfe_u32 v6, v0, 4, 2")
        e("v_sub_u32 v5, v6, v5")
        e(f"s_lshl_b32 {sT[0]}, {sT[3]}, 8")
        e(f"s_add_u32 {sT[0]}, {sT[0]}, {sT[2]}")
        e(f"s_add_u32 {sT[0]}, {sT[0]}, {2*(2008-1792)}")
        e(f"v_lshl_add_u32 v5, v5, 4, {sT[0]}")
        e(f"s_lshl_b32 {sT[0]}, {sT[3]}, 11")
        e(f"s_sub_u32 {sT[0]}, {sT[2]}, {sT[0]}")
        e(f"s_add_u32 {sT[0]}, {sT[0]}, {2*(2044-768)}")
        e("v_lshlrev_b32 v6, 3, v7")
        e(f"v_sub_u32 v6, {sT[0]}, v6")
        e(f"s_lshl_b32 {sT[0]}, {sT[3]}, 12")
        e(f"s_add_u32 {sT[0]}, {sT[0]}, {L_ST}")
        e(f"v_lshl_add_u32 v7, v7, 4, {sT[0]}")
        KG = 32
        def kvloads():
            for i in range(4): e.op(f"buffer_load_dwordx4 {v(KG+4*i,4)}, v9, {SRD_WS}, {sP[4]} offen offset:{1024*i} sc1")
        self.stamp(2)
        self.poll(kvloads, lambda: self.tagcheck([KG+4*i for i in range(4)]))
        for i in range(4): e.op(f"ds_write_b64 v3, {v(KG+4*i,2)} offset:{512*i}")
        e.waitall(vm=False)
        e("s_barrier")
        self.stamp(3)

        BR, DA = 64, 96
        XQ, SQ, MQ, EE, GG, KVR, RS, MR = 128, 144, 160, 32, 48, 164, 172, 176
        cA, cB, cC, cD = 20, 21, 22, 23
        seq = [(rl, m) for rl in range(4) for m in range(8)]
        btok = {}
        def bread(n):
            rl, m = seq[n]
            btok[n] = e.op(f"ds_read_b128 {v(BR+4*(n%8),4)}, v5 offset:{rl*64 + (7-m)*512}")
        mm = []
        for n, (rl, m) in enumerate(seq):
            for p in range(8 - m):
                def f(n=n, rl=rl, m=m, p=p):
                    if p == 0: e.wait(btok[n])
                    c_ = "0" if (rl == 0 and m == 0) else v(DA+4*(p+m), 4)
                    e(f"v_mfma_f32_16x16x32_bf16 {v(DA+4*(p+m),4)}, {a_(TA+(rl*8+p)*4,4)}, {v(BR+4*(n%8),4)}, {c_}")
                    if p == 0 and n + 6 < 32: bread(n + 6)
                mm.append(f)
        for n in range(6): bread(n)
        fill = []
        F_ = fill.append
        def I(txt): F_(lambda: e(txt))
        wtok = {}
        for ks in range(28):
            def f(ks=ks):
                e.op(f"ds_read_b64_tr_b16 {a_(4*ks,2)}, v4 offset:{1024*ks}")
                wtok[ks] = e.op(f"ds_read_b64_tr_b16 {a_(4*ks+2,2)}, v4 offset:{1024*ks+256}")
            F_(f)
        def sloads():
            for i in range(4): e.op(f"buffer_load_dwordx4 {v(SQ+4*i,4)}, v9, {SRD_WS}, {sT[8]} offen offset:{1024*i} sc1")
        def xloads():
            for i in range(4): e.op(f"buffer_load_dwordx4 {v(XQ+4*i,4)}, v9, {SRD_WS}, {sP[5]} offen offset:{1024*i} sc1")
            e.op(f"buffer_load_dwordx4 {v(MQ,4)}, v16, {SRD_WS}, {sT[9]} offen sc1")
        tk = {}
        I(f"s_mov_b32 {sT[8]}, {WS_ST1}")
        I("v_and_b32 v16, 3, v0")
        I("v_bfe_u32 v17, v0, 1, 1")
        I("v_and_b32 v17, v17, v0")
        I("v_add_u32 v16, v16, v17")
        I("v_mul_u32_u24 v16, 1792, v16")
        I(f"s_lshr_b32 {sT[9]}, {sD0}, 2")
        I(f"s_lshl_b32 {sT[9]}, {sT[9]}, 4")
        I(f"s_add_u32 {sT[9]}, {sT[9]}, {WS_MOD}")
        def f():
            sloads(); tk["s"] = e.last
        F_(f)
        def f():
            xloads(); tk["x"] = e.last
        F_(f)
        I(f"s_lshl_b32 {sT[0]}, {sFS}, 2")
        I(f"s_add_u32 {sT[0]}, {sT[0]}, {sW}")
        I(f"s_lshl_b32 {sT[0]}, {sT[0]}, 11")
        I(f"s_mul_i32 {sP[6]}, {sRB}, {4*114688}")
        I(f"s_add_u32 {sP[6]}, {sP[6]}, {sT[0]}")
        I(f"s_add_u32 {sP[6]}, {sP[6]}, {WS_HH}")
        I("v_and_b32 v24, 0x3ff, v9")
        for T in range(4):
            def f(T=T):
                e(f"s_add_u32 {sT[0]}, {sP[6]}, {114688*T}")
                e.op(f"buffer_store_dwordx4 v[12:15], v24, {SRD_WS}, {sT[0]} offen sc1")
                tk["c"] = e.op(f"buffer_store_dwordx4 v[12:15], v24, {SRD_WS}, {sT[0]} offen offset:1024 sc1")
            F_(f)
        F_(lambda: e.wait(wtok[27]))
        for n in range(28): F_(lambda n=n: wdma(SRD_WU, n))
        I("v_lshrrev_b32 v17, 1, v9")
        I(f"v_add_u32 v17, {L_ST}, v17")
        def f():
            e.wait(tk["s"])
            self.checked(sloads, lambda: self.tagcheck([SQ+4*i for i in range(4)]))
        F_(f)
        for i in range(4):
            q = SQ + 4*i
            for r in range(2):
                I(f"v_and_b32 {v(q+2+r)}, {sMASK}, {v(q+r)}")
                I(f"v_rcp_f32 {v(q+2+r)}, {v(q+2+r)}")
                I(f"v_lshlrev_b32 {v(q+r)}, 16, {v(q+r)}")
                I(f"v_mul_f32 {v(q+r)}, -{v(q+r)}, {v(q+2+r)}")
            F_(lambda q=q, i=i: e.op(f"ds_write_b64 v17, {v(q+2,2)} offset:{512*i}"))
            def f(q=q, i=i): tk["w"] = e.op(f"ds_write_b64 v17, {v(q,2)} offset:{8192+512*i}")
            F_(f)
        def f():
            e.wait(tk["x"])
            self.checked(xloads, lambda: self.tagcheck([XQ+4*i for i in range(4)] + [MQ]))
        F_(f)
        def f():
            e.wait(tk["w"])
            e("s_barrier")
        F_(f)
        I(f"s_bitcmp1_b32 {sD0}, 1")
        I("s_cselect_b64 vcc, -1, 0")
        I(f"v_cndmask_b32 {v(MQ)}, {v(MQ)}, {v(MQ+1)}, vcc")
        I(f"s_lshr_b32 {sT[0]}, {sW}, 1")
        I(f"s_lshl_b32 {sT[0]}, {sT[0]}, 4")
        I(f"v_lshrrev_b32 {v(MQ)}, {sT[0]}, {v(MQ)}")
        I(f"v_lshlrev_b32 {v(MQ)}, 16, {v(MQ)}")
        I(f"s_lshr_b32 {sDV}, {sDV}, {sT[0]}")
        I(f"s_lshl_b32 {sDV}, {sDV}, 16")
        I(f"v_add_f32 {v(MQ+1)}, 1.0, {v(MQ)}")
        F_(lambda: self.bfround(MQ+1))
        I(f"v_mov_b32_dpp {v(cA)}, {v(MQ+1)} quad_perm:[1,1,1,1] row_mask:0xf bank_mask:0xf")
        I(f"v_mov_b32_dpp {v(cB)}, {v(MQ)} quad_perm:[0,0,0,0] row_mask:0xf bank_mask:0xf")
        I(f"v_mov_b32_dpp {v(cC)}, {v(MQ+1)} quad_perm:[3,3,3,3] row_mask:0xf bank_mask:0xf")
        I(f"v_mov_b32_dpp {v(cD)}, {v(MQ)} quad_perm:[2,2,2,2] row_mask:0xf bank_mask:0xf")
        I(f"v_mul_f32 {v(cA)}, {v(cA)}, {v(cD)}")
        I(f"v_mul_f32 {v(cB)}, {v(cB)}, {v(cD)}")
        for t in range(4):
            def f(t=t):
                e.op(f"ds_read_b64 {v(KVR+2*t,2)}, v6 offset:{512*(3-t)}")
                e.op(f"ds_read_b128 {v(RS,4)}, v7 offset:{1024*t}")
                tk["r"] = e.op(f"ds_read_b128 {v(MR,4)}, v7 offset:{8192+1024*t}")
            F_(f)
            for r in range(4):
                src = v(XQ + 4*t + r//2)
                I(f"v_and_b32 {v(EE+4*t+r)}, {sMASK}, {src}" if r & 1 else f"v_lshlrev_b32 {v(EE+4*t+r)}, 16, {src}")
            F_(lambda: e.wait(tk["r"]))
            for r in range(4):
                g_, x_ = v(GG+4*t+r), v(EE+4*t+r)
                I(f"v_fma_f32 {g_}, {x_}, {v(RS+r)}, {v(MR+r)}")
                src = v(KVR + 2*t + 1 - r//2)
                I(f"v_lshlrev_b32 {v(RS+r)}, 16, {src}" if r & 1 else f"v_and_b32 {v(RS+r)}, {sMASK}, {src}")
                I(f"v_fma_f32 {g_}, {g_}, {v(cA)}, {v(cB)}")
                I(f"v_mul_f32 {v(RS+r)}, {sDV}, {v(RS+r)}")
                I(f"v_fmac_f32 {x_}, {g_}, {v(RS+r)}")
        I(f"v_add_u32 v17, {L_TK}, v9")
        I("v_xor_b32 v18, 0x1000, v9")
        I(f"v_add_u32 v18, {L_TK}, v18")
        I(f"s_lshr_b32 {sT[0]}, {sW}, 1")
        I(f"s_add_u32 {sT[0]}, {sT[0]}, {sD0}")
        I(f"s_lshl_b32 {sT[0]}, {sT[0]}, 6")
        I(f"s_mul_i32 {sT[1]}, {sT[3]}, {32*28672}")
        I(f"s_add_u32 {sT[0]}, {sT[0]}, {sT[1]}")
        I(f"s_add_u32 {sT[8]}, {sT[0]}, {WS_A1}")
        I(f"s_add_u32 {sT[9]}, {sT[0]}, {WS_A1 + 16*28672}")
        I(f"s_add_u32 {sT[10]}, {sT[0]}, {WS_X1}")
        I(f"s_add_u32 {sT[11]}, {sT[0]}, {WS_X1 + 16*28672}")
        weave(mm, fill)
        self.stamp(4)
        Y = 64
        e.wait(tk["c"])
        e(f"s_cmp_eq_u32 {sT[3]}, 0")
        e("s_cbranch_scc0 L_red1")
        save = (list(e.vm), list(e.lg))
        for hw in (0, 1):
            if hw:
                e.label("L_red1"); e("s_nop 7")
                e.vm, e.lg = list(save[0]), list(save[1])
            keep, send = DA + 16*hw, DA + 16*(1-hw)
            for t in range(4): e.op(f"ds_write_b128 v17, {v(send+4*t,4)} offset:{1024*t}")
            e.waitall(vm=False)
            e("s_barrier")
            rt = [e.op(f"ds_read_b128 {v(Y+4*t,4)}, v18 offset:{1024*t}") for t in range(4)]
            for t in range(4):
                e.wait(rt[t])
                for p in (0, 2): e(f"v_pk_add_f32 {v(Y+4*t+p,2)}, {v(Y+4*t+p,2)}, {v(keep+4*t+p,2)}")
            if not hw: e("s_branch L_red2")
        e.label("L_red2")
        PX, PA = 80, 88
        for pi in range(2):
            for t in (2*pi, 2*pi+1):
                for p in (0, 2):
                    y_ = v(Y+4*t+p, 2)
                    e(f"v_pk_fma_f32 {y_}, {v(GG+4*t+p,2)}, {y_}, {v(EE+4*t+p,2)}")
                    e(f"v_pk_mul_f32 {v(GG+4*t+p,2)}, {y_}, {v(cC,2)} op_sel_hi:[1,0]")
                    e(f"v_cvt_pk_bf16_f32 {v(PX+2*t+p//2)}, {v(Y+4*t+p)}, {v(Y+4*t+p+1)}")
                    e(f"v_cvt_pk_bf16_f32 {v(PA+2*t+p//2)}, {v(GG+4*t+p)}, {v(GG+4*t+p+1)}")
            for q, so in ((PA+4*pi, sT[8+pi]), (PX+4*pi, sT[10+pi])):
                e(f"v_permlane16_swap_b32 {v(q)}, {v(q+2)}")
                e(f"v_permlane16_swap_b32 {v(q+1)}, {v(q+3)}")
                e(f"v_min_u32 {v(q)}, -2, {v(q)}")
                e.op(f"buffer_store_dwordx4 {v(q,4)}, v8, {SRD_WS}, {so} offen sc1")
        self.stamp(5)
        if self.stop <= 2: return self.finish()

        VQ = 32
        e("v_min_u32 v2, 223, v0")
        e("v_lshlrev_b32 v3, 4, v2")
        e(f"s_mov_b32 {sT[8]}, {WS_MOD + 336*16}")
        def vloads(): e.op(f"buffer_load_dwordx4 {v(VQ,4)}, v3, {SRD_WS}, {sT[8]} offen sc1")
        self.poll(vloads, lambda: self.tagcheck([VQ]))
        for ks in range(28):
            e.op(f"ds_read_b64_tr_b16 {a_(112+4*ks,2)}, v4 offset:{1024*ks}")
            e.op(f"ds_read_b64_tr_b16 {a_(112+4*ks+2,2)}, v4 offset:{1024*ks+256}")
        e("v_cmp_le_u32 vcc, 112, v2")
        e("v_cndmask_b32 v5, 0, 1.0, vcc")
        for r in range(4):
            src = v(VQ + r//2)
            e(f"v_and_b32 {v(VQ+4+r)}, {sMASK}, {src}" if r & 1 else f"v_lshlrev_b32 {v(VQ+4+r)}, 16, {src}")
            e(f"v_add_f32 {v(VQ+4+r)}, v5, {v(VQ+4+r)}")
        e(f"v_cvt_pk_bf16_f32 {v(VQ)}, {v(VQ+4)}, {v(VQ+5)}")
        e(f"v_cvt_pk_bf16_f32 {v(VQ+1)}, {v(VQ+6)}, {v(VQ+7)}")
        e("v_lshlrev_b32 v2, 3, v2")
        e(f"v_add_u32 v2, {L_VEC}, v2")
        e.op(f"ds_write_b64 v2, {v(VQ,2)}")
        e("v_and_b32 v2, 1, v0")
        e("v_mul_u32_u24 v2, 896, v2")
        e("v_bfe_u32 v3, v0, 5, 1")
        e("v_lshlrev_b32 v3, 4, v3")
        e("v_sub_u32 v2, v3, v2")
        e(f"v_add_u32 v2, {L_VEC + 896}, v2")
        e(f"s_mul_i32 {sT[0]}, {sW}, 7168")
        e(f"v_add_u32 v26, {sT[0]}, v24")
        e(f"s_mul_i32 {sP[0]}, {sRB}, {4*28672}")
        e(f"s_add_u32 {sP[0]}, {sP[0]}, {WS_A1}")
        e("v_add_u32 v25, 4096, v26")
        e.waitall(vm=False)
        e("s_barrier")
        AS = [144, 172, 200, 228]
        def aloads(T):
            e(f"s_add_u32 {sT[0]}, {sP[0]}, {28672*T}")
            for i in range(7):
                t = e.op(f"buffer_load_dwordx4 {v(AS[T]+4*i,4)}, {'v26' if i < 4 else 'v25'}, {SRD_WS}, {sT[0]} offen offset:{1024*(i&3)} sc1")
            return t
        def acheck(T): self.sentcheck([AS[T]+4*i for i in range(7)], 27)
        def awrite(T, i):
            base, off = ("v26", 28672*T + 1024*i) if T < 2 else ("v28", 28672*(T-2) + 1024*i)
            return e.op(f"ds_write_b128 {base}, {v(AS[T]+4*i,4)} offset:{off}")
        e("v_add_u32 v28, 57344, v26")
        ta0 = aloads(0)
        BR = 32
        ACC = [64, 96]
        vt = {}
        def vread(ks): vt[ks] = e.op(f"ds_read_b128 {v(BR+4*(ks%4),4)}, v2 offset:{32*ks}")
        for ks in range(3): vread(ks)
        for ks in range(28):
            e.wait(vt[ks])
            for m in range(2):
                c_ = "0" if ks == 0 else v(ACC[1]+16*m, 16)
                e(f"v_mfma_f32_32x32x16_bf16 {v(ACC[1]+16*m,16)}, {v(BR+4*(ks%4),4)}, {a_(112*m+4*ks,4)}, {c_}")
                if m == 0 and ks + 3 < 28: vread(ks + 3)
        e.wait(ta0)
        self.checked(lambda: aloads(0), lambda: acheck(0))
        atok = {T: aloads(T) for T in (1, 2, 3)}
        for i in range(7): awrite(0, i)
        XA = 56
        e("v_bfe_u32 v2, v0, 5, 1")
        e("v_cmp_eq_u32 vcc, 0, v2")
        for m in range(2):
            u_, t_ = ACC[1] + 16*m, ACC[1] + 16*m + 1
            e(f"v_cvt_pk_bf16_f32 {v(XA+2*m)}, {v(u_)}, {v(t_)}")
            e(f"v_lshlrev_b32 v2, 16, {v(XA+2*m)}")
            e(f"v_and_b32 v3, {sMASK}, {v(XA+2*m)}")
            e(f"v_sub_f32 v2, {v(u_)}, v2")
            e(f"v_sub_f32 v3, {v(t_)}, v3")
            e(f"v_cvt_pk_bf16_f32 {v(XA+2*m+1)}, v2, v3")
            e(f"v_cndmask_b32 {v(XA+2*m)}, 0, {v(XA+2*m)}, vcc")
            e(f"v_cndmask_b32 {v(XA+2*m+1)}, 0, {v(XA+2*m+1)}, vcc")
        e("v_add_u32 v29, 57344, v11")
        e("v_and_b32 v30, 31, v0")
        e("v_lshlrev_b32 v30, 4, v30")
        e(f"s_lshl_b32 {sP[1]}, {sRB}, 11")
        e(f"s_add_u32 {sP[1]}, {sP[1]}, {WS_ST2}")
        self.unit_addr(10, 2, 896)
        e(f"s_mul_i32 {sT[0]}, {sW}, {448*896}")
        e(f"s_lshl_b32 {sT[1]}, {sJR}, 7")
        e(f"s_add_u32 {sT[0]}, {sT[0]}, {sT[1]}")
        e(f"v_add_u32 v10, {sT[0]}, v10")
        self.tr_addr(4, 2, 4)
        e(f"s_mul_i32 {sP[2]}, {sW}, 10240")
        e(f"s_add_u32 {sP[2]}, {sP[2]}, {L_RING}")
        e(f"s_mul_i32 {sP[3]}, {sW}, 7168")
        e(f"v_add_u32 v5, {sP[3]}, v4")
        e(f"v_add_u32 v4, {sP[2]}, v4")
        e(f"s_and_b32 {sT[0]}, {sX}, 1")
        e(f"s_lshl_b32 {sP[7]}, {sRB}, 2")
        e(f"s_add_u32 {sP[7]}, {sP[7]}, {sT[0]}")
        e(f"s_mul_i32 {sP[4]}, {sP[7]}, 114688")
        e(f"s_mul_i32 {sT[0]}, {sW}, 28672")
        e(f"s_add_u32 {sP[4]}, {sP[4]}, {sT[0]}")
        e(f"s_add_u32 {sP[4]}, {sP[4]}, {WS_HH}")
        e.waitall(vm=False)
        e("s_barrier")
        self.stamp(6)

        WD0, SG, PH = 128, 60, 48
        def unit_loc(u):
            if u < 42: return (sP[2], "v4", 1024*(u % 10))
            if u < 49: return (sP[3], "v5", 1024*(u-42))
            return (sP[3], "v5", 28672 + 1024*(u-49))
        dtok, rtok = {}, {}
        def ddma(u):
            sb_, _, off = unit_loc(u)
            if 10 <= u < 42: e.wait(rtok[(u-10)//2])
            e(f"s_add_u32 m0, {sb_}, {off}")
            e(f"s_mov_b32 {sT[1]}, {7168*u}")
            dtok[u] = e.op(f"buffer_load_dwordx4 v10, {SRD_WD}, {sT[1]} offen lds")
        def wdreg(ks, nt):
            return v(WD0 + 8*ks + 4*nt, 4) if ks < 16 else a_(112 + 8*(ks-16) + 4*nt, 4)
        def dread(ks):
            e.wait(dtok[2*ks+1])
            for nt in range(2):
                for half in range(2):
                    _, vb, off = unit_loc(2*ks + half)
                    r0 = WD0 + 8*ks + 4*nt + 2*half if ks < 16 else 112 + 8*(ks-16) + 4*nt + 2*half
                    dst = v(r0, 2) if ks < 16 else a_(r0, 2)
                    rtok[ks] = e.op(f"ds_read_b64_tr_b16 {dst}, {vb} offset:{off + 512*nt}")
        bt = {}
        def bread1(n):
            T, ks = divmod(n, 28)
            base, off = ("v11", 28672*T) if T < 2 else ("v29", 28672*(T-2))
            e.op(f"ds_read_b64_tr_b16 {v(BR+4*(n%4),2)}, {base} offset:{off + 1024*ks}")
            bt[n] = e.op(f"ds_read_b64_tr_b16 {v(BR+4*(n%4)+2,2)}, {base} offset:{off + 1024*ks + 256}")
        def sgload(T):
            return e.op(f"buffer_load_dwordx4 {v(SG,4)}, v30, {SRD_WS}, {sP[1]} offen offset:{512*T} sc1")
        def finish_ops(T):
            ops = []
            A = ACC[T & 1]
            def f():
                e.wait(tk["sg"])
                self.checked(lambda: sgload(T), lambda: self.tagcheck([SG]))
                for m in range(2):
                    e(f"v_mfma_f32_32x32x8_bf16 {v(A+16*m,16)}, {v(XA+2*m,2)}, {v(SG,2)}, {v(A+16*m,16)}")
            ops.append(f)
            ops += [lambda: None] * 10
            for r in range(16):
                ops.append(lambda r=r: e(f"v_max_f32 {v(A+r)}, 0, {v(A+r)}"))
                ops.append(lambda r=r: e(f"v_mul_f32 {v(A+r)}, {v(A+r)}, {v(A+16+r)}"))
                if r & 1: ops.append(lambda r=r: e(f"v_cvt_pk_bf16_f32 {v(PH+r//2)}, {v(A+r-1)}, {v(A+r)}"))
                if r % 8 == 7:
                    def g(ph=r//8):
                        e(f"v_min_u32 {v(PH+4*ph)}, -2, {v(PH+4*ph)}")
                        if ph == 0: e(f"s_add_u32 {sT[2]}, {sP[6]}, {114688*T}")
                        e.op(f"buffer_store_dwordx4 {v(PH+4*ph,4)}, v24, {SRD_WS}, {sT[2]} offen offset:{1024*ph} sc1")
                    ops.append(g)
            return ops
        htok = {}
        def hload(stage, ks, so=sT[3]):
            if ks % 4 == 0: e(f"s_add_u32 {so}, {sP[4]}, {229376*stage + 1024*ks}")
            htok[stage, ks] = e.op(f"buffer_load_dwordx4 {a_(4*ks,4)}, v24, {SRD_WS}, {so} offen offset:{1024*(ks%4)} sc1")
        for n in range(3): bread1(n)
        for T in range(4):
            A = ACC[T & 1]
            mm = []
            for ks in range(28):
                n = 28*T + ks
                for m in range(2):
                    def f(n=n, ks=ks, m=m):
                        if m == 0: e.wait(bt[n])
                        c_ = "0" if ks == 0 else v(A+16*m, 16)
                        e(f"v_mfma_f32_32x32x16_bf16 {v(A+16*m,16)}, {a_(112*m+4*ks,4)}, {v(BR+4*(n%4),4)}, {c_}")
                        if m == 0 and n + 3 < 112:
                            if n + 3 == 28:
                                e.wait(tk["aw"]); e("s_barrier")
                            bread1(n + 3)
                    mm.append(f)
            fill = []
            F_ = fill.append
            if T == 0:
                for n_ in range(10): F_(lambda: None)
                for T2 in (1, 2, 3):
                    def f(T2=T2):
                        e.wait(atok[T2])
                        self.checked(lambda: aloads(T2), lambda: acheck(T2))
                    F_(f)
                    for i in range(7):
                        def f(T2=T2, i=i): tk["aw"] = awrite(T2, i)
                        F_(f)
                    if T2 == 1:
                        for u in range(10): F_(lambda u=u: ddma(u))
                weave(mm, fill, 0, 49)
            elif T == 1:
                for ks in range(10):
                    F_(lambda ks=ks: dread(ks))
                    F_(lambda ks=ks: ddma(10 + 2*ks))
                    F_(lambda ks=ks: ddma(11 + 2*ks))
                    if ks == 5:
                        def f(): tk["sg"] = sgload(0)
                        F_(f)
                fill += finish_ops(0)
                def f(): tk["sg"] = sgload(1)
                F_(f)
                weave(mm, fill, 0, 55)
            elif T == 2:
                F_(lambda: e("s_barrier"))
                fo = finish_ops(1)
                fill += fo
                for ks in range(10, 16):
                    F_(lambda ks=ks: dread(ks))
                    F_(lambda ks=ks: ddma(10 + 2*ks))
                    F_(lambda ks=ks: ddma(11 + 2*ks))
                def f(): tk["sg"] = sgload(2)
                F_(f)
                for u in range(42, 56): F_(lambda u=u: ddma(u))
                weave(mm, fill, 2, 55)
            else:
                fill += finish_ops(2)
                def f(): tk["sg"] = sgload(3)
                F_(f)
                weave(mm[:28], fill, 0, 27)
                weave(mm[28:], [lambda ks=ks: hload(0, ks) for ks in range(14)], 0, 28)
        for op in finish_ops(3): op()
        self.stamp(7)
        if self.stop <= 3: return self.finish()

        for ks in range(14, 28): hload(0, ks)
        for ks in range(16, 28): dread(ks)
        GB, XR, R2 = 32, 40, 56
        e("v_and_b32 v2, 7, v0")
        e("v_lshlrev_b32 v3, 5, v2")
        e(f"s_lshl_b32 {sT[8]}, {sJR}, 8")
        e(f"s_add_u32 {sT[8]}, {sT[8]}, {WS_MOD + 560*16}")
        def gloads():
            e.op(f"buffer_load_dwordx4 {v(XR,4)}, v3, {SRD_WS}, {sT[8]} offen sc1")
            return e.op(f"buffer_load_dwordx4 {v(XR+4,4)}, v3, {SRD_WS}, {sT[8]} offen offset:16 sc1")
        tg = gloads()
        e("v_lshrrev_b32 v6, 3, v0")
        e("v_lshlrev_b32 v7, 4, v6")
        e(f"s_lshl_b32 {sT[0]}, {sP[7]}, 9")
        e(f"s_add_u32 {sT[0]}, {sT[0]}, {WS_ST2}")
        e.op(f"buffer_load_dword {v(R2)}, v7, {SRD_WS}, {sT[0]} offen sc1")
        e.op(f"buffer_load_dword {v(R2+1)}, v7, {SRD_WS}, {sT[0]} offen offset:1024 sc1")
        e(f"s_mul_i32 {sT[0]}, {sP[7]}, 28672")
        e(f"s_lshl_b32 {sT[1]}, {sJR}, 12")
        e(f"s_add_u32 {sT[0]}, {sT[0]}, {sT[1]}")
        e(f"s_lshl_b32 {sT[1]}, {sW}, 10")
        e(f"s_add_u32 {sT[0]}, {sT[0]}, {sT[1]}")
        e(f"s_add_u32 {sT[0]}, {sT[0]}, {WS_X1}")
        e(f"s_add_u32 m0, {sT[1]}, {L_X1}")
        e.op(f"buffer_load_dwordx4 v24, {SRD_WS}, {sT[0]} offen sc1 lds")
        e(f"s_add_u32 {sT[0]}, {sT[0]}, 57344")
        e(f"s_add_u32 m0, {sT[1]}, {L_X1 + 4096}")
        tx1 = e.op(f"buffer_load_dwordx4 v24, {SRD_WS}, {sT[0]} offen sc1 lds")
        e("v_and_b32 v8, 31, v0")
        e("v_mul_u32_u24 v8, 272, v8")
        e("v_bfe_u32 v16, v0, 5, 1")
        e(f"s_mul_i32 {sT[0]}, {sW}, 8704")
        e(f"s_add_u32 {sT[0]}, {sT[0]}, {L_RED}")
        e(f"v_lshl_add_u32 v16, v16, 4, {sT[0]}")
        e("v_add_u32 v8, v8, v16")
        e("v_mul_u32_u24 v16, 272, v6")
        e("v_add_u32 v16, v16, v3")
        e(f"v_add_u32 v16, {L_RED}, v16")
        e("v_lshlrev_b32 v17, 9, v2")
        e("v_lshl_add_u32 v17, v6, 1, v17")
        e(f"v_add_u32 v17, {L_X1}, v17")
        e("v_mul_u32_u24 v18, 896, v6")
        e("v_lshl_add_u32 v18, v2, 4, v18")
        e(f"s_mul_i32 {sP[5]}, {sP[7]}, 28672")
        e(f"s_lshl_b32 {sT[0]}, {sJR}, 7")
        e(f"s_add_u32 {sP[5]}, {sP[5]}, {sT[0]}")
        def hreload(stage, g):
            for ks in range(4*g, 28): hload(stage, ks, sT[4])
        def stage_mm(stage):
            A = ACC[stage]
            mm = []
            for ks in range(28):
                for nt in range(2):
                    def f(ks=ks, nt=nt):
                        if nt == 0 and ks % 4 == 0:
                            g = ks // 4
                            e.wait(htok[stage, ks+3])
                            self.checked(lambda: hreload(stage, g), lambda: self.sentcheck([16*g+4*i for i in range(4)], 20, acc=True))
                        if nt == 0 and ks >= 16 and stage == 0: e.wait(rtok[ks])
                        c_ = "0" if ks == 0 else v(A+16*nt, 16)
                        e(f"v_mfma_f32_32x32x16_bf16 {v(A+16*nt,16)}, {wdreg(ks,nt)}, {a_(4*ks,4)}, {c_}")
                    mm.append(f)
            return mm
        SUM, TMP = 128, 136
        def stage_out(stage, sum_, tmp):
            A = ACC[stage]
            for nt in range(2):
                for g in range(4): e.op(f"ds_write_b128 v8, {v(A+16*nt+4*g,4)} offset:{128*nt + 32*g}")
            e.waitall(vm=False)
            e("s_barrier")
            rt = []
            for w_ in range(4):
                dst = sum_ if w_ == 0 else tmp + 8*(w_-1)
                e.op(f"ds_read_b128 {v(dst,4)}, v16 offset:{8704*w_}")
                rt.append(e.op(f"ds_read_b128 {v(dst+4,4)}, v16 offset:{8704*w_+16}"))
            for w_ in range(1, 4):
                e.wait(rt[w_])
                for p in range(0, 8, 2): e(f"v_pk_add_f32 {v(sum_+p,2)}, {v(sum_+p,2)}, {v(tmp+8*(w_-1)+p,2)}")
            for p in range(0, 8, 2):
                e(f"v_pk_mul_f32 {v(sum_+p,2)}, {v(sum_+p,2)}, {v(R2,2)} op_sel:[0,{stage}] op_sel_hi:[1,{stage}]")
                e(f"v_pk_fma_f32 {v(sum_+p,2)}, {v(sum_+p,2)}, {v(GB+p,2)}, {v(XR+8*stage+p,2)}")
                e(f"v_cvt_pk_bf16_f32 {v(tmp+p//2)}, {v(sum_+p)}, {v(sum_+p+1)}")
            e(f"s_add_u32 {sT[0]}, {sP[5]}, {57344*stage}")
            e.op(f"buffer_store_dwordx4 {v(tmp,4)}, v18, {SRD_OUT}, {sT[0]} offen")
        mm = stage_mm(0)
        weave(mm[:28], [])
        weave(mm[28:], [lambda ks=ks: hload(1, ks) for ks in range(14)])
        for ks in range(14, 28): hload(1, ks)
        e.wait(tx1)
        self.checked(gloads, lambda: self.tagcheck([XR, XR+4]))
        for r in range(8):
            src = v(XR + 4*(r//4) + (r//2) % 2)
            e(f"v_and_b32 {v(GB+r)}, {sMASK}, {src}" if r & 1 else f"v_lshlrev_b32 {v(GB+r)}, 16, {src}")
        for st in range(2):
            e(f"v_and_b32 {v(R2+st)}, {sMASK}, {v(R2+st)}")
            e(f"v_mul_f32 {v(R2+st)}, {v(R2+st)}, {v(R2+st)}")
            e(f"v_rcp_f32 {v(R2+st)}, {v(R2+st)}")
        e("s_barrier")
        for r in range(16): e.op(f"ds_read_u16 {v(XR+r)}, v17 offset:{4096*(r//8) + 64*(r%8)}")
        e.waitall(vm=False)
        for r in range(16): e(f"v_lshlrev_b32 {v(XR+r)}, 16, {v(XR+r)}")
        stage_out(0, 96, 104)
        self.stamp(8)
        for f in stage_mm(1): f()
        self.stamp(9)
        e("s_barrier")
        stage_out(1, 64, 72)
        e("s_cmp_lg_u32 s2, 0")
        e("s_cbranch_scc1 L_noepoch")
        e("v_mov_b32 v2, s46")
        e("v_mov_b32 v3, s47")
        e("v_lshlrev_b32 v4, 25, v0")
        e("v_lshrrev_b32 v5, 7, v0")
        e("v_lshl_or_b32 v4, v5, 25, v4")
        e.op(f"buffer_store_dwordx2 v[2:3], v4, {SRD_WS}, 0 offen")
        e.label("L_noepoch")
        self.stamp(10)
        self.finish()

    def helper(self):
        e = self.e
        self.srd(SRD_C, 80, 896)
        self.srd(SRD_WM, 88, 2408448)
        sH = sI
        e(f"s_lshl_b32 {sH}, {sJR}, 3")
        e(f"s_add_u32 {sH}, {sH}, {sX}")
        e(f"s_add_u32 {sT[0]}, {sH}, 7")
        e(f"s_sub_u32 {sT[1]}, {sH}, 7")
        e(f"s_cmp_lt_u32 {sH}, 28")
        e(f"s_cselect_b32 {sT[0]}, {sT[0]}, {sT[1]}")
        e(f"s_cmp_lt_u32 {sH}, 21")
        e(f"s_cselect_b32 {sP[0]}, {sH}, {sT[0]}")
        e(f"s_add_u32 {sT[0]}, {sH}, 25")
        e(f"s_add_u32 {sT[1]}, {sH}, 32")
        e(f"s_cmp_lt_u32 {sH}, 3")
        e(f"s_cselect_b32 {sP[1]}, {sT[0]}, {sT[1]}")
        self.unit_addr(10, 2, 5376)
        e(f"s_mul_i32 {sT[0]}, {sW}, {112*5376}")
        e(f"v_add_u32 v10, {sT[0]}, v10")
        e("v_lshlrev_b32 v3, 1, v0")
        e(f"s_mul_i32 {sP[2]}, {sW}, 14336")
        e("s_waitcnt lgkmcnt(0)")
        self.stamp(0)
        e.op(f"buffer_load_ushort v32, v3, {SRD_C}, 0 offen")
        tc = e.op(f"buffer_load_ushort v33, v3, {SRD_C}, 0 offen offset:512")
        self.load_tag()
        LR, GS = 84, 160
        tL = self.ln1_loads(6, LR)
        def mdma(task):
            e(f"s_lshl_b32 {sT[2]}, {sP[task]}, 7")
            for u in range(14):
                e(f"s_add_u32 m0, {sP[2]}, {57344*task + 1024*u}")
                e(f"s_add_u32 {sT[1]}, {sT[2]}, {43008*u}")
                t = e.op(f"buffer_load_dwordx4 v10, {SRD_WM}, {sT[1]} offen lds")
            return t
        mdma(0)
        L_SC, L_PART = 114688, 116736
        e.wait(tc)
        for r in (32, 33):
            e(f"v_lshlrev_b32 v{r}, 16, v{r}")
            e(f"v_mul_f32 v34, 0xbfb8aa3b, v{r}")
            e("v_exp_f32 v34, v34")
            e("v_add_f32 v34, 1.0, v34")
            e("v_rcp_f32 v34, v34")
            e(f"v_mul_f32 v{r}, v{r}, v34")
            e(f"v_cvt_pk_bf16_f32 v{r}, v{r}, v{r}")
        e(f"v_add_u32 v3, {L_SC}, v3")
        e("s_waitcnt lgkmcnt(0)")
        e.op("ds_write_b16 v3, v32")
        e.op("ds_write_b16 v3, v33 offset:512")
        self.make_tag()
        for q in (GS, GS+4):
            e(f"v_mov_b32 {v(q+2)}, s46")
            e(f"v_mov_b32 {v(q+3)}, s47")
        e.wait(tL)
        self.ln1_stats(LR, GS, lambda: None)
        self.tr_addr(4, 2, 4)
        e(f"v_add_u32 v4, {sP[2]}, v4")
        e("v_bfe_u32 v5, v0, 5, 1")
        e(f"s_mul_i32 {sT[0]}, {sW}, 224")
        e(f"s_add_u32 {sT[0]}, {sT[0]}, {L_SC}")
        e(f"v_lshl_add_u32 v5, v5, 3, {sT[0]}")
        e("v_lshlrev_b32 v7, 2, v0")
        e(f"v_add_u32 v7, {L_PART}, v7")
        e("v_and_b32 v8, 15, v0")
        e("v_lshlrev_b32 v8, 4, v8")
        e("v_lshrrev_b32 v9, 4, v0")
        e("v_lshl_or_b32 v9, v9, 25, v8")
        e(f"v_add_u32 v8, {L_PART}, v8")
        e.waitall(vm=False)
        e("s_barrier")
        SC, WB, AC = 32, 64, 128
        for ks in range(7):
            e.op(f"ds_read_b64 {v(SC+4*ks,2)}, v5 offset:{32*ks}")
            e.op(f"ds_read_b64 {v(SC+4*ks+2,2)}, v5 offset:{32*ks+16}")
        def gemv(task):
            for ks in range(7):
                for nt in range(2):
                    for half in range(2):
                        e.op(f"ds_read_b64_tr_b16 {v(WB+8*ks+4*nt+2*half,2)}, v4 offset:{1024*(2*ks+half) + 512*nt}")
            e.waitall(vm=False)
            for ks in range(7):
                for nt in range(2):
                    c_ = "0" if ks == 0 else v(AC+16*nt, 16)
                    e(f"v_mfma_f32_32x32x16_bf16 {v(AC+16*nt,16)}, {v(SC+4*ks,4)}, {v(WB+8*ks+4*nt,4)}, {c_}")
            e("v_and_b32 v2, 32, v0")
            e("v_cmp_eq_u32 vcc, 0, v2")
            e(f"v_cndmask_b32 v2, {v(AC+16)}, {v(AC)}, vcc")
            e.op(f"ds_write_b32 v7, v2 offset:{1024*task}")
            e.waitall(vm=False)
            e("s_barrier")
            for w_ in range(4): e.op(f"ds_read_b128 {v(WB+4*w_,4)}, v8 offset:{1024*task + 256*w_}")
            e.waitall(vm=False)
            for w_ in range(1, 4):
                for p in (0, 2): e(f"v_pk_add_f32 {v(WB+p,2)}, {v(WB+p,2)}, {v(WB+4*w_+p,2)}")
            e(f"v_cvt_pk_bf16_f32 {v(GS+4)}, {v(WB)}, {v(WB+1)}")
            e(f"v_cvt_pk_bf16_f32 {v(GS+5)}, {v(WB+2)}, {v(WB+3)}")
            e(f"s_lshl_b32 {sT[0]}, {sP[task]}, 8")
            e(f"s_add_u32 {sT[0]}, {sT[0]}, {WS_MOD}")
            e.op(f"buffer_store_dwordx4 {v(GS+4,4)}, v9, {SRD_WS}, {sT[0]} offen sc1")
        e.waitall(lg=False)
        e(f"s_cmp_lt_u32 {sH}, 10")
        e("s_cbranch_scc0 L_h_one")
        mdma(1)
        e.label("L_h_one")
        gemv(0)
        self.stamp(1)
        e(f"s_cmp_lt_u32 {sH}, 10")
        e("s_cbranch_scc0 L_h_two")
        e("v_add_u32 v4, 57344, v4")
        e.waitall(lg=False)
        gemv(1)
        e.label("L_h_two")
        self.stamp(2)
        if self.stop <= 2: return self.finish()
        e("v_and_b32 v24, 63, v0")
        e("v_lshlrev_b32 v24, 4, v24")
        e(f"s_lshl_b32 {sT[8]}, {sW}, 12")
        e(f"s_add_u32 {sT[8]}, {sT[8]}, {WS_ST1}")
        def sloads():
            for i in range(4): e.op(f"buffer_load_dwordx4 {v(32+4*i,4)}, v24, {SRD_WS}, {sT[8]} offen offset:{1024*i} sc1")
        self.poll(sloads, lambda: self.tagcheck([32+4*i for i in range(4)]))
        e("s_barrier")
        self.stamp(3)
        e(f"s_mul_i32 {sT[0]}, {sW}, 7168")
        e(f"v_add_u32 v26, {sT[0]}, v24")
        e("v_add_u32 v25, 4096, v26")
        self.tr_addr(11, 2, 8)
        e(f"v_add_u32 v11, {sT[0]}, v11")
        e(f"s_lshr_b32 {sP[3]}, {sH}, 1")
        e(f"s_lshl_b32 {sP[3]}, {sP[3]}, 2")
        e(f"s_and_b32 {sT[0]}, {sH}, 1")
        e(f"s_add_u32 {sP[3]}, {sP[3]}, {sT[0]}")
        e(f"s_mul_i32 {sP[4]}, {sP[3]}, 28672")
        e(f"s_add_u32 {sP[4]}, {sP[4]}, {WS_X1}")
        e(f"s_lshl_b32 {sP[3]}, {sP[3]}, 9")
        e(f"s_add_u32 {sP[3]}, {sP[3]}, {WS_ST2}")
        e("v_and_b32 v8, 31, v0")
        e("v_lshrrev_b32 v9, 5, v0")
        e("v_lshlrev_b32 v2, 4, v8")
        e("v_lshl_or_b32 v9, v9, 25, v2")
        e("v_lshlrev_b32 v8, 2, v8")
        e(f"v_add_u32 v8, {L_PART}, v8")
        e(f"s_mov_b32 {sP[5]}, 0x3f803f80")
        XT, FR = 32, 64
        for job in range(2):
            def xl():
                for i in range(7):
                    e.op(f"buffer_load_dwordx4 {v(XT+4*i,4)}, {'v26' if i < 4 else 'v25'}, {SRD_WS}, {sP[4]} offen offset:{1024*(i&3)} sc1")
            self.poll(xl, lambda: self.sentcheck([XT+4*i for i in range(7)], 27))
            for i in range(7): e.op(f"ds_write_b128 v26, {v(XT+4*i,4)} offset:{1024*i}")
            rt = []
            for i in range(7):
                e.op(f"ds_read_b64_tr_b16 {v(FR+4*i,2)}, v11 offset:{1024*i}")
                rt.append(e.op(f"ds_read_b64_tr_b16 {v(FR+4*i+2,2)}, v11 offset:{1024*i+256}"))
            e("v_mov_b32 v2, 0")
            e("v_mov_b32 v3, 0")
            for i in range(7):
                e.wait(rt[i])
                for r in range(4):
                    e(f"v_dot2c_f32_bf16 v2, {sP[5]}, {v(FR+4*i+r)}")
                    e(f"v_dot2c_f32_bf16 v3, {v(FR+4*i+r)}, {v(FR+4*i+r)}")
            e("v_permlane32_swap_b32 v2, v3")
            e("v_add_f32 v2, v2, v3")
            e.op(f"ds_write_b32 v7, v2 offset:{1024*job}")
            e.waitall(vm=False)
            e("s_barrier")
            for w_ in range(4):
                o = 256*job + 64*w_
                e.op(f"ds_read_b32 {v(FR+2*w_)}, v8 offset:{4*o}")
                e.op(f"ds_read_b32 {v(FR+2*w_+1)}, v8 offset:{4*o+128}")
            e.waitall(vm=False)
            e(f"v_pk_add_f32 {v(FR,2)}, {v(FR,2)}, {v(FR+2,2)}")
            e(f"v_pk_add_f32 {v(FR+4,2)}, {v(FR+4,2)}, {v(FR+6,2)}")
            e(f"v_pk_add_f32 {v(GS,2)}, {v(FR,2)}, {v(FR+4,2)}")
            self.stats_finish(GS, GS+1, True)
            e(f"v_mov_b32 {v(GS+1)}, {v(GS)}")
            e.op(f"buffer_store_dwordx4 {v(GS,4)}, v9, {SRD_WS}, {sP[3]} offen offset:{1024*job} sc1")
            e(f"s_add_u32 {sP[4]}, {sP[4]}, 57344")
            self.stamp(4 + job)
        self.finish()


HEADER = "".join(l for l in open(f"cdna_kernels/{NAME}.s.ref").readlines()[:18] if "@launch" not in l) \
    if __import__("os").path.exists(f"cdna_kernels/{NAME}.s.ref") else ""


def generate(**kw):
    body = Gen(**kw).build()
    return f"""{HEADER}; @launch grid=(256,1,1) block=(256,1,1) lds={LDS_BYTES}
.amdgcn_target "amdgcn-amd-amdhsa--gfx950"
.text
.globl {NAME}_kernel
.p2align 8
.type {NAME}_kernel,@function
{NAME}_kernel:
{body}
.section .rodata,"a"
.p2align 6
.amdhsa_kernel {NAME}_kernel
  .amdhsa_next_free_vgpr 512
  .amdhsa_next_free_sgpr 102
  .amdhsa_accum_offset 256
  .amdhsa_group_segment_fixed_size 0
  .amdhsa_kernarg_size 120
  .amdhsa_user_sgpr_count 2
  .amdhsa_user_sgpr_kernarg_segment_ptr 1
  .amdhsa_system_sgpr_workgroup_id_x 1
  .amdhsa_float_denorm_mode_32 3
.end_amdhsa_kernel
"""


if __name__ == "__main__":
    out = sys.argv[1] if len(sys.argv) > 1 else f"cdna_kernels/{NAME}.s"
    kw = {}
    for a in sys.argv[2:]:
        k, val = a.split("=")
        kw[k] = int(val)
    open(out, "w").write(generate(**kw))
```

```python
import re

TRANS = ("v_exp_f32", "v_log_f32", "v_rcp_f32", "v_rsq_f32", "v_sqrt_f32", "v_sin_f32", "v_cos_f32")
_reg_re = re.compile(r"\b([vas])(?:(\d+)\b|\[(\d+):(\d+)\])")

def regs_of(tok):
    out = set()
    for m in _reg_re.finditer(tok):
        k = m.group(1)
        if m.group(2) is not None:
            out.add((k, int(m.group(2))))
        else:
            out.update((k, i) for i in range(int(m.group(3)), int(m.group(4)) + 1))
    if re.search(r"\bvcc\b", tok): out.update({("s", 106), ("s", 107)})
    if re.search(r"\bm0\b", tok): out.add(("s", 124))
    if re.search(r"\bexec\b", tok): out.update({("s", 126), ("s", 127)})
    return out

class Ins:
    def __init__(self, text):
        self.text = text
        t = text.split(";")[0].strip()
        self.is_label = t.endswith(":")
        self.is_dir = t.startswith(".")
        parts = t.split(None, 1)
        self.op = parts[0] if parts else ""
        ops = [o.strip() for o in parts[1].split(",")] if len(parts) > 1 else []
        if ops:
            last = ops[-1].split()
            ops[-1] = last[0] if last else ""
        for n, o in enumerate(ops):
            if " " in o:
                ops = ops[:n] + [o.split()[0]]
                break
        self.ops = ops
        op = self.op
        self.mfma = op.startswith("v_mfma")
        self.valu = op.startswith("v_") and not self.mfma
        self.salu = op.startswith("s_")
        self.ds = op.startswith("ds_")
        self.vmem = op.startswith("buffer_") or op.startswith("global_")
        self.dpp = "_dpp" in op
        self.perml = op.startswith("v_permlane")
        self.rdlane = op.startswith("v_readlane") or op.startswith("v_readfirstlane")
        self.trans = op.replace("_e32", "").replace("_e64", "") in TRANS
        self.dot = op.startswith("v_dot")
        self.dma = self.vmem and re.search(r"\blds\b", t) is not None
        self.store = self.vmem and ("store" in op or "atomic" in op)
        self.widest = self.store and ("x4" in op or "x3" in op)
        R = [regs_of(o) for o in ops]
        w, r = set(), set()
        if self.is_label or self.is_dir or not R:
            pass
        elif self.mfma:
            w = R[0]; r = R[1] | R[2] | R[3]
            self.a, self.b, self.c = R[1], R[2], R[3]
            self.passes = 8 if "32x32" in op else 4
        elif self.perml:
            w = R[0] | R[1]; r = R[0] | R[1]
        elif self.valu:
            w = R[0]; r = set().union(*R[1:]) if len(R) > 1 else set()
            if "fmac" in op or "dot2c" in op or self.dpp: r |= R[0]
            if "_co_" in op: w |= R[1]
        elif self.ds:
            if "write" in op: r = set().union(*R)
            else:
                w = R[0]; r = set().union(*R[1:])
                if "d16" in op: r |= R[0]
        elif self.vmem:
            if self.store or self.dma: r = set().union(*R)
            else: w = R[0]; r = set().union(*R[1:])
            if self.dma: r.add(("s", 124))
            if self.store:
                self.data = R[0] if op.startswith("buffer_") else R[1]
        elif self.salu:
            if op.startswith("s_cmp") or op.startswith("s_cbranch") or op in ("s_waitcnt", "s_nop", "s_barrier", "s_branch", "s_setprio", "s_endpgm", "s_sleep"):
                r = set().union(*R)
            else:
                w = R[0]; r = set().union(*R[1:]) if len(R) > 1 else set()
                if "saveexec" in op: w = w | {("s", 126), ("s", 127)}
        self.w, self.r = w, r
    def states(self):
        if self.is_label or self.is_dir: return 0
        if self.op == "s_nop": return int(self.ops[0]) + 1
        return 1

def need(p, c):
    n = 0
    pv = {x for x in p.w if x[0] != "s"}
    ps = {x for x in p.w if x[0] == "s"}
    if p.valu:
        if c.mfma and pv & c.r: n = max(n, 2)
        if (c.dpp or c.perml) and pv & c.r: n = max(n, 2)
        if c.rdlane and pv & c.r: n = max(n, 1)
        if p.trans and c.valu and not c.trans and pv & c.r: n = max(n, 1)
        if p.dot and (c.valu or c.mfma or c.vmem or c.ds) and pv & (c.r | c.w):
            if not (c.op == p.op and pv == c.w): n = max(n, 3)
        if ps & c.r:
            if c.vmem: n = max(n, 5)
            elif c.rdlane: n = max(n, 4)
            elif c.valu: n = max(n, 2)
            elif c.salu: n = max(n, 1)
    if p.mfma:
        big = 12 if p.passes == 8 else 8
        if c.mfma:
            if p.w & (c.a | c.b): n = max(n, big)
            if p.w & c.c and not (p.w == c.c and p.passes == c.passes): n = max(n, big - 2)
            if p.w & c.w and not (p.w == c.c): n = max(n, big - 2)
        elif p.w & (c.r | c.w): n = max(n, big)
        if c.valu and p.c & c.w: n = max(n, 7 if p.passes == 8 else 3)
    if p.widest and p.data & c.w: n = max(n, 2)
    if p.salu and ("s", 124) in p.w and c.dma: n = max(n, 1)
    return n

class Tok:
    def __init__(self, kind): self.kind = kind; self.done = False

class Emit:
    def __init__(self):
        self.t = 0
        self.mfree = 0
        self.hook = None
        self.lock = 0
        self.nvm = 0
        self.ins = []
        self.vm = []
        self.lg = []
        self.nlab = 0
    def __call__(self, text):
        for ln in text.split("\n"):
            ln = ln.strip()
            if ln: self._one(ln)
    def _one(self, text):
        c = Ins(text)
        if not (c.is_label or c.is_dir):
            dist = 0; pad = 0
            for p in reversed(self.ins):
                if dist >= 20: break
                if not (p.is_label or p.is_dir):
                    pad = max(pad, need(p, c) - dist)
                dist += p.states()
            if pad > 0:
                self.ins.append(Ins(f"s_nop {pad-1}")); self.t += 4 + pad
        self.ins.append(c)
        if c.mfma:
            self.t = max(self.t, self.mfree); self.mfree = self.t + 4 * c.passes; self.t += 8
        elif not (c.is_label or c.is_dir):
            self.t += 8 if c.trans else 4
        tok = None
        if c.vmem:
            tok = Tok("vm"); self.vm.append(tok); self.nvm += 1; tok.seq = self.nvm
        elif c.ds:
            tok = Tok("lg"); self.lg.append(tok)
        if self.hook and not self.lock:
            self.lock += 1; self.hook(); self.lock -= 1
        self.last = tok
        return tok
    def atomic(self):
        em = self
        class L:
            def __enter__(s_): em.lock += 1
            def __exit__(s_, *a): em.lock -= 1
        return L()
    def op(self, text):
        return self._one(text)
    def wait(self, *toks):
        parts = []
        for kind, q, cap, name in (("vm", self.vm, 63, "vmcnt"), ("lg", self.lg, 15, "lgkmcnt")):
            idx = [q.index(t) for t in toks if t is not None and t.kind == kind and not t.done]
            if not idx: continue
            n = min(len(q) - 1 - max(idx), cap)
            k = len(q) - n
            for t in q[:k]: t.done = True
            del q[:k]
            parts.append(f"{name}({n})")
        if parts: self._one("s_waitcnt " + " ".join(parts))
    def waitall(self, vm=True, lg=True):
        parts = []
        if vm:
            for t in self.vm: t.done = True
            self.vm = []; parts.append("vmcnt(0)")
        if lg:
            for t in self.lg: t.done = True
            self.lg = []; parts.append("lgkmcnt(0)")
        self._one("s_waitcnt " + " ".join(parts))
    def forget(self):
        self.vm = []; self.lg = []
    def label(self, name): self._one(name + ":")
    def newlabel(self, p="L"):
        self.nlab += 1
        return f"{p}_{self.nlab}"
    def text(self):
        return "\n".join(("" if i.is_label else "    ") + i.text for i in self.ins)

def weave(main, fill, start=0, end=None):
    end = len(main) if end is None else end
    n = max(end - start, 1)
    done = 0
    for i, m in enumerate(main):
        m()
        if start <= i < end:
            upto = (len(fill) * (i - start + 1) + n - 1) // n
            while done < upto:
                fill[done](); done += 1
    while done < len(fill):
        fill[done](); done += 1
```

```python
import sys
from emit import Emit, weave

NAME = "adaLN_cond__ssm_conv_h3__glu_gated_reglu__prompt"
S, D, F = 2048, 448, 1792

WS_EPOCH = 0
WS_ST1 = 0x1000
WS_MOD = 0x5000
WS_ST2 = 0x8000
WS_KVG = 0x10000
WS_XG = WS_KVG + 3670016
WS_A1 = WS_XG + 3670016
WS_X1 = WS_A1 + 1835008
WS_HH = WS_X1 + 1835008
WS_STAMP = WS_HH + 7340032
WS_SIZE = WS_STAMP + 256 * 4 * 128

L_WST = 0
L_TK = 114688
L_UR = L_TK + 17024
L_ST = L_UR + 9216
L_VEC = L_ST + 16384
L_HI = 57344
L_EXT = 114688
L_X1 = L_EXT + 40960
L_RED = 0
LDS_BYTES = 163840
BIG = 0x7fffff00
SPIN = 1 << 15

SRD_K, SRD_V, SRD_X, SRD_WS = "s[4:7]", "s[8:11]", "s[12:15]", "s[16:19]"
SRD_SH, SRD_SSM, SRD_WG, SRD_WU, SRD_WD, SRD_OUT = "s[20:23]", "s[24:27]", "s[28:31]", "s[32:35]", "s[36:39]", "s[40:43]"
SRD_C, SRD_WM = "s[4:7]", "s[8:11]"
TAG = "s[46:47]"
sW, sX, sJQ, sJR, sI, sD0, sRB, sFS = "s48", "s49", "s50", "s51", "s52", "s53", "s54", "s55"
sMASK, sSPIN, sDV = "s56", "s57", "s58"
sT = ["s%d" % i for i in range(60, 72)]
sC = ["s[72:73]", "s[74:75]", "s[76:77]", "s[78:79]"]
sLO, sEXT = "s80", "s81"
sKW = ["0", "s82", "s83", "s84"]
sKD = ["0", "s85", "s86", "s87"]
sP = ["s%d" % i for i in range(20, 28)]
STAMP0 = 90


def v(a, n=1): return f"v{a}" if n == 1 else f"v[{a}:{a+n-1}]"
def a_(a, n=1): return f"a{a}" if n == 1 else f"a[{a}:{a+n-1}]"


class WStream:
    def __init__(self, e):
        self.e = e
        self.units = [("g", i) for i in range(28)] + [("u", i) for i in range(28)] + [("d", i) for i in range(56)]
        self.next = 0; self.limit = 0; self.rlimit = 0
        self.free = [("hi", i, None) for i in range(14)] + [("lo", i, None) for i in range(14)]
        self.banned = set()
        self.pend = []
        self.pace = 96; self.lag = 12; self.tnext = 0; self.seen = 0
        self.grp = None
        self.cur = {"w": 0, "d": 0}
        self.rtok = {}
    def dest(self, kind, i):
        if kind == "g": return [a_(4*i, 2), a_(4*i+2, 2)]
        if kind == "u": return [a_(112+4*i, 2), a_(112+4*i+2, 2)]
        ks, half = divmod(i, 2)
        return [self.dreg(ks, nt, 2*half, 2) for nt in range(2)]
    @staticmethod
    def dreg(ks, nt, off=0, n=4):
        if ks < 12: return v(160 + 8*ks + 4*nt + off, n)
        if ks < 16: return a_(224 + 8*(ks-12) + 4*nt + off, n)
        return a_(112 + 8*(ks-16) + 4*nt + off, n)
    def can_dma(self):
        return self.next < min(self.limit, len(self.units)) and any(s[0] not in self.banned for s in self.free)
    def dma(self):
        e = self.e
        kind, i = self.units[self.next]
        slot = next(s for s in self.free if s[0] not in self.banned)
        self.free.remove(slot)
        reg, idx, tok = slot
        e.wait(tok)
        g = self.grp
        k = i - g[1] if g and g[0] == kind else -1
        if not (0 < k < 4 and g[2] == reg and idx - g[3] == k):
            k = 0
            self.grp = (kind, i, reg, idx)
            key, vr, stride = ("d", "v19", 7168) if kind == "d" else ("w", "v10", 57344)
            if i != self.cur[key]:
                e(f"v_add_u32 {vr}, {((i - self.cur[key]) * stride) & 0xffffffff:#x}, {vr}")
                self.cur[key] = i
            base, off = {"lo": (sLO, 0), "hi": (sLO, L_HI), "ext": (sEXT, 0)}[reg]
            e(f"s_add_u32 m0, {base}, {off + 1024*idx}")
        vr, srd, cs = {"g": ("v10", SRD_WG, sKW), "u": ("v10", SRD_WU, sKW), "d": ("v19", SRD_WD, sKD)}[kind]
        t = e.op(f"buffer_load_dwordx4 {vr}, {srd}, {cs[k]} offen offset:{1024*k} lds")
        self.pend.append((self.next, reg, idx, t))
        self.next += 1
    def read(self):
        e = self.e
        n, reg, idx, t = self.pend.pop(0)
        kind, i = self.units[n]
        e.wait(t)
        vb = {"lo": "v18", "hi": "v20", "ext": "v21"}[reg] if kind == "d" else {"lo": "v16", "hi": "v17"}[reg]
        step = 512 if kind == "d" else 256
        for j, d_ in enumerate(self.dest(kind, i)):
            tok = e.op(f"ds_read_b64_tr_b16 {d_}, {vb} offset:{1024*idx + step*j}")
        self.rtok[n] = tok
        self.free.append((reg, idx, tok))
    def hook(self):
        e = self.e
        if e.nvm > self.seen:
            self.tnext = max(self.tnext, e.t - self.pace) + self.pace * (e.nvm - self.seen)
            self.seen = e.nvm
        if e.t >= self.tnext and self.can_dma():
            self.dma()
        elif self.pend and self.pend[0][0] < self.rlimit and (self.pend[0][3].done or e.nvm - self.pend[0][3].seq >= self.lag):
            self.read()
    def arm(self, recent=0):
        self.seen = self.e.nvm - recent; self.tnext = self.e.t
        self.e.hook = self.hook
    def burst(self, n):
        with self.e.atomic():
            for _ in range(n):
                if self.can_dma(): self.dma()
    def flush(self, upto):
        with self.e.atomic():
            self.limit = max(self.limit, upto); self.rlimit = max(self.rlimit, upto)
            while self.next < upto or (self.pend and self.pend[0][0] < upto):
                if self.next < upto and self.can_dma(): self.dma()
                else: self.read()


class Gen:
    def __init__(self, stop=99, diag=False, pts=None, **opt):
        self.e = Emit()
        self.opt = opt
        mid = (pts or "kv,kvin,a1st,g1go,g1end,g2l").split(",")
        self.pts = ["start"] + mid + [None] * (6 - len(mid))
        self.stop = stop
        self.diag = diag
        self.tail = []
        self.in_helper = False

    def stamp(self, name):
        if name is not None and name == self.opt.get("probe") and not self.in_helper: self.e("s_memrealtime s[92:93]")
        if self.diag and name is not None and name in self.pts:
            k = self.pts.index(name)
            r = 44 if k == 0 else STAMP0 + 2*(k-1)
            self.e(f"s_memrealtime s[{r}:{r+1}]")

    def srd(self, srd, off, nbytes):
        e = self.e
        b = int(srd[2:srd.index(":")])
        e(f"s_load_dwordx2 s[{b}:{b+1}], s[0:1], {off}")
        e(f"s_mov_b32 s{b+2}, {nbytes}")
        e(f"s_mov_b32 s{b+3}, 0x20000")

    def finish(self):
        e = self.e
        e.hook = None
        if self.opt.get("probe") and not self.in_helper:
            e.waitall()
            if self.opt["probe"] == "end": e("s_memrealtime s[92:93]\ns_waitcnt lgkmcnt(0)")
            e("s_sub_u32 s92, s92, s90\ns_lshl_b32 s92, s92, 2\ns_add_u32 s92, s92, 4000")
            if self.opt.get("only") is not None:
                e(f"s_cmp_eq_u32 s2, {self.opt['only']}\ns_cselect_b32 s92, s92, 0")
            e.label("L_pad")
            e("s_memrealtime s[94:95]\ns_waitcnt lgkmcnt(0)\ns_sub_u32 s94, s94, s90\ns_cmp_lt_u32 s94, s92\ns_cbranch_scc1 L_pad")
        if self.diag:
            e.waitall()
            e("s_memrealtime s[62:63]")
            e(f"s_lshl_b32 {sT[0]}, s2, 2")
            e(f"s_add_u32 {sT[0]}, {sT[0]}, {sW}")
            e(f"s_lshl_b32 {sT[0]}, {sT[0]}, 7")
            e(f"s_add_u32 {sT[0]}, {sT[0]}, {WS_STAMP}")
            e(f"v_mov_b32 v1, {sT[0]}")
            e("s_waitcnt lgkmcnt(0)")
            for k, r in enumerate([44] + [STAMP0 + 2*i for i in range(6)] + [62, 3]):
                e(f"v_mov_b32 v2, s{r}")
                e(f"buffer_store_dword v2, v1, {SRD_WS}, 0 offen offset:{4*k}")
        e("s_endpgm")

    def tagcheck(self, quads):
        e = self.e
        for n, q in enumerate(quads):
            dst = "vcc" if n == 0 else sC[(n - 1) % 4]
            e(f"v_cmp_ne_u64 {dst}, {TAG}, {v(q+2,2)}")
            if n >= 2: e(f"s_or_b64 vcc, vcc, {sC[(n-2)%4]}")
        if len(quads) > 1: e(f"s_or_b64 vcc, vcc, {sC[(len(quads)-2)%4]}")

    def sentcheck(self, regs, tmp, acc=False):
        e = self.e
        if acc:
            for n, r in enumerate(regs): e(f"v_accvgpr_read_b32 {v(tmp+n)}, {a_(r)}")
            regs = [tmp + n for n in range(len(regs))]
        cur = regs[0]; rest = regs[1:]
        while rest:
            if len(rest) >= 2:
                e(f"v_max3_u32 {v(tmp)}, {v(cur)}, {v(rest[0])}, {v(rest[1])}"); rest = rest[2:]
            else:
                e(f"v_max_u32 {v(tmp)}, {v(cur)}, {v(rest[0])}"); rest = rest[1:]
            cur = tmp
        e(f"v_cmp_eq_u32 vcc, -1, {v(cur)}")

    def poll(self, loads, check, nap=1):
        e = self.e
        top, out = e.newlabel("poll"), e.newlabel("pollend")
        e(f"s_mov_b32 {sSPIN}, {SPIN}")
        e.label(top)
        loads()
        e.waitall(lg=False)
        check()
        e(f"s_cbranch_vccz {out}")
        if nap: e(f"s_sleep {nap}")
        e(f"s_sub_u32 {sSPIN}, {sSPIN}, 1")
        e(f"s_cbranch_scc0 {top}")
        e.label(out)

    def checked(self, loads, check, cnt=None):
        e = self.e
        stub, back = e.newlabel("retry"), e.newlabel("back")
        with e.atomic():
            check()
            e(f"s_cbranch_vccnz {stub}")
            e.label(back)
        def emit_stub():
            e.forget()
            e.label(stub)
            e("s_nop 7")
            if self.diag and cnt is not None: e(f"s_bitset1_b32 s3, {cnt}")
            self.poll(loads, check)
            e(f"s_branch {back}")
        self.tail.append(emit_stub)

    def bfround(self, r):
        e = self.e
        e(f"v_cvt_pk_bf16_f32 {v(r)}, {v(r)}, {v(r)}")
        e(f"v_lshlrev_b32 {v(r)}, 16, {v(r)}")

    def stats_finish(self, rs, rq, neg):
        e = self.e
        e(f"v_mul_f32 {v(rs)}, 0x3b124925, {v(rs)}")
        e(f"v_mul_f32 {v(rq)}, 0x3b124925, {v(rq)}")
        e(f"v_fma_f32 {v(rq)}, -{v(rs)}, {v(rs)}, {v(rq)}")
        e(f"v_max_f32 {v(rq)}, 0, {v(rq)}")
        self.bfround(rq)
        e(f"v_add_f32 {v(rq)}, 0x3727c5ac, {v(rq)}")
        self.bfround(rq)
        e(f"v_sqrt_f32 {v(rq)}, {v(rq)}")
        e(f"v_cvt_pk_bf16_f32 {v(rs)}, {'-' if neg else ''}{v(rs)}, {v(rq)}")

    def ln1_loads(self, va, dst):
        e = self.e
        e(f"v_lshrrev_b32 {v(va)}, 5, v0")
        e(f"s_lshl_b32 {sT[0]}, s2, 3")
        e(f"v_add_u32 {v(va)}, {sT[0]}, {v(va)}")
        e(f"v_mul_u32_u24 {v(va)}, 896, {v(va)}")
        e(f"v_and_b32 {v(dst)}, 31, v0")
        e(f"v_lshl_add_u32 {v(va)}, {v(dst)}, 4, {v(va)}")
        e(f"v_cmp_gt_u32 vcc, 28, {v(dst)}")
        e(f"v_mov_b32 {v(dst)}, {BIG}")
        e(f"v_cndmask_b32 {v(va)}, {v(dst)}, {v(va)}, vcc")
        e.op(f"buffer_load_dwordx4 {v(dst,4)}, {v(va)}, {SRD_X}, 0 offen")
        return e.op(f"buffer_load_dwordx4 {v(dst+4,4)}, {v(va)}, {SRD_X}, 0 offen offset:448")

    def ln1_stats(self, src, g, before_store):
        e = self.e
        s_, q_ = g, g + 1
        e(f"s_mov_b32 {sT[1]}, 0x3f803f80")
        e(f"v_mov_b32 {v(s_)}, 0")
        e(f"v_mov_b32 {v(q_)}, 0")
        for i in range(8):
            e(f"v_dot2c_f32_bf16 {v(s_)}, {sT[1]}, {v(src+i)}")
            e(f"v_dot2c_f32_bf16 {v(q_)}, {v(src+i)}, {v(src+i)}")
        for ctl in ("quad_perm:[1,0,3,2]", "quad_perm:[2,3,0,1]", "row_half_mirror", "row_mirror"):
            e(f"v_add_f32_dpp {v(s_)}, {v(s_)}, {v(s_)} {ctl} row_mask:0xf bank_mask:0xf")
            e(f"v_add_f32_dpp {v(q_)}, {v(q_)}, {v(q_)} {ctl} row_mask:0xf bank_mask:0xf")
        e(f"v_mov_b32 {v(src)}, {v(s_)}")
        e(f"v_mov_b32 {v(src+1)}, {v(q_)}")
        e(f"v_permlane16_swap_b32 {v(s_)}, {v(src)}")
        e(f"v_permlane16_swap_b32 {v(q_)}, {v(src+1)}")
        e(f"v_add_f32 {v(s_)}, {v(s_)}, {v(src)}")
        e(f"v_add_f32 {v(q_)}, {v(q_)}, {v(src+1)}")
        self.stats_finish(s_, q_, False)
        e(f"v_mov_b32 {v(q_)}, {v(s_)}")
        e(f"s_lshl_b32 {sT[0]}, s2, 2")
        e(f"s_add_u32 {sT[0]}, {sT[0]}, {sW}")
        e(f"s_lshl_b32 {sT[0]}, {sT[0]}, 4")
        e(f"s_add_u32 {sT[0]}, {sT[0]}, {WS_ST1}")
        e(f"v_permlane32_swap_b32 {v(s_)}, {v(q_)}")
        e(f"v_and_b32 {v(src)}, 63, v0")
        e(f"v_lshlrev_b32 {v(src)}, 25, {v(src)}")
        before_store()
        e(f"buffer_store_dwordx4 {v(g,4)}, {v(src)}, {SRD_WS}, {sT[0]} offen sc1")

    def tr_addr(self, dst, tmp, hmul):
        e = self.e
        e(f"v_bfe_u32 {v(dst)}, v0, 2, 2")
        e(f"v_bfe_u32 {v(tmp)}, v0, 5, 1")
        e(f"v_mad_u32_u24 {v(dst)}, {v(tmp)}, {hmul}, {v(dst)}")
        e(f"v_lshlrev_b32 {v(dst)}, 6, {v(dst)}")
        e(f"v_bfe_u32 {v(tmp)}, v0, 4, 1")
        e(f"v_lshl_add_u32 {v(dst)}, {v(tmp)}, 5, {v(dst)}")
        e(f"v_and_b32 {v(tmp)}, 3, v0")
        e(f"v_lshl_add_u32 {v(dst)}, {v(tmp)}, 3, {v(dst)}")

    def unit_addr(self, dst, tmp, rowbytes):
        e = self.e
        e(f"v_bfe_u32 {v(dst)}, v0, 2, 3")
        e(f"v_mul_u32_u24 {v(dst)}, {rowbytes}, {v(dst)}")
        e(f"v_bfe_u32 {v(tmp)}, v0, 5, 1")
        e(f"v_lshl_add_u32 {v(dst)}, {v(tmp)}, 6, {v(dst)}")
        e(f"v_and_b32 {v(tmp)}, 3, v0")
        e(f"v_lshl_add_u32 {v(dst)}, {v(tmp)}, 4, {v(dst)}")

    def load_tag(self):
        e = self.e
        e(f"s_load_dwordx2 {TAG}, s[16:17], {WS_EPOCH}")

    def make_tag(self):
        e = self.e
        e("s_add_u32 s46, s46, 0x7f4a7c15")
        e("s_addc_u32 s47, s47, 0x9e3779b9")

    def build(self):
        e = self.e
        e("s_cmp_ge_u32 s2, 256")
        e("s_cbranch_scc1 L_exit")
        if self.opt.get("probe"): e("s_memrealtime s[90:91]")
        self.srd(SRD_X, 0, 1835008)
        self.srd(SRD_WS, 112, WS_SIZE)
        e("s_getpc_b64 s[44:45]")
        e(f"s_bfe_u32 {sT[0]}, s2, 0x30003")
        e(f"s_lshl_b32 {sT[0]}, {sT[0]}, 12")
        e(f"v_lshl_add_u32 v1, v0, 4, {sT[0]}")
        e("v_min_u32 v1, L_end - L_pc - 4, v1")
        e.label("L_pc")
        e.op("global_load_dword v1, v1, s[44:45]")
        e(f"s_and_b32 {sX}, s2, 7")
        e(f"s_lshr_b32 {sT[0]}, s2, 3")
        e(f"s_mul_i32 {sJQ}, {sT[0]}, 37")
        e(f"s_lshr_b32 {sJQ}, {sJQ}, 8")
        e(f"s_mul_i32 {sJR}, {sJQ}, 7")
        e(f"s_sub_u32 {sJR}, {sT[0]}, {sJR}")
        e("v_lshrrev_b32 v2, 6, v0")
        e(f"s_mov_b32 {sMASK}, 0xffff0000")
        e(f"v_readfirstlane_b32 {sW}, v2")
        if self.diag:
            for k in range(12): e(f"s_mov_b32 s{STAMP0+k}, 0")
            e("s_mov_b32 s3, 0")
        e(f"s_cmp_ge_u32 {sT[0]}, 28")
        e("s_cbranch_scc1 L_helper")
        vm0 = list(e.vm)
        self.main()
        e.forget(); e.vm = list(vm0)
        for t in vm0: t.done = False
        e.label("L_helper")
        self.in_helper = True
        self.helper()
        for t in self.tail: t()
        e.label("L_exit")
        e("s_endpgm")
        e.label("L_end")
        return e.text()

    def main(self):
        e = self.e
        o = self.opt.get
        def unpack(dst, src, hi):
            return f"v_and_b32 {v(dst)}, {sMASK}, {v(src)}" if hi else f"v_lshlrev_b32 {v(dst)}, 16, {v(src)}"
        self.srd(SRD_K, 8, 1835008)
        self.srd(SRD_V, 16, 1835008)
        self.srd(SRD_SH, 24, 3584)
        self.srd(SRD_SSM, 32, 1835008)
        e("s_load_dwordx2 s[88:89], s[0:1], 40")
        self.srd(SRD_WG, 56, 1605632)
        self.srd(SRD_WU, 64, 1605632)
        self.srd(SRD_WD, 72, 1605632)
        self.srd(SRD_OUT, 96, 1835008)
        e(f"s_lshl_b32 {sI}, {sX}, 2")
        e(f"s_add_u32 {sI}, {sI}, {sJQ}")
        e(f"s_lshl_b32 {sD0}, {sJR}, 5")
        e(f"s_add_u32 {sD0}, {sD0}, {sI}")
        e(f"s_lshl_b32 {sD0}, {sD0}, 1")
        e(f"s_mul_i32 {sT[0]}, {sI}, 57344")
        e(f"s_lshl_b32 {sT[1]}, {sJR}, 7")
        e(f"s_add_u32 {sT[0]}, {sT[0]}, {sT[1]}")
        vKo, vKh, vXo, vSh, vLn, vSs, vSp, vGs, vBx, vBk, vTw, vP1, vP2, vTo = range(232, 246)
        e(f"v_lshrrev_b32 {v(vKo)}, 4, v0")
        e(f"v_and_b32 {v(vSh)}, 15, v0")
        e(f"v_mul_u32_u24 {v(vKo)}, 3584, {v(vKo)}")
        e(f"v_lshl_add_u32 v2, {v(vSh)}, 3, {sT[0]}")
        e(f"v_add_u32 {v(vKo)}, {v(vKo)}, v2")
        e(f"v_subrev_u32 {v(vKh)}, 2688, {v(vKo)}")
        e(f"s_lshl_b32 {sT[1]}, {sJR}, 9")
        e(f"v_lshl_add_u32 {v(vSh)}, {v(vSh)}, 5, {sT[1]}")
        e(f"s_and_b32 {sT[1]}, {sW}, 1")
        e(f"s_lshr_b32 {sT[2]}, {sW}, 1")
        e(f"s_mul_i32 {sT[1]}, {sT[1]}, 3584")
        e(f"s_mul_i32 {sT[2]}, {sT[2]}, 28672")
        e(f"s_add_u32 {sT[1]}, {sT[1]}, {sT[2]}")
        e(f"v_bfe_u32 {v(vXo)}, v0, 4, 2")
        e(f"v_mul_u32_u24 {v(vXo)}, 7168, {v(vXo)}")
        e(f"v_add3_u32 {v(vXo)}, {v(vXo)}, v2, {sT[1]}")
        e(f"s_lshl_b32 {sT[1]}, {sD0}, 12")
        e(f"v_lshl_add_u32 {v(vSs)}, v0, 5, {sT[1]}")
        e("v_and_b32 v3, 127, v0")
        e("v_cmp_ne_u32 vcc, 0, v3")
        e(f"v_subrev_u32 {v(vSp)}, 4, {v(vSs)}")
        e(f"v_mov_b32 v2, {BIG}")
        e(f"v_cndmask_b32 {v(vSp)}, v2, {v(vSp)}, vcc")
        e("s_waitcnt lgkmcnt(0)")
        self.stamp("start")
        K, V_, SH, X, SS, LR = 32, 46, 56, 64, 72, 84
        for r in range(3): e.op(f"buffer_load_dwordx2 {v(K+2*r,2)}, {v(vKh)}, {SRD_K}, 0 offen offset:{896*r}")
        for r in range(4): e.op(f"buffer_load_dwordx2 {v(K+6+2*r,2)}, {v(vKo)}, {SRD_K}, 0 offen offset:{896*r}")
        e.op(f"buffer_load_dwordx4 {v(SH,4)}, {v(vSh)}, {SRD_SH}, 0 offen")
        tK = e.op(f"buffer_load_dwordx4 {v(SH+4,4)}, {v(vSh)}, {SRD_SH}, 0 offen offset:16")
        for r in range(4): tV = e.op(f"buffer_load_dwordx2 {v(V_+2*r,2)}, {v(vKo)}, {SRD_V}, 0 offen offset:{896*r}")
        self.load_tag()
        e(f"s_lshl_b32 {sT[1]}, {sD0}, 1")
        e(f"s_load_dword {sDV}, s[88:89], {sT[1]}")
        self.stamp("ldiss")
        e("v_and_b32 v24, 63, v0")
        e("v_lshlrev_b32 v24, 4, v24")
        e(f"s_lshl_b32 {sT[1]}, {sW}, 12")
        e(f"v_add_u32 v9, {sT[1]}, v24")
        for i in range(4): e(f"v_mov_b32 v{12+i}, -1")
        e("v_bfe_u32 v2, v0, 2, 4")
        e("v_and_b32 v3, 3, v0")
        e(f"v_lshlrev_b32 {v(vGs)}, 15, v2")
        e(f"v_lshl_add_u32 {v(vGs)}, v3, 4, {v(vGs)}")
        e("v_mul_u32_u24 v10, 3584, v2")
        e("v_lshl_add_u32 v10, v3, 4, v10")
        e(f"v_mul_u32_u24 {v(vP1)}, 4256, v3")
        e("v_min_u32 v4, 4, v2")
        e(f"v_lshl_add_u32 {v(vP1)}, v4, 4, {v(vP1)}")
        e(f"v_add_u32 {v(vP1)}, {L_TK}, {v(vP1)}")
        e("v_lshlrev_b32 v2, 2, v2")
        e(f"v_lshl_add_u32 {v(vBx)}, v3, 6, v2")
        e(f"v_xor_b32 {v(vBk)}, 0xc0, {v(vBx)}")
        e(f"s_lshl_b32 {sT[0]}, {sJR}, 19")
        e(f"s_lshl_b32 {sT[1]}, {sI}, 8")
        e(f"s_lshl_b32 {sT[2]}, {sW}, 6")
        e(f"s_add_u32 {sT[1]}, {sT[1]}, {sT[2]}")
        e(f"s_sub_u32 {sT[4]}, {sT[0]}, {sT[1]}")
        e(f"s_add_u32 {sT[4]}, {sT[4]}, {WS_KVG + 508*16}")
        e(f"s_lshr_b32 {sT[1]}, {sI}, 2")
        e(f"s_lshl_b32 {sT[1]}, {sT[1]}, 10")
        e(f"s_and_b32 {sT[2]}, {sI}, 3")
        e(f"s_lshl_b32 {sT[2]}, {sT[2]}, 6")
        e(f"s_lshl_b32 {sT[3]}, {sW}, 8")
        e(f"s_add_u32 {sT[1]}, {sT[1]}, {sT[2]}")
        e(f"s_add_u32 {sT[1]}, {sT[1]}, {sT[3]}")
        e(f"s_add_u32 {sT[8]}, {sT[0]}, {sT[1]}")
        e(f"s_add_u32 {sT[8]}, {sT[8]}, {WS_XG}")
        for c in range(1, 4):
            e(f"s_add_u32 {sT[4+c]}, {sT[4]}, {8192*c}")
            e(f"s_add_u32 {sT[8+c]}, {sT[8]}, {8192*c}")
        e(f"s_lshr_b32 {sRB}, {sX}, 1")
        e(f"s_lshl_b32 {sRB}, {sRB}, 2")
        e(f"s_add_u32 {sRB}, {sRB}, {sJQ}")
        e(f"s_and_b32 {sFS}, {sX}, 1")
        e(f"s_mul_i32 {sFS}, {sFS}, 7")
        e(f"s_add_u32 {sFS}, {sFS}, {sJR}")
        e(f"s_lshl_b32 {sT[0]}, {sFS}, 8")
        e(f"s_lshl_b32 {sT[1]}, {sW}, 6")
        e(f"s_add_u32 {sT[0]}, {sT[0]}, {sT[1]}")
        e(f"v_add_u32 v10, {sT[0]}, v10")
        self.unit_addr(19, 2, 896)
        e(f"s_mul_i32 {sT[0]}, {sW}, {448*896}")
        e(f"s_lshl_b32 {sT[1]}, {sJR}, 7")
        e(f"s_add_u32 {sT[0]}, {sT[0]}, {sT[1]}")
        e(f"v_add_u32 v19, {sT[0]}, v19")
        e(f"s_mul_i32 {sLO}, {sW}, 14336")
        e(f"s_mul_i32 {sEXT}, {sW}, 10240")
        e(f"s_add_u32 {sEXT}, {sEXT}, {L_EXT}")
        for k in range(1, 4):
            e(f"s_mov_b32 {sKW[k]}, {56320*k}")
            e(f"s_mov_b32 {sKD[k]}, {6144*k}")
        self.tr_addr(11, 2, 8)
        e(f"v_add_u32 v16, {sLO}, v11")
        e(f"v_add_u32 v17, {L_HI}, v16")
        e("v_bfe_u32 v2, v0, 5, 1")
        e("v_lshlrev_b32 v2, 8, v2")
        e("v_sub_u32 v18, v16, v2")
        e("v_sub_u32 v20, v17, v2")
        e("v_sub_u32 v21, v11, v2")
        e(f"v_add_u32 v21, {sEXT}, v21")
        e(f"v_lshrrev_b32 {v(vTw)}, 7, v0")
        e(f"v_mul_u32_u24 {v(vTw)}, 8512, {v(vTw)}")
        e("v_and_b32 v2, 127, v0")
        e(f"v_lshl_add_u32 {v(vTw)}, v2, 5, {v(vTw)}")
        e(f"v_add_u32 {v(vTw)}, {L_TK + 80}, {v(vTw)}")
        e("v_and_b32 v3, 1, v0")
        e(f"v_mul_u32_u24 {v(vP2)}, 4608, v3")
        e("v_bfe_u32 v2, v0, 1, 5")
        e(f"v_lshl_add_u32 {v(vP2)}, v2, 4, {v(vP2)}")
        e(f"v_add_u32 {v(vP2)}, {L_UR + 4096}, {v(vP2)}")
        for i in range(4): e(f"v_mov_b32 v{92+i}, 0")
        e("v_and_b32 v8, 3, v0")
        e("v_and_b32 v2, v2, v3")
        e("v_add_u32 v8, v8, v2")
        e("v_mul_u32_u24 v8, 1792, v8")
        e("v_mul_u32_u24 v3, 4256, v3")
        e("v_and_b32 v2, 7, v0")
        e("v_or_b32 v2, 1, v2")
        e("v_bfe_u32 v4, v0, 3, 1")
        e("v_lshl_add_u32 v2, v4, 5, v2")
        e("v_bfe_u32 v27, v0, 4, 2")
        e("v_lshl_add_u32 v2, v27, 3, v2")
        e("v_lshlrev_b32 v2, 1, v2")
        e("v_sub_u32 v2, v2, v3")
        sHW, sCH = sT[3], sT[2]
        e(f"s_and_b32 {sHW}, {sW}, 1")
        e(f"s_lshr_b32 {sCH}, {sW}, 1")
        e(f"s_mul_i32 {sT[0]}, {sCH}, 8512")
        e(f"s_lshl_b32 {sT[1]}, {sHW}, 8")
        e(f"s_add_u32 {sT[0]}, {sT[0]}, {sT[1]}")
        e(f"s_add_u32 {sT[0]}, {sT[0]}, {L_TK + 4256 + 2}")
        e(f"v_add_u32 v2, {sT[0]}, v2")
        e(f"s_mul_i32 {sT[0]}, {sCH}, 512")
        e(f"s_add_u32 {sT[0]}, {sT[0]}, {L_UR}")
        e("v_lshrrev_b32 v30, 1, v9")
        e(f"v_add_u32 v3, {sT[0]}, v30")
        e(f"v_add_u32 v30, {L_ST}, v30")
        e("v_and_b32 v5, 3, v0")
        e("v_bfe_u32 v6, v0, 2, 2")
        e("v_lshlrev_b32 v4, 4, v5")
        e("v_lshl_add_u32 v5, v6, 3, v5")
        e("v_mul_u32_u24 v6, 57344, v6")
        e("v_add_u32 v4, v4, v6")
        e("v_bfe_u32 v6, v0, 4, 1")
        e("v_bfe_u32 v28, v0, 5, 1")
        e("v_lshl_add_u32 v7, v5, 1, v6")
        e("v_lshl_add_u32 v7, v28, 3, v7")
        e("v_mul_u32_u24 v6, 229376, v6")
        e("v_mul_u32_u24 v28, 28672, v28")
        e("v_add3_u32 v4, v4, v6, v28")
        e("v_sub_u32 v5, v27, v5")
        e(f"s_mul_i32 {sT[1]}, {sCH}, 4608")
        e(f"s_lshl_b32 {sT[0]}, {sHW}, 8")
        e(f"s_add_u32 {sT[0]}, {sT[0]}, {sT[1]}")
        e(f"s_add_u32 {sT[0]}, {sT[0]}, {L_UR + 2*(2008-1792)}")
        e(f"v_lshl_add_u32 v5, v5, 4, {sT[0]}")
        e(f"s_lshl_b32 {sT[0]}, {sHW}, 11")
        e(f"s_sub_u32 {sT[0]}, {sT[1]}, {sT[0]}")
        e(f"s_add_u32 {sT[0]}, {sT[0]}, {L_UR + 2*(2044-768)}")
        e("v_lshlrev_b32 v6, 3, v7")
        e(f"v_sub_u32 v6, {sT[0]}, v6")
        e(f"s_lshl_b32 {sT[0]}, {sHW}, 12")
        e(f"s_add_u32 {sT[0]}, {sT[0]}, {L_ST}")
        e(f"v_lshl_add_u32 v7, v7, 4, {sT[0]}")
        e(f"v_add_u32 v28, {L_TK}, v9")
        e("v_xor_b32 v29, 0x1000, v9")
        e(f"v_add_u32 v29, {L_TK}, v29")
        e("s_waitcnt lgkmcnt(0)")
        e(f"s_mul_i32 {sT[1]}, {sX}, 28")
        e(f"s_lshr_b32 {sT[0]}, s2, 3")
        e(f"s_add_u32 {sT[1]}, {sT[1]}, {sT[0]}")
        e(f"s_lshl_b32 s88, {sT[1]}, 14")
        e(f"s_add_u32 s88, s88, {WS_A1}")
        e(f"s_mul_i32 {sT[1]}, {sT[1]}, 7168")
        e(f"s_mul_i32 {sT[0]}, {sW}, 1792")
        e(f"s_add_u32 {sT[1]}, {sT[1]}, {sT[0]}")
        e(f"v_min_u32 {v(vTo)}, 208, v24")
        e(f"v_lshl_add_u32 {v(vTo)}, {v(vTo)}, 3, {sT[1]}")
        e(f"s_lshl_b32 {sT[0]}, {sCH}, 4")
        e(f"s_lshr_b32 {sDV}, {sDV}, {sT[0]}")
        e(f"s_lshl_b32 {sDV}, {sDV}, 16")
        e.op(f"ds_write_b128 {v(vP1)}, v[92:95]")
        e.op(f"ds_write_b128 {v(vP2)}, v[92:95]")
        self.make_tag()
        G, G2, GS = 128, 144, 160
        for q in list(range(G, G+32, 4)) + [GS]:
            e(f"v_mov_b32 {v(q+2)}, s46")
            e(f"v_mov_b32 {v(q+3)}, s47")
        for r in range(4): tX = e.op(f"buffer_load_dwordx2 {v(X+2*r,2)}, {v(vXo)}, {SRD_X}, 0 offen offset:{896*r}")
        tL = self.ln1_loads(vLn, LR)
        e.op(f"buffer_load_dwordx4 {v(SS,4)}, {v(vSs)}, {SRD_SSM}, 0 offen")
        e.op(f"buffer_load_dwordx4 {v(SS+4,4)}, {v(vSs)}, {SRD_SSM}, 0 offen offset:16")
        tS = e.op(f"buffer_load_dword {v(SS+8)}, {v(vSp)}, {SRD_SSM}, 0 offen")
        tk = {"ca": None}
        def clear_a(i): tk["ca"] = e.op(f"buffer_store_dwordx4 v[12:15], v9, {SRD_WS}, s88 offen offset:{1024*i} sc1")
        def touch(srd): e.op(f"buffer_load_dword v1, {v(vTo)}, {srd}, 0 offen")
        WF, KF, AC, VF, PK = 96, 176, 112, 208, 224
        self.stamp("issued")
        e.wait(tK)
        self.stamp("kin")
        work = []
        for c in range(4):
            for j in range(4): work.append(unpack(WF+4*j+c, SH+2*c+j//2, j & 1))
        for r in range(7):
            for c in range(4): work.append(unpack(KF+4*r+c, K+2*r+c//2, c & 1))
        for j in (3, 2, 1, 0):
            for r in range(4):
                for p in (0, 2):
                    d_, k_, w_ = v(AC+4*r+p, 2), v(KF+4*(r+3-j)+p, 2), v(WF+4*j+p, 2)
                    work.append(f"v_pk_mul_f32 {d_}, {k_}, {w_}" if j == 3 else f"v_pk_fma_f32 {d_}, {k_}, {w_}, {d_}")
        side = []
        if o("clr_early", 1) == 1: side += [lambda i=i: clear_a(i) for i in range(4)]
        weave([lambda t=t: e(t) for t in work], side)
        e.wait(tV)
        self.stamp("vin")
        for r in range(4):
            for c in range(4): e(unpack(VF+4*r+c, V_+2*r+c//2, c & 1))
        for r in range(4):
            for p in (0, 2):
                e(f"v_pk_mul_f32 {v(AC+4*r+p,2)}, {v(AC+4*r+p,2)}, {v(VF+4*r+p,2)}")
        tb = []
        for c in range(4):
            e(f"v_cvt_pk_bf16_f32 {v(PK+2*c)}, {v(AC+12+c)}, {v(AC+8+c)}")
            e(f"v_cvt_pk_bf16_f32 {v(PK+2*c+1)}, {v(AC+4+c)}, {v(AC+c)}")
            e.op(f"ds_bpermute_b32 {v(G+4*c)}, {v(vBk)}, {v(PK+2*c)}")
            tb.append(e.op(f"ds_bpermute_b32 {v(G+4*c+1)}, {v(vBk)}, {v(PK+2*c+1)}"))
        for c in range(4):
            e.wait(tb[c])
            e.op(f"buffer_store_dwordx4 {v(G+4*c,4)}, {v(vGs)}, {SRD_WS}, {sT[4+c]} offen sc1")
        self.stamp("kv")
        if o("clr_early", 1) == 0:
            for i in range(4): clear_a(i)
        if o("touch", 1):
            for srd in (SRD_WG, SRD_WU, SRD_WD): touch(srd)
        e(f"s_mov_b32 {sT[0]}, 0x05040100")
        e(f"s_mov_b32 {sT[1]}, 0x07060302")
        e.wait(tX)
        tb = []
        for c in range(4):
            e(f"v_perm_b32 {v(PK+2*c)}, {v(X+2+c//2)}, {v(X+c//2)}, {sT[c&1]}")
            e(f"v_perm_b32 {v(PK+2*c+1)}, {v(X+6+c//2)}, {v(X+4+c//2)}, {sT[c&1]}")
            e.op(f"ds_bpermute_b32 {v(G2+4*c)}, {v(vBx)}, {v(PK+2*c)}")
            tb.append(e.op(f"ds_bpermute_b32 {v(G2+4*c+1)}, {v(vBx)}, {v(PK+2*c+1)}"))
        e.wait(tS)
        CB = 96
        e(f"v_alignbit_b32 {v(CB)}, {v(SS)}, {v(SS+8)}, 16")
        for i in range(1, 8): e(f"v_alignbit_b32 {v(CB+i)}, {v(SS+i)}, {v(SS+i-1)}, 16")
        for c in range(4):
            e.wait(tb[c])
            if o("xst", 1): e.op(f"buffer_store_dwordx4 {v(G2+4*c,4)}, {v(vGs)}, {SRD_WS}, {sT[8+c]} offen sc1")
        e.op(f"ds_write_b128 {v(vTw)}, {v(SS,4)}")
        e.op(f"ds_write_b128 {v(vTw)}, {v(SS+4,4)} offset:16")
        e.op(f"ds_write_b128 {v(vTw)}, {v(CB,4)} offset:4256")
        e.op(f"ds_write_b128 {v(vTw)}, {v(CB+4,4)} offset:4272")
        self.stamp("xst")
        self.ln1_stats(LR, GS, lambda: (self.stamp("stc"), e.wait(tk["ca"]), self.stamp("clr")))
        if self.stop <= 1: return self.finish()
        sKVG, sXG, sHH, sMOD, sST1 = sP[0], sP[1], sP[2], sP[3], sP[4]
        e(f"s_lshl_b32 {sT[0]}, {sD0}, 13")
        e(f"s_add_u32 {sKVG}, {sT[0]}, {WS_KVG}")
        e(f"s_add_u32 {sXG}, {sT[0]}, {WS_XG}")
        e(f"s_mov_b32 {sST1}, {WS_ST1}")
        e(f"s_lshr_b32 {sMOD}, {sD0}, 2")
        e(f"s_lshl_b32 {sMOD}, {sMOD}, 4")
        e(f"s_add_u32 {sMOD}, {sMOD}, {WS_MOD}")
        e(f"s_lshl_b32 {sT[0]}, {sFS}, 2")
        e(f"s_add_u32 {sT[0]}, {sT[0]}, {sW}")
        e(f"s_lshl_b32 {sT[0]}, {sT[0]}, 11")
        e(f"s_mul_i32 {sHH}, {sRB}, {4*114688}")
        e(f"s_add_u32 {sHH}, {sHH}, {sT[0]}")
        e(f"s_add_u32 {sHH}, {sHH}, {WS_HH}")
        e(f"s_add_u32 {sT[0]}, {sCH}, {sD0}")
        e(f"s_lshl_b32 {sT[0]}, {sT[0]}, 6")
        e(f"s_mul_i32 {sT[1]}, {sHW}, {32*28672}")
        e(f"s_add_u32 {sT[0]}, {sT[0]}, {sT[1]}")
        e(f"s_add_u32 {sT[8]}, {sT[0]}, {WS_A1}")
        e(f"s_add_u32 {sT[9]}, {sT[0]}, {WS_A1 + 16*28672}")
        e(f"s_add_u32 {sT[10]}, {sT[0]}, {WS_X1}")
        e(f"s_add_u32 {sT[11]}, {sT[0]}, {WS_X1 + 16*28672}")
        e.waitall(vm=False)
        e("s_barrier")
        self.stamp("tkbar")
        ws = WStream(e)
        ws.pace, ws.lag = o("pace", 96), o("lag", 12)
        ws.limit, ws.rlimit = 56 + o("npre", 14), 56
        ws.seen = e.nvm
        KG = 32
        def kvloads():
            for i in range(4): t = e.op(f"buffer_load_dwordx4 {v(KG+4*i,4)}, v9, {SRD_WS}, {sKVG} offen offset:{1024*i} sc1")
            return t
        def treg(rl, p, off=0, n=4):
            return v(160 + (rl*8+p)*4 + off, n) if rl < 3 else a_(224 + p*4 + off, n)
        nread = 0
        for pp in range(4):
            for p in (2*pp, 2*pp+1):
                for rl in range(4):
                    if nread == o("kvat", 8): tkv = kvloads()
                    if nread >= o("kvat", 8) and nread % o("tgap", 3) == 0: ws.burst(1)
                    of = rl*16 + (p & 1)*128
                    e.op(f"ds_read2_b32 {treg(rl,p,0,2)}, v2 offset0:{of} offset1:{of+1}")
                    e.op(f"ds_read2_b32 {treg(rl,p,2,2)}, v2 offset0:{of+2} offset1:{of+3}")
                    nread += 1
            if pp < 3: e("v_add_u32 v2, 1024, v2")
        self.stamp("toep")
        e.wait(tkv)
        self.checked(kvloads, lambda: self.tagcheck([KG+4*i for i in range(4)]), 0)
        for i in range(4): e.op(f"ds_write_b64 v3, {v(KG+4*i,2)} offset:{512*i}")
        e.waitall(vm=False)
        e("s_barrier")
        self.stamp("kvin")

        BR, DA, NB = 64, 96, 6
        XQ, SQ, MQ, EE, GG, KVR, RS, MR = 128, 144, 88, 32, 48, 144, 152, 156
        cA, cB, cC, cD = 25, 26, 22, 23
        seq = [(rl, m) for rl in range(4) for m in range(8)]
        btok = {}
        def bread(n):
            rl, m = seq[n]
            btok[n] = e.op(f"ds_read_b128 {v(BR+4*(n%NB),4)}, v5 offset:{rl*64 + (7-m)*512}")
        mm = []
        for n, (rl, m) in enumerate(seq):
            for p in range(8 - m):
                def f(n=n, rl=rl, m=m, p=p):
                    if p == 0: e.wait(btok[n])
                    c_ = "0" if (rl == 0 and m == 0) else v(DA+4*(p+m), 4)
                    e(f"v_mfma_f32_16x16x32_bf16 {v(DA+4*(p+m),4)}, {treg(rl,p)}, {v(BR+4*(n%NB),4)}, {c_}")
                    if p == 0 and n + NB - 1 < 32: bread(n + NB - 1)
                mm.append(f)
        for n in range(NB - 1): bread(n)
        def sloads():
            for i in range(4): t = e.op(f"buffer_load_dwordx4 {v(SQ+4*i,4)}, v9, {SRD_WS}, {sST1} offen offset:{1024*i} sc1")
            return t
        def xloads():
            for i in range(4): e.op(f"buffer_load_dwordx4 {v(XQ+4*i,4)}, v9, {SRD_WS}, {sXG} offen offset:{1024*i} sc1")
            return e.op(f"buffer_load_dwordx4 {v(MQ,4)}, v8, {SRD_WS}, {sMOD} offen sc1")
        def clear_h(T):
            with e.atomic():
                e(f"s_add_u32 {sT[0]}, {sHH}, {114688*T}")
                e.op(f"buffer_store_dwordx4 v[12:15], v24, {SRD_WS}, {sT[0]} offen sc1")
                tk["ch"] = e.op(f"buffer_store_dwordx4 v[12:15], v24, {SRD_WS}, {sT[0]} offen offset:1024 sc1")
        tk["s"] = sloads()
        ws.arm(2)
        fill = []
        F_ = fill.append
        def I(txt): F_(lambda: e(txt))
        def f():
            e.wait(tk["s"])
            self.checked(sloads, lambda: self.tagcheck([SQ+4*i for i in range(4)]), 1)
        F_(f)
        for i in range(4):
            q = SQ + 4*i
            for r in range(2):
                I(f"v_and_b32 {v(q+2+r)}, {sMASK}, {v(q+r)}")
                I(f"v_rcp_f32 {v(q+2+r)}, {v(q+2+r)}")
                I(f"v_lshlrev_b32 {v(q+r)}, 16, {v(q+r)}")
                I(f"v_mul_f32 {v(q+r)}, -{v(q+r)}, {v(q+2+r)}")
            F_(lambda q=q, i=i: e.op(f"ds_write_b64 v30, {v(q+2,2)} offset:{512*i}"))
            def f(q=q, i=i): tk["w"] = e.op(f"ds_write_b64 v30, {v(q,2)} offset:{8192+512*i}")
            F_(f)
        def f():
            e.wait(tk["x"])
            self.checked(xloads, lambda: self.tagcheck([XQ+4*i for i in range(4)] + [MQ]), 2)
        F_(f)
        def f():
            e.wait(tk["w"])
            e("s_barrier")
        F_(f)
        def f():
            with e.atomic():
                e(f"s_bitcmp1_b32 {sD0}, 1")
                e("s_cselect_b64 vcc, -1, 0")
        F_(f)
        I(f"v_cndmask_b32 {v(MQ)}, {v(MQ)}, {v(MQ+1)}, vcc")
        I(f"s_lshl_b32 {sT[1]}, {sCH}, 4")
        I(f"v_lshrrev_b32 {v(MQ)}, {sT[1]}, {v(MQ)}")
        I(f"v_lshlrev_b32 {v(MQ)}, 16, {v(MQ)}")
        I(f"v_add_f32 {v(MQ+1)}, 1.0, {v(MQ)}")
        F_(lambda: self.bfround(MQ+1))
        I(f"v_mov_b32_dpp {v(cB)}, {v(MQ)} quad_perm:[0,0,0,0] row_mask:0xf bank_mask:0xf")
        I(f"v_mov_b32_dpp {v(cD)}, {v(MQ)} quad_perm:[2,2,2,2] row_mask:0xf bank_mask:0xf")
        I(f"v_mov_b32_dpp {v(cA)}, {v(MQ+1)} quad_perm:[1,1,1,1] row_mask:0xf bank_mask:0xf")
        I(f"v_mov_b32_dpp {v(cC)}, {v(MQ+1)} quad_perm:[3,3,3,3] row_mask:0xf bank_mask:0xf")
        I(f"v_mul_f32 {v(cA)}, {v(cA)}, {v(cD)}")
        I(f"v_mul_f32 {v(cB)}, {v(cB)}, {v(cD)}")
        for t in range(4):
            def f(t=t):
                e.op(f"ds_read_b64 {v(KVR+2*t,2)}, v6 offset:{512*(3-t)}")
                e.op(f"ds_read_b128 {v(RS,4)}, v7 offset:{1024*t}")
                tk["r"] = e.op(f"ds_read_b128 {v(MR,4)}, v7 offset:{8192+1024*t}")
            F_(f)
            for r in range(4): I(unpack(EE+4*t+r, XQ+4*t+r//2, r & 1))
            F_(lambda: e.wait(tk["r"]))
            for r in range(4):
                g_, x_ = v(GG+4*t+r), v(EE+4*t+r)
                I(f"v_fma_f32 {g_}, {x_}, {v(RS+r)}, {v(MR+r)}")
                I(unpack(RS+r, KVR+2*t+1-r//2, not (r & 1)))
                I(f"v_fma_f32 {g_}, {g_}, {v(cA)}, {v(cB)}")
                I(f"v_mul_f32 {v(RS+r)}, {sDV}, {v(RS+r)}")
                I(f"v_fmac_f32 {x_}, {g_}, {v(RS+r)}")
        c0 = o("cv0", 56)
        def f(): tk["x"] = xloads()
        weave(mm[:c0], [lambda: clear_h(0), f, lambda: clear_h(1)], 4, c0 - 20)
        weave(mm[c0:], fill)
        e.hook = None
        self.stamp("conv")
        Y = 64
        e.wait(tk["ch"])
        e(f"s_cmp_eq_u32 {sHW}, 0")
        e("s_cbranch_scc0 L_red1")
        save = (list(e.vm), list(e.lg))
        for hw in (0, 1):
            if hw:
                e.label("L_red1"); e("s_nop 7")
                e.vm, e.lg = list(save[0]), list(save[1])
            keep, send = DA + 16*hw, DA + 16*(1-hw)
            for t in range(4): e.op(f"ds_write_b128 v28, {v(send+4*t,4)} offset:{1024*t}")
            e.waitall(vm=False)
            e("s_barrier")
            rt = [e.op(f"ds_read_b128 {v(Y+4*t,4)}, v29 offset:{1024*t}") for t in range(4)]
            for t in range(4):
                e.wait(rt[t])
                for p in (0, 2): e(f"v_pk_add_f32 {v(Y+4*t+p,2)}, {v(Y+4*t+p,2)}, {v(keep+4*t+p,2)}")
            if not hw: e("s_branch L_red2")
        e.label("L_red2")
        PX, PA = 80, 88
        def pubq(q, so):
            e(f"v_permlane16_swap_b32 {v(q)}, {v(q+2)}")
            e(f"v_permlane16_swap_b32 {v(q+1)}, {v(q+3)}")
            e(f"v_min_u32 {v(q)}, -2, {v(q)}")
            e.op(f"buffer_store_dwordx4 {v(q,4)}, v4, {SRD_WS}, {so} offen sc1")
        for pi in range(2):
            for t in (2*pi, 2*pi+1):
                for p in (0, 2):
                    y_ = v(Y+4*t+p, 2)
                    e(f"v_pk_fma_f32 {y_}, {v(GG+4*t+p,2)}, {y_}, {v(EE+4*t+p,2)}")
                    e(f"v_pk_mul_f32 {v(GG+4*t+p,2)}, {y_}, {v(cC,2)} op_sel_hi:[1,0]")
                    e(f"v_cvt_pk_bf16_f32 {v(PA+2*t+p//2)}, {v(GG+4*t+p)}, {v(GG+4*t+p+1)}")
                    e(f"v_cvt_pk_bf16_f32 {v(PX+2*t+p//2)}, {v(Y+4*t+p)}, {v(Y+4*t+p+1)}")
            pubq(PA+4*pi, sT[8+pi])
            pubq(PX+4*pi, sT[10+pi])
        self.stamp("a1st")
        if self.stop <= 2: return self.finish()

        VQ = 32
        e("v_min_u32 v2, 223, v0")
        e("v_lshlrev_b32 v3, 4, v2")
        e(f"s_mov_b32 {sT[8]}, {WS_MOD + 336*16}")
        def vloads(): return e.op(f"buffer_load_dwordx4 {v(VQ,4)}, v3, {SRD_WS}, {sT[8]} offen sc1")
        tv = vloads()
        ws.rlimit = 56 + 32
        ws.flush(56)
        self.stamp("wu")
        ws.banned = {"lo"}
        with e.atomic():
            while any(p[1] == "lo" for p in ws.pend): ws.read()
        sA1, sST2, sHS, sMT, sOUT = sP[0], sP[1], sP[3], sP[4], sP[5]
        e(f"s_mul_i32 {sT[0]}, {sW}, 7168")
        e(f"v_add_u32 v26, {sT[0]}, v24")
        e("v_add_u32 v25, 4096, v26")
        e(f"s_mul_i32 {sA1}, {sRB}, {4*28672}")
        e(f"s_add_u32 {sA1}, {sA1}, {WS_A1}")
        e("v_cmp_le_u32 vcc, 112, v2")
        e("v_cndmask_b32 v5, 0, 1.0, vcc")
        e("v_lshlrev_b32 v2, 3, v2")
        e(f"v_add_u32 v2, {L_VEC}, v2")
        e.wait(tv)
        self.checked(vloads, lambda: self.tagcheck([VQ]), 3)
        for r in range(4):
            e(unpack(VQ+4+r, VQ+r//2, r & 1))
            e(f"v_add_f32 {v(VQ+4+r)}, v5, {v(VQ+4+r)}")
        e(f"v_cvt_pk_bf16_f32 {v(VQ)}, {v(VQ+4)}, {v(VQ+5)}")
        e(f"v_cvt_pk_bf16_f32 {v(VQ+1)}, {v(VQ+6)}, {v(VQ+7)}")
        e.op(f"ds_write_b64 v2, {v(VQ,2)}")
        e("v_and_b32 v2, 1, v0")
        e("v_mul_u32_u24 v2, 896, v2")
        e("v_bfe_u32 v3, v0, 5, 1")
        e("v_lshlrev_b32 v3, 4, v3")
        e("v_sub_u32 v2, v3, v2")
        e(f"v_add_u32 v2, {L_VEC + 896}, v2")
        e.waitall(vm=False)
        e("s_barrier")
        self.stamp("vec")
        ws.free += [("ext", i, None) for i in range(10)]
        ws.limit = 112
        BR, ACC, XA, SG, PH = 32, [64, 96], 56, 60, 48
        AS = [128, 96, 128, 128]
        def aloads(T):
            with e.atomic():
                e(f"s_add_u32 {sT[0]}, {sA1}, {28672*T}")
                for i in range(7):
                    t = e.op(f"buffer_load_dwordx4 {v(AS[T]+4*i,4)}, {'v26' if i < 4 else 'v25'}, {SRD_WS}, {sT[0]} offen offset:{1024*(i&3)} sc1")
            return t
        def aload1(T, i):
            with e.atomic():
                if i == 0: e(f"s_add_u32 {sT[5]}, {sA1}, {28672*T}")
                tk["a", T] = e.op(f"buffer_load_dwordx4 {v(AS[T]+4*i,4)}, {'v26' if i < 4 else 'v25'}, {SRD_WS}, {sT[5]} offen offset:{1024*(i&3)} sc1")
        def acheck(T):
            e.wait(tk["a", T])
            self.checked(lambda: aloads(T), lambda: self.sentcheck([AS[T]+4*i for i in range(7)], 27), 4 + T)
        def awrite(T, i):
            tk["aw"] = e.op(f"ds_write_b128 v26, {v(AS[T]+4*i,4)} offset:{28672*(T&1) + 1024*i}")
        vt = {}
        def vread(ks): vt[ks] = e.op(f"ds_read_b128 {v(BR+4*(ks%4),4)}, v2 offset:{32*ks}")
        for ks in range(3): vread(ks)
        mm = []
        for ks in range(28):
            for m in range(2):
                def f(ks=ks, m=m):
                    if m == 0: e.wait(vt[ks])
                    c_ = "0" if ks == 0 else v(ACC[0]+16*m, 16)
                    e(f"v_mfma_f32_32x32x16_bf16 {v(ACC[0]+16*m,16)}, {v(BR+4*(ks%4),4)}, {a_(112*m+4*ks,4)}, {c_}")
                    if m == 0 and ks + 3 < 28: vread(ks + 3)
                mm.append(f)
        fill = []
        F_ = fill.append
        I("v_and_b32 v30, 31, v0")
        I("v_lshlrev_b32 v30, 4, v30")
        I(f"s_lshl_b32 {sST2}, {sRB}, 11")
        I(f"s_add_u32 {sST2}, {sST2}, {WS_ST2}")
        I(f"s_and_b32 {sT[1]}, {sX}, 1")
        I(f"s_lshl_b32 {sMT}, {sRB}, 2")
        I(f"s_add_u32 {sMT}, {sMT}, {sT[1]}")
        I(f"s_mul_i32 {sHS}, {sMT}, 114688")
        I(f"s_mul_i32 {sT[1]}, {sW}, 28672")
        I(f"s_add_u32 {sHS}, {sHS}, {sT[1]}")
        I(f"s_add_u32 {sHS}, {sHS}, {WS_HH}")
        I("v_and_b32 v5, 7, v0")
        I("v_lshlrev_b32 v3, 5, v5")
        I("v_lshrrev_b32 v6, 3, v0")
        I("v_lshlrev_b32 v7, 4, v6")
        I("v_and_b32 v8, 31, v0")
        I("v_mul_u32_u24 v8, 272, v8")
        I("v_bfe_u32 v16, v0, 5, 1")
        I(f"s_mul_i32 {sT[1]}, {sW}, 8704")
        I(f"v_lshl_add_u32 v16, v16, 4, {sT[1]}")
        I("v_add_u32 v8, v8, v16")
        I("v_mul_u32_u24 v16, 272, v6")
        I("v_add_u32 v16, v16, v3")
        I("v_lshlrev_b32 v17, 9, v5")
        I("v_lshl_add_u32 v17, v6, 1, v17")
        I(f"v_add_u32 v17, {L_X1}, v17")
        I("v_mul_u32_u24 v18, 896, v6")
        I("v_lshl_add_u32 v18, v5, 4, v18")
        I(f"s_mul_i32 {sOUT}, {sMT}, 28672")
        I(f"s_lshl_b32 {sT[1]}, {sJR}, 7")
        I(f"s_add_u32 {sOUT}, {sOUT}, {sT[1]}")
        a0 = o("a0at", 0)
        ws.arm()
        weave(mm[:a0], [])
        tk["a", 0] = aloads(0)
        weave(mm[a0:], fill)
        e.hook = None
        self.stamp("ut")
        acheck(0)
        tk["a", 1] = aloads(1)
        for i in range(7): awrite(0, i)
        e("v_bfe_u32 v2, v0, 5, 1")
        e("v_cmp_eq_u32 vcc, 0, v2")
        for m in range(2):
            u_, t_ = ACC[0] + 16*m, ACC[0] + 16*m + 1
            e(f"v_cvt_pk_bf16_f32 {v(XA+2*m)}, {v(u_)}, {v(t_)}")
            e(f"v_lshlrev_b32 v2, 16, {v(XA+2*m)}")
            e(f"v_and_b32 v5, {sMASK}, {v(XA+2*m)}")
            e(f"v_sub_f32 v2, {v(u_)}, v2")
            e(f"v_sub_f32 v5, {v(t_)}, v5")
            e(f"v_cvt_pk_bf16_f32 {v(XA+2*m+1)}, v2, v5")
            e(f"v_cndmask_b32 {v(XA+2*m)}, 0, {v(XA+2*m)}, vcc")
            e(f"v_cndmask_b32 {v(XA+2*m+1)}, 0, {v(XA+2*m+1)}, vcc")
        e.waitall(vm=False)
        e("s_barrier")
        self.stamp("g1go")

        bt = {}
        def bread1(n):
            T, ks = divmod(n, 28)
            off = 28672*(T & 1) + 1024*ks
            e.op(f"ds_read_b64_tr_b16 {v(BR+4*(n%4),2)}, v11 offset:{off}")
            bt[n] = e.op(f"ds_read_b64_tr_b16 {v(BR+4*(n%4)+2,2)}, v11 offset:{off + 256}")
        def sgload(T):
            return e.op(f"buffer_load_dwordx4 {v(SG,4)}, v30, {SRD_WS}, {sST2} offen offset:{512*T} sc1")
        def sgissue(T): tk["sg"] = sgload(T)
        def finish_ops(T):
            ops = []
            A = ACC[T & 1]
            def f():
                e.wait(tk["sg"])
                self.checked(lambda: sgload(T), lambda: self.tagcheck([SG]), 8 + T)
                for m in range(2):
                    e(f"v_mfma_f32_32x32x8_bf16 {v(A+16*m,16)}, {v(XA+2*m,2)}, {v(SG,2)}, {v(A+16*m,16)}")
            ops.append(f)
            ops += [lambda: None] * 8
            for r in range(16):
                ops.append(lambda r=r: e(f"v_max_f32 {v(A+r)}, 0, {v(A+r)}"))
                ops.append(lambda r=r: e(f"v_mul_f32 {v(A+r)}, {v(A+r)}, {v(A+16+r)}"))
                if r & 1: ops.append(lambda r=r: e(f"v_cvt_pk_bf16_f32 {v(PH+r//2)}, {v(A+r-1)}, {v(A+r)}"))
                if r % 8 == 7:
                    def g(ph=r//8):
                        e(f"v_min_u32 {v(PH+4*ph)}, -2, {v(PH+4*ph)}")
                        if ph == 0:
                            e(f"s_add_u32 {sT[6]}, {sHH}, {114688*T}")
                            e.wait(tk["ch"])
                        e.op(f"buffer_store_dwordx4 {v(PH+4*ph,4)}, v24, {SRD_WS}, {sT[6]} offen offset:{1024*ph} sc1")
                    ops.append(g)
            return ops
        htok = {}
        def hload(stage, ks, so=sT[7]):
            with e.atomic():
                if ks % 4 == 0: e(f"s_add_u32 {so}, {sHS}, {229376*stage + 1024*ks}")
                htok[stage, ks] = e.op(f"buffer_load_dwordx4 {a_(4*ks,4)}, v24, {SRD_WS}, {so} offen offset:{1024*(ks%4)} sc1")
        GB, XR, R2 = 128, 136, 152
        def gloads():
            e.op(f"buffer_load_dwordx4 {v(XR,4)}, v3, {SRD_WS}, {sT[8]} offen sc1")
            return e.op(f"buffer_load_dwordx4 {v(XR+4,4)}, v3, {SRD_WS}, {sT[8]} offen offset:16 sc1")
        nop = lambda: None
        for n in range(3): bread1(n)
        ws.arm(4)
        for T in range(4):
            A = ACC[T & 1]
            mm = []
            for ks in range(28):
                n = 28*T + ks
                for m in range(2):
                    def f(n=n, ks=ks, m=m):
                        if m == 0: e.wait(bt[n])
                        c_ = "0" if ks == 0 else v(A+16*m, 16)
                        e(f"v_mfma_f32_32x32x16_bf16 {v(A+16*m,16)}, {a_(112*m+4*ks,4)}, {v(BR+4*(n%4),4)}, {c_}")
                        if m == 0 and n + 3 < 112:
                            if ks == 25:
                                with e.atomic():
                                    e.wait(tk["aw"], bt[n+2]); e("s_barrier")
                            bread1(n + 3)
                    mm.append(f)
            wr = lambda T2: [lambda: acheck(T2)] + [lambda i=i: awrite(T2, i) for i in range(7)]
            ld = lambda T2: [lambda i=i: aload1(T2, i) for i in range(7)]
            if T == 0:
                weave(mm[:30], [lambda: clear_h(2), lambda: clear_h(3)] + ld(2), 2, 30)
                weave(mm[30:], wr(1), 0, 16)
            elif T == 1:
                weave(mm[:10], wr(2))
                def f(): e.wait(tk["aw"])
                weave(mm[10:34], [f, lambda: sgissue(0)] + ld(3), 2, 20)
                weave(mm[34:], finish_ops(0) + [lambda: sgissue(1)], 0, 21)
            elif T == 2:
                weave(mm[:12], wr(3))
                weave(mm[12:], finish_ops(1) + [lambda: sgissue(2)], 2, 30)
            else:
                ws.rlimit = 88
                fo = finish_ops(2) + [lambda: sgissue(3)]
                weave(mm[:24], fo)
                ws.flush(88)
                ws.burst(112)
                h0 = o("h0n", 12)
                weave(mm[24:], [lambda ks=ks: hload(0, ks) for ks in range(h0)])
            self.stamp(f"t{T}")
        e.hook = None
        for op in finish_ops(3): op()
        self.stamp("g1end")
        if self.stop <= 3: return self.finish()

        for ks in range(h0, 28): hload(0, ks)
        e(f"s_lshl_b32 {sT[8]}, {sJR}, 8")
        e(f"s_add_u32 {sT[8]}, {sT[8]}, {WS_MOD + 560*16}")
        gloads()
        e(f"s_lshl_b32 {sT[0]}, {sMT}, 9")
        e(f"s_add_u32 {sT[0]}, {sT[0]}, {WS_ST2}")
        e.op(f"buffer_load_dword {v(R2)}, v7, {SRD_WS}, {sT[0]} offen sc1")
        e.op(f"buffer_load_dword {v(R2+1)}, v7, {SRD_WS}, {sT[0]} offen offset:1024 sc1")
        e(f"s_mul_i32 {sT[0]}, {sMT}, 28672")
        e(f"s_lshl_b32 {sT[1]}, {sJR}, 12")
        e(f"s_add_u32 {sT[0]}, {sT[0]}, {sT[1]}")
        e(f"s_lshl_b32 {sT[1]}, {sW}, 10")
        e(f"s_add_u32 {sT[0]}, {sT[0]}, {sT[1]}")
        e(f"s_add_u32 {sT[0]}, {sT[0]}, {WS_X1}")
        e(f"s_add_u32 m0, {sT[1]}, {L_X1}")
        e.op(f"buffer_load_dwordx4 v24, {SRD_WS}, {sT[0]} offen sc1 lds")
        e(f"s_add_u32 {sT[0]}, {sT[0]}, 57344")
        e(f"s_add_u32 m0, {sT[1]}, {L_X1 + 4096}")
        tx1 = e.op(f"buffer_load_dwordx4 v24, {SRD_WS}, {sT[0]} offen sc1 lds")
        def hreload(stage, g):
            for ks in range(4*g, 28): hload(stage, ks, sT[4])
        def stage_mm(stage):
            A = ACC[stage]
            mm = []
            for ks in range(28):
                for nt in range(2):
                    def f(ks=ks, nt=nt):
                        if nt == 0 and ks % 4 == 0:
                            g = ks // 4
                            e.wait(htok[stage, ks+3])
                            self.checked(lambda: hreload(stage, g), lambda: self.sentcheck([16*g+4*i for i in range(4)], 44, acc=True), 12 + 7*stage + g)
                        if nt == 0 and stage == 0: e.wait(ws.rtok[56 + 2*ks + 1])
                        c_ = "0" if ks == 0 else v(A+16*nt, 16)
                        e(f"v_mfma_f32_32x32x16_bf16 {v(A+16*nt,16)}, {ws.dreg(ks,nt)}, {a_(4*ks,4)}, {c_}")
                    mm.append(f)
            return mm
        def stage_out(stage, sum_, tmp):
            A = ACC[stage]
            for nt in range(2):
                for g in range(4): e.op(f"ds_write_b128 v8, {v(A+16*nt+4*g,4)} offset:{L_RED + 128*nt + 32*g}")
            e.waitall(vm=False)
            e("s_barrier")
            rt = []
            for w_ in range(4):
                dst = sum_ if w_ == 0 else tmp + 8*(w_-1)
                e.op(f"ds_read_b128 {v(dst,4)}, v16 offset:{L_RED + 8704*w_}")
                rt.append(e.op(f"ds_read_b128 {v(dst+4,4)}, v16 offset:{L_RED + 8704*w_+16}"))
            for w_ in range(1, 4):
                e.wait(rt[w_])
                for p in range(0, 8, 2): e(f"v_pk_add_f32 {v(sum_+p,2)}, {v(sum_+p,2)}, {v(tmp+8*(w_-1)+p,2)}")
            for p in range(0, 8, 2):
                e(f"v_pk_mul_f32 {v(sum_+p,2)}, {v(sum_+p,2)}, {v(R2,2)} op_sel:[0,{stage}] op_sel_hi:[1,{stage}]")
                e(f"v_pk_fma_f32 {v(sum_+p,2)}, {v(sum_+p,2)}, {v(GB+p,2)}, {v(XR+8*stage+p,2)}")
                e(f"v_cvt_pk_bf16_f32 {v(tmp+p//2)}, {v(sum_+p)}, {v(sum_+p+1)}")
            e(f"s_add_u32 {sT[0]}, {sOUT}, {57344*stage}")
            e.op(f"buffer_store_dwordx4 {v(tmp,4)}, v18, {SRD_OUT}, {sT[0]} offen {'sc1' if o('outsc1', 0) else ''}")
        mm = stage_mm(0)
        ws.rlimit = 112
        weave(mm[:28], [ws.read] * len(ws.pend), 0, 26)
        weave(mm[28:], [lambda ks=ks: hload(1, ks) for ks in range(14)])
        self.stamp("g2m")
        for ks in range(14, 28): hload(1, ks)
        e.wait(tx1)
        self.checked(gloads, lambda: self.tagcheck([XR, XR+4]), 26)
        for r in range(8): e(unpack(GB+r, XR + 4*(r//4) + (r//2) % 2, r & 1))
        for st in range(2):
            e(f"v_and_b32 {v(R2+st)}, {sMASK}, {v(R2+st)}")
            e(f"v_mul_f32 {v(R2+st)}, {v(R2+st)}, {v(R2+st)}")
            e(f"v_rcp_f32 {v(R2+st)}, {v(R2+st)}")
        e("s_barrier")
        for r in range(16): e.op(f"ds_read_u16 {v(XR+r)}, v17 offset:{4096*(r//8) + 64*(r%8)}")
        e.waitall(vm=False)
        for r in range(16): e(f"v_lshlrev_b32 {v(XR+r)}, 16, {v(XR+r)}")
        stage_out(0, 96, 104)
        self.stamp("g2e")
        for f in stage_mm(1): f()
        self.stamp("g2l")
        e("s_barrier")
        stage_out(1, 64, 72)
        e("s_cmp_lg_u32 s2, 0")
        e("s_cbranch_scc1 L_noepoch")
        e("v_mov_b32 v2, s46")
        e("v_mov_b32 v3, s47")
        e("v_lshlrev_b32 v4, 25, v0")
        e("v_lshrrev_b32 v5, 7, v0")
        e("v_lshl_or_b32 v4, v5, 25, v4")
        e.op(f"buffer_store_dwordx2 v[2:3], v4, {SRD_WS}, 0 offen")
        e.label("L_noepoch")
        self.stamp("out")
        self.finish()

    def helper(self):
        e = self.e
        self.srd(SRD_C, 80, 896)
        self.srd(SRD_WM, 88, 2408448)
        sH = sI
        e(f"s_lshl_b32 {sH}, {sJR}, 3")
        e(f"s_add_u32 {sH}, {sH}, {sX}")
        e(f"s_add_u32 {sT[0]}, {sH}, 7")
        e(f"s_sub_u32 {sT[1]}, {sH}, 7")
        e(f"s_cmp_lt_u32 {sH}, 28")
        e(f"s_cselect_b32 {sT[0]}, {sT[0]}, {sT[1]}")
        e(f"s_cmp_lt_u32 {sH}, 21")
        e(f"s_cselect_b32 {sP[0]}, {sH}, {sT[0]}")
        e(f"s_add_u32 {sT[0]}, {sH}, 25")
        e(f"s_add_u32 {sT[1]}, {sH}, 32")
        e(f"s_cmp_lt_u32 {sH}, 3")
        e(f"s_cselect_b32 {sP[1]}, {sT[0]}, {sT[1]}")
        self.unit_addr(10, 2, 5376)
        e(f"s_mul_i32 {sT[0]}, {sW}, {112*5376}")
        e(f"v_add_u32 v10, {sT[0]}, v10")
        e("v_lshlrev_b32 v3, 1, v0")
        e(f"s_mul_i32 {sP[2]}, {sW}, 14336")
        e("s_waitcnt lgkmcnt(0)")
        self.stamp(self.pts[0])
        e.op(f"buffer_load_ushort v32, v3, {SRD_C}, 0 offen")
        tc = e.op(f"buffer_load_ushort v33, v3, {SRD_C}, 0 offen offset:512")
        self.load_tag()
        LR, GS = 84, 160
        def mdma(task):
            e(f"s_lshl_b32 {sT[2]}, {sP[task]}, 7")
            for u in range(14):
                e(f"s_add_u32 m0, {sP[2]}, {57344*task + 1024*u}")
                e(f"s_add_u32 {sT[1]}, {sT[2]}, {43008*u}")
                t = e.op(f"buffer_load_dwordx4 v10, {SRD_WM}, {sT[1]} offen lds")
            return t
        tm0 = mdma(0)
        tL = self.ln1_loads(6, LR)
        L_SC, L_PART = 114688, 116736
        e.wait(tc)
        for r in (32, 33):
            e(f"v_lshlrev_b32 v{r}, 16, v{r}")
            e(f"v_mul_f32 v34, 0xbfb8aa3b, v{r}")
            e("v_exp_f32 v34, v34")
            e("v_add_f32 v34, 1.0, v34")
            e("v_rcp_f32 v34, v34")
            e(f"v_mul_f32 v{r}, v{r}, v34")
            e(f"v_cvt_pk_bf16_f32 v{r}, v{r}, v{r}")
        e(f"v_add_u32 v3, {L_SC}, v3")
        e("s_waitcnt lgkmcnt(0)")
        e.op("ds_write_b16 v3, v32")
        e.op("ds_write_b16 v3, v33 offset:512")
        self.make_tag()
        for q in (GS, GS+4):
            e(f"v_mov_b32 {v(q+2)}, s46")
            e(f"v_mov_b32 {v(q+3)}, s47")
        self.tr_addr(4, 2, 4)
        e(f"v_add_u32 v4, {sP[2]}, v4")
        e("v_bfe_u32 v5, v0, 5, 1")
        e(f"s_mul_i32 {sT[0]}, {sW}, 224")
        e(f"s_add_u32 {sT[0]}, {sT[0]}, {L_SC}")
        e(f"v_lshl_add_u32 v5, v5, 3, {sT[0]}")
        e("v_lshlrev_b32 v7, 2, v0")
        e(f"v_add_u32 v7, {L_PART}, v7")
        e("v_and_b32 v8, 15, v0")
        e("v_lshlrev_b32 v8, 4, v8")
        e("v_lshrrev_b32 v9, 4, v0")
        e("v_lshl_or_b32 v9, v9, 25, v8")
        e(f"v_add_u32 v8, {L_PART}, v8")
        e.waitall(vm=False)
        e("s_barrier")
        SC, WB, AC = 32, 192, 128
        for ks in range(7):
            e.op(f"ds_read_b64 {v(SC+4*ks,2)}, v5 offset:{32*ks}")
            e.op(f"ds_read_b64 {v(SC+4*ks+2,2)}, v5 offset:{32*ks+16}")
        def gemv(task):
            for ks in range(7):
                for nt in range(2):
                    for half in range(2):
                        e.op(f"ds_read_b64_tr_b16 {v(WB+8*ks+4*nt+2*half,2)}, v4 offset:{1024*(2*ks+half) + 512*nt}")
            e.waitall(vm=False)
            for ks in range(7):
                for nt in range(2):
                    c_ = "0" if ks == 0 else v(AC+16*nt, 16)
                    e(f"v_mfma_f32_32x32x16_bf16 {v(AC+16*nt,16)}, {v(SC+4*ks,4)}, {v(WB+8*ks+4*nt,4)}, {c_}")
            e("v_and_b32 v2, 32, v0")
            e("v_cmp_eq_u32 vcc, 0, v2")
            e(f"v_cndmask_b32 v2, {v(AC+16)}, {v(AC)}, vcc")
            e.op(f"ds_write_b32 v7, v2 offset:{1024*task}")
            e.waitall(vm=False)
            e("s_barrier")
            for w_ in range(4): e.op(f"ds_read_b128 {v(WB+4*w_,4)}, v8 offset:{1024*task + 256*w_}")
            e.waitall(vm=False)
            for w_ in range(1, 4):
                for p in (0, 2): e(f"v_pk_add_f32 {v(WB+p,2)}, {v(WB+p,2)}, {v(WB+4*w_+p,2)}")
            e(f"v_cvt_pk_bf16_f32 {v(GS+4)}, {v(WB)}, {v(WB+1)}")
            e(f"v_cvt_pk_bf16_f32 {v(GS+5)}, {v(WB+2)}, {v(WB+3)}")
            e(f"s_lshl_b32 {sT[0]}, {sP[task]}, 8")
            e(f"s_add_u32 {sT[0]}, {sT[0]}, {WS_MOD}")
            e.op(f"buffer_store_dwordx4 {v(GS+4,4)}, v9, {SRD_WS}, {sT[0]} offen sc1")
        e(f"s_cmp_lt_u32 {sH}, 10")
        e("s_cbranch_scc0 L_h_one")
        mdma(1)
        e.wait(tL)
        e("s_branch L_h_go")
        e.label("L_h_one")
        e("s_waitcnt vmcnt(0)")
        e.label("L_h_go")
        gemv(0)
        self.stamp(self.pts[1])
        self.ln1_stats(LR, GS, lambda: None)
        e(f"s_cmp_lt_u32 {sH}, 10")
        e("s_cbranch_scc0 L_h_two")
        e("v_add_u32 v4, 57344, v4")
        e.waitall(lg=False)
        gemv(1)
        e.label("L_h_two")
        self.stamp(self.pts[2])
        if self.stop <= 2: return self.finish()
        e("v_and_b32 v24, 63, v0")
        e("v_lshlrev_b32 v24, 4, v24")
        e(f"s_lshl_b32 {sT[8]}, {sW}, 12")
        e(f"s_add_u32 {sT[8]}, {sT[8]}, {WS_ST1}")
        def sloads():
            for i in range(4): e.op(f"buffer_load_dwordx4 {v(32+4*i,4)}, v24, {SRD_WS}, {sT[8]} offen offset:{1024*i} sc1")
        self.poll(sloads, lambda: self.tagcheck([32+4*i for i in range(4)]), nap=self.opt.get('nap1', 12))
        e("s_barrier")
        self.stamp(self.pts[3])
        e(f"s_mul_i32 {sT[0]}, {sW}, 7168")
        e(f"v_add_u32 v26, {sT[0]}, v24")
        e("v_add_u32 v25, 4096, v26")
        self.tr_addr(11, 2, 8)
        e(f"v_add_u32 v11, {sT[0]}, v11")
        e(f"s_lshr_b32 {sP[3]}, {sH}, 1")
        e(f"s_lshl_b32 {sP[3]}, {sP[3]}, 2")
        e(f"s_and_b32 {sT[0]}, {sH}, 1")
        e(f"s_add_u32 {sP[3]}, {sP[3]}, {sT[0]}")
        e(f"s_mul_i32 {sP[4]}, {sP[3]}, 28672")
        e(f"s_add_u32 {sP[4]}, {sP[4]}, {WS_X1}")
        e(f"s_lshl_b32 {sP[3]}, {sP[3]}, 9")
        e(f"s_add_u32 {sP[3]}, {sP[3]}, {WS_ST2}")
        e("v_and_b32 v8, 31, v0")
        e("v_lshrrev_b32 v9, 5, v0")
        e("v_lshlrev_b32 v2, 4, v8")
        e("v_lshl_or_b32 v9, v9, 25, v2")
        e("v_lshlrev_b32 v8, 2, v8")
        e(f"v_add_u32 v8, {L_PART}, v8")
        e(f"s_mov_b32 {sP[5]}, 0x3f803f80")
        XT, FR = 32, 64
        for job in range(2):
            def xl():
                for i in range(7):
                    e.op(f"buffer_load_dwordx4 {v(XT+4*i,4)}, {'v26' if i < 4 else 'v25'}, {SRD_WS}, {sP[4]} offen offset:{1024*(i&3)} sc1")
            if job == 0:
                self.poll(lambda: e.op(f"buffer_load_dwordx4 {v(XT,4)}, v26, {SRD_WS}, {sP[4]} offen sc1"),
                          lambda: self.sentcheck([XT], 27), nap=self.opt.get('nap2', 3))
            self.poll(xl, lambda: self.sentcheck([XT+4*i for i in range(7)], 27))
            for i in range(7): e.op(f"ds_write_b128 v26, {v(XT+4*i,4)} offset:{1024*i}")
            rt = []
            for i in range(7):
                e.op(f"ds_read_b64_tr_b16 {v(FR+4*i,2)}, v11 offset:{1024*i}")
                rt.append(e.op(f"ds_read_b64_tr_b16 {v(FR+4*i+2,2)}, v11 offset:{1024*i+256}"))
            e("v_mov_b32 v2, 0")
            e("v_mov_b32 v3, 0")
            for i in range(7):
                e.wait(rt[i])
                for r in range(4):
                    e(f"v_dot2c_f32_bf16 v2, {sP[5]}, {v(FR+4*i+r)}")
                    e(f"v_dot2c_f32_bf16 v3, {v(FR+4*i+r)}, {v(FR+4*i+r)}")
            e("v_permlane32_swap_b32 v2, v3")
            e("v_add_f32 v2, v2, v3")
            e.op(f"ds_write_b32 v7, v2 offset:{1024*job}")
            e.waitall(vm=False)
            e("s_barrier")
            for w_ in range(4):
                o = 256*job + 64*w_
                e.op(f"ds_read_b32 {v(FR+2*w_)}, v8 offset:{4*o}")
                e.op(f"ds_read_b32 {v(FR+2*w_+1)}, v8 offset:{4*o+128}")
            e.waitall(vm=False)
            e(f"v_pk_add_f32 {v(FR,2)}, {v(FR,2)}, {v(FR+2,2)}")
            e(f"v_pk_add_f32 {v(FR+4,2)}, {v(FR+4,2)}, {v(FR+6,2)}")
            e(f"v_pk_add_f32 {v(GS,2)}, {v(FR,2)}, {v(FR+4,2)}")
            self.stats_finish(GS, GS+1, True)
            e(f"v_mov_b32 {v(GS+1)}, {v(GS)}")
            e.op(f"buffer_store_dwordx4 {v(GS,4)}, v9, {SRD_WS}, {sP[3]} offen offset:{1024*job} sc1")
            e(f"s_add_u32 {sP[4]}, {sP[4]}, 57344")
            self.stamp(self.pts[4 + job])
        self.finish()


HEADER = "".join(l for l in open(f"cdna_kernels/{NAME}.s.ref").readlines()[:18] if "@launch" not in l) \
    if __import__("os").path.exists(f"cdna_kernels/{NAME}.s.ref") else ""


def generate(**kw):
    body = Gen(**kw).build()
    return f"""{HEADER}; @launch grid=(256,1,1) block=(256,1,1) lds={LDS_BYTES}
.amdgcn_target "amdgcn-amd-amdhsa--gfx950"
.text
.globl {NAME}_kernel
.p2align 8
.type {NAME}_kernel,@function
{NAME}_kernel:
{body}
.section .rodata,"a"
.p2align 6
.amdhsa_kernel {NAME}_kernel
  .amdhsa_next_free_vgpr 512
  .amdhsa_next_free_sgpr 102
  .amdhsa_accum_offset 256
  .amdhsa_group_segment_fixed_size 0
  .amdhsa_kernarg_size 120
  .amdhsa_user_sgpr_count 2
  .amdhsa_user_sgpr_kernarg_segment_ptr 1
  .amdhsa_system_sgpr_workgroup_id_x 1
  .amdhsa_float_denorm_mode_32 3
.end_amdhsa_kernel
"""


if __name__ == "__main__":
    out = sys.argv[1] if len(sys.argv) > 1 else f"cdna_kernels/{NAME}.s"
    kw = {}
    for a in sys.argv[2:]:
        k, val = a.split("=")
        kw[k] = int(val) if val.lstrip('-').isdigit() else val
    open(out, "w").write(generate(**kw))
```

```python
import sys
from emit import Emit, weave

NAME = "adaLN_cond__ssm_conv_h3__glu_gated_reglu__prompt"
S, D, F = 2048, 448, 1792

WS_EPOCH = 0
WS_GF = 0x400
WS_ST1 = 0x1000
WS_MOD = 0x5000
WS_ST2 = 0x8000
WS_UT = 0x10000
PP = 16384 + 512
WS_KVG = 0x20000
WS_XG = WS_KVG + 224 * PP
WS_HL = WS_XG + 224 * PP
WS_STAMP = WS_HL + 224 * PP
WS_SIZE = WS_STAMP + 256 * 4 * 128

L_WST = 0
L_TK = 114688
L_UR = L_TK + 17024
L_ST = L_UR + 9216
L_VEC = L_ST + 16384
L_S1 = L_VEC + 2048
L_HI = 57344
L_EXT = 114688
L_X1 = L_EXT + 40960
L_RED = [0, 34816]
LDS_BYTES = 163840
BIG = 0x7fffff00
SPIN = 1 << 15

SRD_K, SRD_V, SRD_X, SRD_WS = "s[4:7]", "s[8:11]", "s[12:15]", "s[16:19]"
SRD_SH, SRD_SSM, SRD_WG, SRD_WU, SRD_WD, SRD_OUT = "s[20:23]", "s[24:27]", "s[28:31]", "s[32:35]", "s[36:39]", "s[40:43]"
SRD_C, SRD_WM = "s[4:7]", "s[8:11]"
TAG = "s[46:47]"
sW, sX, sJQ, sJR, sI, sD0, sRB, sFS = "s48", "s49", "s50", "s51", "s52", "s53", "s54", "s55"
sMASK, sSPIN, sDV, sLN = "s56", "s57", "s58", "s59"
sT = ["s%d" % i for i in range(60, 72)]
sC = ["s[72:73]", "s[74:75]", "s[76:77]", "s[78:79]"]
sLO, sEXT = "s80", "s81"
sKW = ["0", "s82", "s83", "s84"]
sKD = ["0", "s85", "s86", "s87"]
sP = ["s%d" % i for i in range(20, 28)]
STAMP0 = 90


def v(a, n=1): return f"v{a}" if n == 1 else f"v[{a}:{a+n-1}]"
def a_(a, n=1): return f"a{a}" if n == 1 else f"a[{a}:{a+n-1}]"


class WStream:
    def __init__(self, e):
        self.e = e
        self.units = [(k, 4*q + i) for q in range(7) for k in "gu" for i in range(4)] + [("d", i) for i in range(56)]
        self.next = 0; self.limit = 0; self.rlimit = 0
        self.free = [("lo", i, None) for i in range(14)] + [("hi", i, None) for i in range(14)]
        self.banned = set()
        self.pend = []
        self.pace = 96; self.lag = 12; self.tnext = 0; self.seen = 0
        self.grp = None
        self.cur = {"w": 0, "d": 0}
        self.rtok = {}
        self.skip = ''
        self.hload = None; self.hnext = 0; self.hmax = 0; self.lead = 4
    def dest(self, kind, i):
        if kind == "g": return [a_(4*i, 2), a_(4*i+2, 2)]
        if kind == "u": return [a_(112+4*i, 2), a_(112+4*i+2, 2)]
        ks, half = divmod(i, 2)
        return [self.dreg(ks, nt, 2*half, 2) for nt in range(2)]
    @staticmethod
    def dreg(ks, nt, off=0, n=4):
        if ks < 12: return v(160 + 8*ks + 4*nt + off, n)
        if ks < 16: return a_(224 + 8*(ks-12) + 4*nt + off, n)
        return a_(112 + 8*(ks-16) + 4*nt + off, n)
    def can_dma(self):
        return self.next < min(self.limit, len(self.units)) and any(s[0] not in self.banned for s in self.free)
    def dma(self):
        e = self.e
        kind, i = self.units[self.next]
        slot = next(s for s in self.free if s[0] not in self.banned)
        self.free.remove(slot)
        reg, idx, tok = slot
        e.wait(tok)
        g = self.grp
        k = i - g[1] if g and g[0] == kind else -1
        if not (0 < k < 4 and g[2] == reg and idx - g[3] == k and i // 8 == g[1] // 8):
            k = 0
            self.grp = (kind, i, reg, idx)
            key, vr = ("d", "v19") if kind == "d" else ("w", "v10")
            src = 7168 * (i + 8 * (i // 8)) if kind == "d" else 57344 * i
            if src != self.cur[key]:
                e(f"v_add_u32 {vr}, {(src - self.cur[key]) & 0xffffffff:#x}, {vr}")
                self.cur[key] = src
            base, off = {"lo": (sLO, 0), "hi": (sLO, L_HI), "ext": (sEXT, 0)}[reg]
            e(f"s_add_u32 m0, {base}, {off + 1024*idx}")
        vr, srd, cs = {"g": ("v10", SRD_WG, sKW), "u": ("v10", SRD_WU, sKW), "d": ("v19", SRD_WD, sKD)}[kind]
        if kind in self.skip: t = e.op("s_nop 0") or type("T", (), dict(done=True, kind="vm", seq=0))(); self.tnext = e.t + self.pace
        else: t = e.op(f"buffer_load_dwordx4 {vr}, {srd}, {cs[k]} offen offset:{1024*k} lds")
        self.pend.append((self.next, reg, idx, t))
        self.next += 1
    def read(self):
        e = self.e
        n, reg, idx, t = self.pend.pop(0)
        kind, i = self.units[n]
        e.wait(t)
        vb = {"hi": "v20", "ext": "v21"}[reg] if kind == "d" else {"lo": "v16", "hi": "v17", "ext": "v18"}[reg]
        step = 512 if kind == "d" else 256
        for j, d_ in enumerate(self.dest(kind, i)):
            tok = e.op(f"ds_read_b64_tr_b16 {d_}, {vb} offset:{1024*idx + step*j}")
        self.rtok[n] = tok
        self.free.append((reg, idx, tok))
    def hook(self):
        e = self.e
        if e.nvm > self.seen:
            self.tnext = max(self.tnext, e.t - self.pace) + self.pace * (e.nvm - self.seen)
            self.seen = e.nvm
        if e.t >= self.tnext and self.step():
            pass
        elif self.pend and self.pend[0][0] < self.rlimit and (self.pend[0][3].done or e.nvm - self.pend[0][3].seq >= self.lag):
            self.read()
    def step(self):
        hs, hk = divmod(self.hnext, 28)
        h_ok = self.hload and self.hnext < self.hmax
        if self.can_dma() and not (h_ok and hs == 0 and hk <= (self.next - 56) // 2 - self.lead): self.dma()
        elif h_ok: self.hload(hs, hk); self.hnext += 1
        else: return False
        return True
    def hneed(self, n):
        with self.e.atomic():
            while self.hnext <= n:
                assert self.hnext < self.hmax
                self.hload(*divmod(self.hnext, 28)); self.hnext += 1
    def need(self, kind, i):
        n = self.units.index((kind, i))
        if n not in self.rtok: self.flush(n + 1)
        self.e.wait(self.rtok[n])
    def drain_done(self):
        with self.e.atomic():
            while self.pend and self.pend[0][0] < self.rlimit and self.pend[0][3].done: self.read()
    def drain_keep(self, k):
        with self.e.atomic():
            while len(self.pend) > k and self.pend[0][0] < self.rlimit: self.read()
    def arm(self, recent=0):
        self.seen = self.e.nvm - recent; self.tnext = self.e.t
        self.e.hook = self.hook
    def burst(self, n):
        with self.e.atomic():
            for _ in range(n):
                if self.can_dma(): self.dma()
    def flush(self, upto):
        with self.e.atomic():
            self.limit = max(self.limit, upto); self.rlimit = max(self.rlimit, upto)
            while self.next < upto or (self.pend and self.pend[0][0] < upto):
                if self.next < upto and self.can_dma(): self.dma()
                else: self.read()


class Gen:
    def __init__(self, stop=99, diag=False, pts=None, **opt):
        self.e = Emit()
        self.opt = opt
        mid = (pts or "kv,kvin,a1st,g1go,g1end,g2l").split(",")
        self.pts = ["start"] + mid + [None] * (6 - len(mid))
        self.stop = stop
        self.diag = diag
        self.tail = []
        self.in_helper = False
        self.clk = "s_memtime" if opt.get("cyc") else "s_memrealtime"

    def stamp(self, name):
        if name is not None and name == self.opt.get("probe") and not self.in_helper: self.e("s_memrealtime s[92:93]")
        if self.diag and name is not None and name in self.pts:
            k = self.pts.index(name)
            r = 44 if k == 0 else STAMP0 + 2*(k-1)
            self.e(f"{self.clk} s[{r}:{r+1}]")

    def srd(self, srd, off, nbytes):
        e = self.e
        b = int(srd[2:srd.index(":")])
        e(f"s_load_dwordx2 s[{b}:{b+1}], s[0:1], {off}")
        e(f"s_mov_b32 s{b+2}, {nbytes}")
        e(f"s_mov_b32 s{b+3}, 0x20000")

    def finish(self):
        e = self.e
        e.hook = None
        if self.opt.get("probe") and not self.in_helper:
            e.waitall()
            if self.opt["probe"] == "end": e("s_memrealtime s[92:93]\ns_waitcnt lgkmcnt(0)")
            e("s_sub_u32 s92, s92, s90\ns_lshl_b32 s92, s92, 2\ns_add_u32 s92, s92, 4000")
            if self.opt.get("only") is not None:
                e(f"s_cmp_eq_u32 s2, {self.opt['only']}\ns_cselect_b32 s92, s92, 0")
            e.label("L_pad")
            e("s_memrealtime s[94:95]\ns_waitcnt lgkmcnt(0)\ns_sub_u32 s94, s94, s90\ns_cmp_lt_u32 s94, s92\ns_cbranch_scc1 L_pad")
        if self.diag:
            e.waitall()
            e(f"{self.clk} s[62:63]")
            e(f"s_lshl_b32 {sT[0]}, s2, 2")
            e(f"s_add_u32 {sT[0]}, {sT[0]}, {sW}")
            e(f"s_lshl_b32 {sT[0]}, {sT[0]}, 7")
            e(f"s_add_u32 {sT[0]}, {sT[0]}, {WS_STAMP}")
            e(f"v_mov_b32 v1, {sT[0]}")
            e("s_waitcnt lgkmcnt(0)")
            for k, r in enumerate([44] + [STAMP0 + 2*i for i in range(6)] + [62, 3]):
                e(f"v_mov_b32 v2, s{r}")
                e(f"buffer_store_dword v2, v1, {SRD_WS}, 0 offen offset:{4*k}")
        e("s_endpgm")

    def tagcheck(self, quads):
        e = self.e
        for n, q in enumerate(quads):
            dst = "vcc" if n == 0 else sC[(n - 1) % 4]
            e(f"v_cmp_ne_u64 {dst}, {TAG}, {v(q+2,2)}")
            if n >= 2: e(f"s_or_b64 vcc, vcc, {sC[(n-2)%4]}")
        if len(quads) > 1: e(f"s_or_b64 vcc, vcc, {sC[(len(quads)-2)%4]}")

    def sentcheck(self, regs, tmp, acc=False):
        e = self.e
        regs = [r + 3 for r in regs]
        if acc:
            for n, r in enumerate(regs): e(f"v_accvgpr_read_b32 {v(tmp+n)}, {a_(r)}")
            regs = [tmp + n for n in range(len(regs))]
        cur = regs[0]; rest = regs[1:]
        while rest:
            if len(rest) >= 2:
                e(f"v_max3_u32 {v(tmp)}, {v(cur)}, {v(rest[0])}, {v(rest[1])}"); rest = rest[2:]
            else:
                e(f"v_max_u32 {v(tmp)}, {v(cur)}, {v(rest[0])}"); rest = rest[1:]
            cur = tmp
        e(f"v_cmp_eq_u32 vcc, -1, {v(cur)}")

    def poll(self, loads, check, nap=1, spin=SPIN):
        e = self.e
        top, out = e.newlabel("poll"), e.newlabel("pollend")
        e(f"s_mov_b32 {sSPIN}, {spin}")
        e.label(top)
        loads()
        e.waitall(lg=False)
        check()
        e(f"s_cbranch_vccz {out}")
        if nap: e(f"s_sleep {nap}")
        e(f"s_sub_u32 {sSPIN}, {sSPIN}, 1")
        e(f"s_cbranch_scc0 {top}")
        e.label(out)

    def checked(self, loads, check, cnt=None):
        e = self.e
        stub, back = e.newlabel("retry"), e.newlabel("back")
        with e.atomic():
            check()
            e(f"s_cbranch_vccnz {stub}")
            e.label(back)
        def emit_stub():
            e.forget()
            e.label(stub)
            e("s_nop 7")
            if self.diag and cnt is not None: e(f"s_bitset1_b32 s3, {cnt}")
            self.poll(loads, check)
            e(f"s_branch {back}")
        self.tail.append(emit_stub)

    def bfround(self, r):
        e = self.e
        e(f"v_cvt_pk_bf16_f32 {v(r)}, {v(r)}, {v(r)}")
        e(f"v_lshlrev_b32 {v(r)}, 16, {v(r)}")

    def stats_finish(self, rs, rq, neg):
        e = self.e
        e(f"v_mul_f32 {v(rs)}, 0x3b124925, {v(rs)}")
        e(f"v_mul_f32 {v(rq)}, 0x3b124925, {v(rq)}")
        e(f"v_fma_f32 {v(rq)}, -{v(rs)}, {v(rs)}, {v(rq)}")
        e(f"v_max_f32 {v(rq)}, 0, {v(rq)}")
        self.bfround(rq)
        e(f"v_add_f32 {v(rq)}, 0x3727c5ac, {v(rq)}")
        self.bfround(rq)
        e(f"v_sqrt_f32 {v(rq)}, {v(rq)}")
        e(f"v_cvt_pk_bf16_f32 {v(rs)}, {'-' if neg else ''}{v(rs)}, {v(rq)}")

    def ln1_loads(self, va, dst):
        e = self.e
        e(f"v_lshrrev_b32 {v(va)}, 5, v0")
        e(f"s_lshl_b32 {sT[0]}, {sLN}, 3")
        e(f"v_add_u32 {v(va)}, {sT[0]}, {v(va)}")
        e(f"v_mul_u32_u24 {v(va)}, 896, {v(va)}")
        e(f"v_and_b32 {v(dst)}, 31, v0")
        e(f"v_lshl_add_u32 {v(va)}, {v(dst)}, 4, {v(va)}")
        e(f"v_cmp_gt_u32 vcc, 28, {v(dst)}")
        e(f"v_mov_b32 {v(dst)}, {BIG}")
        e(f"v_cndmask_b32 {v(va)}, {v(dst)}, {v(va)}, vcc")
        e.op(f"buffer_load_dwordx4 {v(dst,4)}, {v(va)}, {SRD_X}, 0 offen")
        return e.op(f"buffer_load_dwordx4 {v(dst+4,4)}, {v(va)}, {SRD_X}, 0 offen offset:448")

    def ln1_stats(self, src, g, va):
        e = self.e
        s_, q_ = g, g + 1
        e(f"s_mov_b32 {sT[1]}, 0x3f803f80")
        e(f"v_mov_b32 {v(s_)}, 0")
        e(f"v_mov_b32 {v(q_)}, 0")
        for i in range(8):
            e(f"v_dot2c_f32_bf16 {v(s_)}, {sT[1]}, {v(src+i)}")
            e(f"v_dot2c_f32_bf16 {v(q_)}, {v(src+i)}, {v(src+i)}")
        for ctl in ("quad_perm:[1,0,3,2]", "quad_perm:[2,3,0,1]", "row_half_mirror", "row_mirror"):
            e(f"v_add_f32_dpp {v(s_)}, {v(s_)}, {v(s_)} {ctl} row_mask:0xf bank_mask:0xf")
            e(f"v_add_f32_dpp {v(q_)}, {v(q_)}, {v(q_)} {ctl} row_mask:0xf bank_mask:0xf")
        e(f"v_mov_b32 {v(src)}, {v(s_)}")
        e(f"v_mov_b32 {v(src+1)}, {v(q_)}")
        e(f"v_permlane16_swap_b32 {v(s_)}, {v(src)}")
        e(f"v_permlane16_swap_b32 {v(q_)}, {v(src+1)}")
        e(f"v_add_f32 {v(s_)}, {v(s_)}, {v(src)}")
        e(f"v_add_f32 {v(q_)}, {v(q_)}, {v(src+1)}")
        self.stats_finish(s_, q_, False)
        e(f"v_lshrrev_b32 {v(q_)}, 5, v0")
        e(f"v_lshlrev_b32 {v(q_)}, 2, {v(q_)}")
        e(f"v_add_u32 {v(q_)}, {L_S1}, {v(q_)}")
        tw = e.op(f"ds_write_b32 {v(q_)}, {v(s_)}")
        e(f"s_lshl_b32 {sT[0]}, {sLN}, 6")
        e(f"s_add_u32 {sT[0]}, {sT[0]}, {WS_ST1}")
        e(f"v_and_b32 {v(src)}, 3, v0")
        e(f"v_lshrrev_b32 {v(src+1)}, 2, v0")
        e(f"v_lshl_add_u32 {v(va)}, {v(src)}, 4, {sT[0]}")
        e(f"v_lshl_add_u32 {v(va)}, {v(src+1)}, 25, {v(va)}")
        e(f"v_lshlrev_b32 {v(src)}, 3, {v(src)}")
        e(f"v_add_u32 {v(src)}, {L_S1}, {v(src)}")
        def publish():
            e.waitall(vm=False)
            e("s_barrier")
            e.wait(e.op(f"ds_read_b64 {v(g,2)}, {v(src)}"))
            e.op(f"buffer_store_dwordx4 {v(g,4)}, {v(va)}, {SRD_WS}, 0 offen sc1")
        return publish

    def tr_addr(self, dst, tmp, hmul):
        e = self.e
        e(f"v_bfe_u32 {v(dst)}, v0, 2, 2")
        e(f"v_bfe_u32 {v(tmp)}, v0, 5, 1")
        e(f"v_mad_u32_u24 {v(dst)}, {v(tmp)}, {hmul}, {v(dst)}")
        e(f"v_lshlrev_b32 {v(dst)}, 6, {v(dst)}")
        e(f"v_bfe_u32 {v(tmp)}, v0, 4, 1")
        e(f"v_lshl_add_u32 {v(dst)}, {v(tmp)}, 5, {v(dst)}")
        e(f"v_and_b32 {v(tmp)}, 3, v0")
        e(f"v_lshl_add_u32 {v(dst)}, {v(tmp)}, 3, {v(dst)}")

    def unit_addr(self, dst, tmp, rowbytes):
        e = self.e
        e(f"v_bfe_u32 {v(dst)}, v0, 2, 3")
        e(f"v_mul_u32_u24 {v(dst)}, {rowbytes}, {v(dst)}")
        e(f"v_bfe_u32 {v(tmp)}, v0, 5, 1")
        e(f"v_lshl_add_u32 {v(dst)}, {v(tmp)}, 6, {v(dst)}")
        e(f"v_and_b32 {v(tmp)}, 3, v0")
        e(f"v_lshl_add_u32 {v(dst)}, {v(tmp)}, 4, {v(dst)}")

    def load_tag(self):
        e = self.e
        e(f"s_load_dword s46, s[16:17], {WS_EPOCH}")

    def make_tag(self):
        e = self.e
        e("s_add_u32 s46, s46, 0x9e3779b9")
        e("s_mov_b32 s47, -1")

    def build(self):
        e = self.e
        e("s_cmp_ge_u32 s2, 256")
        e("s_cbranch_scc1 L_exit")
        if self.opt.get("probe"): e("s_memrealtime s[90:91]")
        self.srd(SRD_X, 0, 1835008)
        self.srd(SRD_WS, 112, WS_SIZE)
        e("s_getpc_b64 s[44:45]")
        e(f"s_bfe_u32 {sT[0]}, s2, 0x30003")
        e(f"s_lshl_b32 {sT[0]}, {sT[0]}, 12")
        e(f"v_lshl_add_u32 v1, v0, 4, {sT[0]}")
        e("v_min_u32 v1, L_end - L_pc - 4, v1")
        e.label("L_pc")
        e.op("global_load_dword v1, v1, s[44:45]")
        e(f"s_and_b32 {sX}, s2, 7")
        e(f"s_lshr_b32 {sT[0]}, s2, 3")
        e(f"s_mul_i32 {sJQ}, {sT[0]}, 37")
        e(f"s_lshr_b32 {sJQ}, {sJQ}, 8")
        e(f"s_mul_i32 {sJR}, {sJQ}, 7")
        e(f"s_sub_u32 {sJR}, {sT[0]}, {sJR}")
        e(f"s_lshl_b32 {sLN}, {sX}, 5")
        e(f"s_add_u32 {sLN}, {sLN}, {sT[0]}")
        e("v_lshrrev_b32 v2, 6, v0")
        e(f"s_mov_b32 {sMASK}, 0xffff0000")
        e(f"v_readfirstlane_b32 {sW}, v2")
        if self.diag:
            for k in range(12): e(f"s_mov_b32 s{STAMP0+k}, 0")
            e("s_mov_b32 s3, 0")
        e(f"s_cmp_ge_u32 {sT[0]}, 28")
        e("s_cbranch_scc1 L_helper")
        vm0 = list(e.vm)
        self.main()
        e.forget(); e.vm = list(vm0)
        for t in vm0: t.done = False
        e.label("L_helper")
        self.in_helper = True
        self.helper()
        for t in self.tail: t()
        e.label("L_exit")
        e("s_endpgm")
        e.label("L_end")
        return e.text()

    def main(self):
        e = self.e
        o = self.opt.get
        def unpack(dst, src, hi):
            return f"v_and_b32 {v(dst)}, {sMASK}, {v(src)}" if hi else f"v_lshlrev_b32 {v(dst)}, 16, {v(src)}"
        self.srd(SRD_K, 8, 1835008)
        self.srd(SRD_V, 16, 1835008)
        self.srd(SRD_SH, 24, 3584)
        self.srd(SRD_SSM, 32, 1835008)
        e("s_load_dwordx2 s[88:89], s[0:1], 40")
        self.srd(SRD_WG, 56, 1605632)
        self.srd(SRD_WU, 64, 1605632)
        self.srd(SRD_WD, 72, 1605632)
        self.srd(SRD_OUT, 96, 1835008)
        e(f"s_lshl_b32 {sI}, {sX}, 2")
        e(f"s_add_u32 {sI}, {sI}, {sJQ}")
        e(f"s_lshl_b32 {sD0}, {sJR}, 5")
        e(f"s_add_u32 {sD0}, {sD0}, {sI}")
        e(f"s_lshl_b32 {sD0}, {sD0}, 1")
        e(f"s_mul_i32 {sT[0]}, {sI}, 57344")
        e(f"s_lshl_b32 {sT[1]}, {sJR}, 7")
        e(f"s_add_u32 {sT[0]}, {sT[0]}, {sT[1]}")
        vKo, vKh, vXo, vSh, vLn, vSs, vSp, vBx, vBk, vTw, vP1, vP2 = range(232, 244)
        vGs = 31
        e(f"v_lshrrev_b32 {v(vKo)}, 4, v0")
        e(f"v_and_b32 {v(vSh)}, 15, v0")
        e(f"v_mul_u32_u24 {v(vKo)}, 3584, {v(vKo)}")
        e(f"v_lshl_add_u32 v2, {v(vSh)}, 3, {sT[0]}")
        e(f"v_add_u32 {v(vKo)}, {v(vKo)}, v2")
        e(f"v_subrev_u32 {v(vKh)}, 2688, {v(vKo)}")
        e(f"s_lshl_b32 {sT[1]}, {sJR}, 9")
        e(f"v_lshl_add_u32 {v(vSh)}, {v(vSh)}, 5, {sT[1]}")
        e(f"s_and_b32 {sT[1]}, {sW}, 1")
        e(f"s_lshr_b32 {sT[2]}, {sW}, 1")
        e(f"s_mul_i32 {sT[1]}, {sT[1]}, 3584")
        e(f"s_mul_i32 {sT[2]}, {sT[2]}, 28672")
        e(f"s_add_u32 {sT[1]}, {sT[1]}, {sT[2]}")
        e(f"v_bfe_u32 {v(vXo)}, v0, 4, 2")
        e(f"v_mul_u32_u24 {v(vXo)}, 7168, {v(vXo)}")
        e(f"v_add3_u32 {v(vXo)}, {v(vXo)}, v2, {sT[1]}")
        e(f"s_lshl_b32 {sT[1]}, {sD0}, 12")
        e(f"v_lshl_add_u32 {v(vSs)}, v0, 5, {sT[1]}")
        e("v_and_b32 v3, 127, v0")
        e("v_cmp_ne_u32 vcc, 0, v3")
        e(f"v_subrev_u32 {v(vSp)}, 4, {v(vSs)}")
        e(f"v_mov_b32 v2, {BIG}")
        e(f"v_cndmask_b32 {v(vSp)}, v2, {v(vSp)}, vcc")
        e("s_waitcnt lgkmcnt(0)")
        self.stamp("start")
        K, V_, SH, X, SS, LR = 32, 46, 56, 64, 72, 84
        for r in range(3): e.op(f"buffer_load_dwordx2 {v(K+2*r,2)}, {v(vKh)}, {SRD_K}, 0 offen offset:{896*r}")
        for r in range(4): e.op(f"buffer_load_dwordx2 {v(K+6+2*r,2)}, {v(vKo)}, {SRD_K}, 0 offen offset:{896*r}")
        e.op(f"buffer_load_dwordx4 {v(SH,4)}, {v(vSh)}, {SRD_SH}, 0 offen")
        tK = e.op(f"buffer_load_dwordx4 {v(SH+4,4)}, {v(vSh)}, {SRD_SH}, 0 offen offset:16")
        for r in range(4): tV = e.op(f"buffer_load_dwordx2 {v(V_+2*r,2)}, {v(vKo)}, {SRD_V}, 0 offen offset:{896*r}")
        self.load_tag()
        e(f"s_lshl_b32 {sT[1]}, {sD0}, 1")
        e(f"s_load_dword {sDV}, s[88:89], {sT[1]}")
        self.stamp("ldiss")
        e("v_and_b32 v24, 63, v0")
        e("v_lshlrev_b32 v24, 4, v24")
        e(f"s_lshl_b32 {sT[1]}, {sW}, 12")
        e(f"v_add_u32 v9, {sT[1]}, v24")
        for i in range(4): e(f"v_mov_b32 v{12+i}, -1")
        e("v_bfe_u32 v2, v0, 2, 4")
        e("v_and_b32 v3, 3, v0")
        e(f"v_mul_u32_u24 {v(vGs)}, {2*PP}, v2")
        e(f"v_lshl_add_u32 {v(vGs)}, v3, 4, {v(vGs)}")
        e("v_mul_u32_u24 v10, 3584, v2")
        e("v_lshl_add_u32 v10, v3, 4, v10")
        e(f"v_mul_u32_u24 {v(vP1)}, 4256, v3")
        e("v_min_u32 v4, 4, v2")
        e(f"v_lshl_add_u32 {v(vP1)}, v4, 4, {v(vP1)}")
        e(f"v_add_u32 {v(vP1)}, {L_TK}, {v(vP1)}")
        e("v_lshlrev_b32 v2, 2, v2")
        e(f"v_lshl_add_u32 {v(vBx)}, v3, 6, v2")
        e(f"v_xor_b32 {v(vBk)}, 0xc0, {v(vBx)}")
        e(f"s_mul_i32 {sT[0]}, {sJR}, {32*PP}")
        e(f"s_lshl_b32 {sT[1]}, {sI}, 8")
        e(f"s_lshl_b32 {sT[2]}, {sW}, 6")
        e(f"s_add_u32 {sT[1]}, {sT[1]}, {sT[2]}")
        e(f"s_sub_u32 {sT[4]}, {sT[0]}, {sT[1]}")
        e(f"s_add_u32 {sT[4]}, {sT[4]}, {WS_KVG + 508*16}")
        e(f"s_lshr_b32 {sT[1]}, {sI}, 2")
        e(f"s_lshl_b32 {sT[1]}, {sT[1]}, 10")
        e(f"s_and_b32 {sT[2]}, {sI}, 3")
        e(f"s_lshl_b32 {sT[2]}, {sT[2]}, 6")
        e(f"s_lshl_b32 {sT[3]}, {sW}, 8")
        e(f"s_add_u32 {sT[1]}, {sT[1]}, {sT[2]}")
        e(f"s_add_u32 {sT[1]}, {sT[1]}, {sT[3]}")
        e(f"s_add_u32 {sT[8]}, {sT[0]}, {sT[1]}")
        e(f"s_add_u32 {sT[8]}, {sT[8]}, {WS_XG}")
        for c in range(1, 4):
            e(f"s_add_u32 {sT[4+c]}, {sT[4]}, {PP*(c>>1) + 8192*(c&1)}")
            e(f"s_add_u32 {sT[8+c]}, {sT[8]}, {PP*(c>>1) + 8192*(c&1)}")
        e(f"s_lshr_b32 {sRB}, {sX}, 1")
        e(f"s_lshl_b32 {sRB}, {sRB}, 2")
        e(f"s_add_u32 {sRB}, {sRB}, {sJQ}")
        e(f"s_and_b32 {sFS}, {sX}, 1")
        e(f"s_mul_i32 {sFS}, {sFS}, 7")
        e(f"s_add_u32 {sFS}, {sFS}, {sJR}")
        e(f"s_lshl_b32 {sT[0]}, {sFS}, 8")
        e(f"s_lshl_b32 {sT[1]}, {sW}, 6")
        e(f"s_add_u32 {sT[0]}, {sT[0]}, {sT[1]}")
        e(f"v_add_u32 v10, {sT[0]}, v10")
        self.unit_addr(19, 2, 896)
        e(f"s_lshr_b32 {sT[0]}, {sW}, 1")
        e(f"s_mul_i32 {sT[0]}, {sT[0]}, {896*896}")
        e(f"s_and_b32 {sT[1]}, {sW}, 1")
        e(f"s_mul_i32 {sT[1]}, {sT[1]}, {64*896}")
        e(f"s_add_u32 {sT[0]}, {sT[0]}, {sT[1]}")
        e(f"s_lshl_b32 {sT[1]}, {sJR}, 7")
        e(f"s_add_u32 {sT[0]}, {sT[0]}, {sT[1]}")
        e(f"v_add_u32 v19, {sT[0]}, v19")
        e(f"s_mul_i32 {sLO}, {sW}, 14336")
        e(f"s_mul_i32 {sEXT}, {sW}, 10240")
        e(f"s_add_u32 {sEXT}, {sEXT}, {L_EXT}")
        for k in range(1, 4):
            e(f"s_mov_b32 {sKW[k]}, {56320*k}")
            e(f"s_mov_b32 {sKD[k]}, {6144*k}")
        self.tr_addr(11, 2, 8)
        e(f"v_add_u32 v16, {sLO}, v11")
        e(f"v_add_u32 v17, {L_HI}, v16")
        e("v_bfe_u32 v2, v0, 5, 1")
        e("v_lshlrev_b32 v2, 8, v2")
        e(f"v_add_u32 v18, {sEXT}, v11")
        e("v_sub_u32 v20, v17, v2")
        e("v_sub_u32 v21, v18, v2")
        e(f"v_lshrrev_b32 {v(vTw)}, 7, v0")
        e(f"v_mul_u32_u24 {v(vTw)}, 8512, {v(vTw)}")
        e("v_and_b32 v2, 127, v0")
        e(f"v_lshl_add_u32 {v(vTw)}, v2, 5, {v(vTw)}")
        e(f"v_add_u32 {v(vTw)}, {L_TK + 80}, {v(vTw)}")
        e("v_and_b32 v3, 1, v0")
        e(f"v_mul_u32_u24 {v(vP2)}, 4608, v3")
        e("v_bfe_u32 v2, v0, 1, 5")
        e(f"v_lshl_add_u32 {v(vP2)}, v2, 4, {v(vP2)}")
        e(f"v_add_u32 {v(vP2)}, {L_UR + 4096}, {v(vP2)}")
        for i in range(4): e(f"v_mov_b32 v{96+i}, 0")
        e("v_and_b32 v8, 3, v0")
        e("v_and_b32 v2, v2, v3")
        e("v_add_u32 v8, v8, v2")
        e("v_mul_u32_u24 v8, 1792, v8")
        e("v_mul_u32_u24 v3, 4256, v3")
        e("v_and_b32 v2, 7, v0")
        e("v_or_b32 v2, 1, v2")
        e("v_bfe_u32 v4, v0, 3, 1")
        e("v_lshl_add_u32 v2, v4, 5, v2")
        e("v_bfe_u32 v27, v0, 4, 2")
        e("v_lshl_add_u32 v2, v27, 3, v2")
        e("v_lshlrev_b32 v2, 1, v2")
        e("v_sub_u32 v2, v2, v3")
        sHW, sCH = sT[3], sT[2]
        e(f"s_and_b32 {sHW}, {sW}, 1")
        e(f"s_lshr_b32 {sCH}, {sW}, 1")
        e(f"s_mul_i32 {sT[0]}, {sCH}, 8512")
        e(f"s_lshl_b32 {sT[1]}, {sHW}, 8")
        e(f"s_add_u32 {sT[0]}, {sT[0]}, {sT[1]}")
        e(f"s_add_u32 {sT[0]}, {sT[0]}, {L_TK + 4256 + 2}")
        e(f"v_add_u32 v2, {sT[0]}, v2")
        e(f"s_mul_i32 {sT[0]}, {sCH}, 512")
        e(f"s_add_u32 {sT[0]}, {sT[0]}, {L_UR}")
        e("v_lshrrev_b32 v30, 1, v9")
        e(f"v_add_u32 v3, {sT[0]}, v30")
        e(f"v_add_u32 v30, {L_ST}, v30")
        e("v_and_b32 v5, 3, v0")
        e("v_bfe_u32 v6, v0, 2, 2")
        e("v_lshlrev_b32 v4, 4, v5")
        e("v_lshl_add_u32 v5, v6, 3, v5")
        e("v_lshl_add_u32 v4, v6, 8, v4")
        e("v_bfe_u32 v6, v0, 4, 1")
        e("v_bfe_u32 v28, v0, 5, 1")
        e("v_lshl_add_u32 v7, v5, 1, v6")
        e("v_lshl_add_u32 v7, v28, 3, v7")
        e("v_lshl_add_u32 v4, v6, 10, v4")
        e("v_lshl_add_u32 v4, v28, 7, v4")
        e("v_sub_u32 v5, v27, v5")
        e(f"s_mul_i32 {sT[1]}, {sCH}, 4608")
        e(f"s_lshl_b32 {sT[0]}, {sHW}, 8")
        e(f"s_add_u32 {sT[0]}, {sT[0]}, {sT[1]}")
        e(f"s_add_u32 {sT[0]}, {sT[0]}, {L_UR + 2*(2008-1792)}")
        e(f"v_lshl_add_u32 v5, v5, 4, {sT[0]}")
        e(f"s_lshl_b32 {sT[0]}, {sHW}, 11")
        e(f"s_sub_u32 {sT[0]}, {sT[1]}, {sT[0]}")
        e(f"s_add_u32 {sT[0]}, {sT[0]}, {L_UR + 2*(2044-768)}")
        e("v_lshlrev_b32 v6, 3, v7")
        e(f"v_sub_u32 v6, {sT[0]}, v6")
        e(f"s_lshl_b32 {sT[0]}, {sHW}, 12")
        e(f"s_add_u32 {sT[0]}, {sT[0]}, {L_ST}")
        e(f"v_lshl_add_u32 v7, v7, 4, {sT[0]}")
        e(f"v_add_u32 v28, {L_TK}, v9")
        e("v_xor_b32 v29, 0x1000, v9")
        e(f"v_add_u32 v29, {L_TK}, v29")
        e("s_waitcnt lgkmcnt(0)")
        e(f"s_lshl_b32 {sT[0]}, {sCH}, 4")
        e(f"s_lshr_b32 {sDV}, {sDV}, {sT[0]}")
        e(f"s_lshl_b32 {sDV}, {sDV}, 16")
        e.op(f"ds_write_b128 {v(vP1)}, v[96:99]")
        e.op(f"ds_write_b128 {v(vP2)}, v[96:99]")
        self.make_tag()
        G, G2, GS = 128, 144, 92
        for q in list(range(G, G+32, 4)) + [GS]:
            e(f"v_mov_b32 {v(q+2)}, s46")
            e(f"v_mov_b32 {v(q+3)}, s47")
        for r in range(4): tX = e.op(f"buffer_load_dwordx2 {v(X+2*r,2)}, {v(vXo)}, {SRD_X}, 0 offen offset:{896*r}")
        tL = self.ln1_loads(vLn, LR)
        e.op(f"buffer_load_dwordx4 {v(SS,4)}, {v(vSs)}, {SRD_SSM}, 0 offen")
        e.op(f"buffer_load_dwordx4 {v(SS+4,4)}, {v(vSs)}, {SRD_SSM}, 0 offen offset:16")
        tS = e.op(f"buffer_load_dword {v(SS+8)}, {v(vSp)}, {SRD_SSM}, 0 offen")
        tk = {}
        WF, KF, AC, VF, PK = 96, 176, 112, 208, 224
        self.stamp("issued")
        e.wait(tK)
        self.stamp("kin")
        work = []
        for c in range(4):
            for j in range(4): work.append(unpack(WF+4*j+c, SH+2*c+j//2, j & 1))
        for r in range(7):
            for c in range(4): work.append(unpack(KF+4*r+c, K+2*r+c//2, c & 1))
        for j in (3, 2, 1, 0):
            for r in range(4):
                for p in (0, 2):
                    d_, k_, w_ = v(AC+4*r+p, 2), v(KF+4*(r+3-j)+p, 2), v(WF+4*j+p, 2)
                    work.append(f"v_pk_mul_f32 {d_}, {k_}, {w_}" if j == 3 else f"v_pk_fma_f32 {d_}, {k_}, {w_}, {d_}")
        for t in work: e(t)
        e.wait(tV)
        self.stamp("vin")
        for r in range(4):
            for c in range(4): e(unpack(VF+4*r+c, V_+2*r+c//2, c & 1))
        for r in range(4):
            for p in (0, 2):
                e(f"v_pk_mul_f32 {v(AC+4*r+p,2)}, {v(AC+4*r+p,2)}, {v(VF+4*r+p,2)}")
        tb = []
        for c in range(4):
            e(f"v_cvt_pk_bf16_f32 {v(PK+2*c)}, {v(AC+12+c)}, {v(AC+8+c)}")
            e(f"v_cvt_pk_bf16_f32 {v(PK+2*c+1)}, {v(AC+4+c)}, {v(AC+c)}")
            e.op(f"ds_bpermute_b32 {v(G+4*c)}, {v(vBk)}, {v(PK+2*c)}")
            tb.append(e.op(f"ds_bpermute_b32 {v(G+4*c+1)}, {v(vBk)}, {v(PK+2*c+1)}"))
        for c in range(4):
            e.wait(tb[c])
            tkst = e.op(f"buffer_store_dwordx4 {v(G+4*c,4)}, {v(vGs)}, {SRD_WS}, {sT[4+c]} offen sc1")
        self.stamp("kv")
        e.wait(tS)
        CB = 96
        e(f"v_alignbit_b32 {v(CB)}, {v(SS)}, {v(SS+8)}, 16")
        for i in range(1, 8): e(f"v_alignbit_b32 {v(CB+i)}, {v(SS+i)}, {v(SS+i-1)}, 16")
        e.op(f"ds_write_b128 {v(vTw)}, {v(SS,4)}")
        e.op(f"ds_write_b128 {v(vTw)}, {v(SS+4,4)} offset:16")
        e.op(f"ds_write_b128 {v(vTw)}, {v(CB,4)} offset:4256")
        e.op(f"ds_write_b128 {v(vTw)}, {v(CB+4,4)} offset:4272")
        e(f"s_mov_b32 {sT[0]}, 0x05040100")
        e(f"s_mov_b32 {sT[1]}, 0x07060302")
        for c in range(4):
            e(f"v_perm_b32 {v(PK+2*c)}, {v(X+2+c//2)}, {v(X+c//2)}, {sT[c&1]}")
            e(f"v_perm_b32 {v(PK+2*c+1)}, {v(X+6+c//2)}, {v(X+4+c//2)}, {sT[c&1]}")
            e.op(f"ds_bpermute_b32 {v(G2+4*c)}, {v(vBx)}, {v(PK+2*c)}")
            e.op(f"ds_bpermute_b32 {v(G2+4*c+1)}, {v(vBx)}, {v(PK+2*c+1)}")
        def xstores():
            for c in range(4): e.op(f"buffer_store_dwordx4 {v(G2+4*c,4)}, {v(vGs)}, {SRD_WS}, {sT[8+c]} offen sc1")
        sKVG, sXG, sHH, sMOD, sST1, sAS = sP[0], sP[1], sP[2], sP[3], sP[4], sP[5]
        e(f"s_mul_i32 {sT[0]}, {sD0}, {PP//2}")
        e(f"s_add_u32 {sKVG}, {sT[0]}, {WS_KVG}")
        e(f"s_add_u32 {sXG}, {sT[0]}, {WS_XG}")
        e(f"s_mov_b32 {sST1}, {WS_ST1}")
        e(f"s_lshr_b32 {sMOD}, {sD0}, 2")
        e(f"s_lshl_b32 {sMOD}, {sMOD}, 4")
        e(f"s_add_u32 {sMOD}, {sMOD}, {WS_MOD}")
        e(f"s_lshl_b32 {sT[0]}, {sW}, 11")
        e(f"s_add_u32 {sHH}, {sXG}, {sT[0]}")
        e(f"s_lshl_b32 {sT[0]}, {sCH}, 6")
        e(f"s_lshl_b32 {sT[1]}, {sHW}, 12")
        e(f"s_add_u32 {sT[0]}, {sT[0]}, {sT[1]}")
        e(f"s_add_u32 {sAS}, {sKVG}, {sT[0]}")
        e(f"s_add_u32 {sP[6]}, {sAS}, 8192")
        self.ln1_stats(LR, GS, 27)()
        self.stamp("tkbar")
        ws = WStream(e)
        ws.pace, ws.lag = o("pace", 64), o("lag", 12)
        ws.limit, ws.rlimit = 56, 56
        ws.skip = str(o("skip", ""))
        ws.burst(o("w0", 0))
        KG = 32
        def kvloads():
            for i in range(4): t = e.op(f"buffer_load_dwordx4 {v(KG+4*i,4)}, v9, {SRD_WS}, {sKVG} offen offset:{1024*i} sc1")
            return t
        def treg(rl, p, off=0, n=4):
            return v(160 + (rl*8+p)*4 + off, n) if rl < 3 else a_(224 + p*4 + off, n)
        tr = []
        for pp in range(4):
            for p in (2*pp, 2*pp+1):
                for rl in range(4):
                    def f(pp=pp, p=p, rl=rl):
                        of = rl*16 + (p & 1)*128
                        e.op(f"ds_read2_b32 {treg(rl,p,0,2)}, v2 offset0:{of} offset1:{of+1}")
                        e.op(f"ds_read2_b32 {treg(rl,p,2,2)}, v2 offset0:{of+2} offset1:{of+3}")
                        if (p & 1) and rl == 3 and pp < 3: e("v_add_u32 v2, 1024, v2")
                    tr.append(f)
        kvat = o("kvat", 16)
        for f in tr[:kvat]: f()
        self.stamp("stc")
        e.wait(tkst)
        self.stamp("clr")
        tkv = kvloads()
        xstores()
        if self.stop <= 1: return self.finish()
        weave(tr[kvat:], [lambda: ws.burst(1)] * o("w1", 0))
        self.stamp("toep")
        e.wait(tkv)
        self.checked(kvloads, lambda: self.tagcheck([KG+4*i for i in range(4)]), 0)
        for i in range(4): e.op(f"ds_write_b64 v3, {v(KG+4*i,2)} offset:{512*i}")
        e.waitall(vm=False)
        e("s_barrier")
        self.stamp("kvin")

        BR, DA, NB = 64, 96, 6
        XQ, SQ, MQ, EE, GG, KVR, RS, MR = 128, 144, 88, 32, 48, 144, 152, 156
        cA, cB, cC, cD = 25, 26, 22, 23
        seq = [(rl, m) for rl in range(4) for m in range(8)]
        btok = {}
        def bread(n):
            rl, m = seq[n]
            btok[n] = e.op(f"ds_read_b128 {v(BR+4*(n%NB),4)}, v5 offset:{rl*64 + (7-m)*512}")
        mm = []
        for n, (rl, m) in enumerate(seq):
            for p in range(8 - m):
                def f(n=n, rl=rl, m=m, p=p):
                    if p == 0: e.wait(btok[n])
                    c_ = "0" if (rl == 0 and m == 0) else v(DA+4*(p+m), 4)
                    e(f"v_mfma_f32_16x16x32_bf16 {v(DA+4*(p+m),4)}, {treg(rl,p)}, {v(BR+4*(n%NB),4)}, {c_}")
                    if p == 0 and n + NB - 1 < 32: bread(n + NB - 1)
                mm.append(f)
        for n in range(NB - 1): bread(n)
        def sloads():
            for i in range(4): t = e.op(f"buffer_load_dwordx4 {v(SQ+4*i,4)}, v9, {SRD_WS}, {sST1} offen offset:{1024*i} sc1")
            return t
        def xloads():
            for i in range(4): e.op(f"buffer_load_dwordx4 {v(XQ+4*i,4)}, v9, {SRD_WS}, {sXG} offen offset:{1024*i} sc1")
            return e.op(f"buffer_load_dwordx4 {v(MQ,4)}, v8, {SRD_WS}, {sMOD} offen sc1")
        def hoff(T): return 8192*(T & 1) + (WS_HL - WS_XG)*(T >> 1)
        def clear_h(T):
            if o("noclrh", 0):
                tk["ch"] = None
                return
            with e.atomic():
                e(f"s_add_u32 {sT[0]}, {sHH}, {hoff(T)}")
                e.op(f"buffer_store_dwordx4 v[12:15], v24, {SRD_WS}, {sT[0]} offen sc1")
                tk["ch"] = e.op(f"buffer_store_dwordx4 v[12:15], v24, {SRD_WS}, {sT[0]} offen offset:1024 sc1")
        fill = []
        F_ = fill.append
        def I(txt): F_(lambda: e(txt))
        def f():
            e.wait(tk["s"])
            self.checked(sloads, lambda: self.tagcheck([SQ+4*i for i in range(4)]), 1)
        F_(f)
        for i in range(4):
            q = SQ + 4*i
            for r in range(2):
                I(f"v_and_b32 {v(q+2+r)}, {sMASK}, {v(q+r)}")
                I(f"v_rcp_f32 {v(q+2+r)}, {v(q+2+r)}")
                I(f"v_lshlrev_b32 {v(q+r)}, 16, {v(q+r)}")
                I(f"v_mul_f32 {v(q+r)}, -{v(q+r)}, {v(q+2+r)}")
            F_(lambda q=q, i=i: e.op(f"ds_write_b64 v30, {v(q+2,2)} offset:{512*i}"))
            def f(q=q, i=i): tk["w"] = e.op(f"ds_write_b64 v30, {v(q,2)} offset:{8192+512*i}")
            F_(f)
        def f():
            e.wait(tk["x"])
            self.checked(xloads, lambda: self.tagcheck([XQ+4*i for i in range(4)] + [MQ]), 2)
        F_(f)
        def f():
            e.wait(tk["w"])
            e("s_barrier")
            with e.atomic():
                e(f"s_lshl_b32 {sT[0]}, {sI}, 2")
                e(f"s_add_u32 {sT[0]}, {sT[0]}, {sW}")
                e(f"s_cmp_lg_u32 {sT[0]}, 0")
                e("s_cbranch_scc1 L_noflag")
                e(f"s_lshl_b32 {sT[0]}, {sJR}, 7")
                e("v_lshrrev_b32 v27, 2, v0")
                e("v_lshlrev_b32 v27, 25, v27")
                e("v_and_or_b32 v27, v24, 63, v27")
                e(f"buffer_store_dwordx4 {v(GS,4)}, v27, {SRD_WS}, {sT[0]} offen offset:{WS_GF} sc1")
                e.vm.pop()
                e.label("L_noflag")
        F_(f)
        def f():
            with e.atomic():
                e(f"s_bitcmp1_b32 {sD0}, 1")
                e("s_cselect_b64 vcc, -1, 0")
        F_(f)
        I(f"v_cndmask_b32 {v(MQ)}, {v(MQ)}, {v(MQ+1)}, vcc")
        I(f"s_lshl_b32 {sT[1]}, {sCH}, 4")
        I(f"v_lshrrev_b32 {v(MQ)}, {sT[1]}, {v(MQ)}")
        I(f"v_lshlrev_b32 {v(MQ)}, 16, {v(MQ)}")
        I(f"v_add_f32 {v(MQ+1)}, 1.0, {v(MQ)}")
        F_(lambda: self.bfround(MQ+1))
        I(f"v_mov_b32_dpp {v(cB)}, {v(MQ)} quad_perm:[0,0,0,0] row_mask:0xf bank_mask:0xf")
        I(f"v_mov_b32_dpp {v(cD)}, {v(MQ)} quad_perm:[2,2,2,2] row_mask:0xf bank_mask:0xf")
        I(f"v_mov_b32_dpp {v(cA)}, {v(MQ+1)} quad_perm:[1,1,1,1] row_mask:0xf bank_mask:0xf")
        I(f"v_mov_b32_dpp {v(cC)}, {v(MQ+1)} quad_perm:[3,3,3,3] row_mask:0xf bank_mask:0xf")
        I(f"v_mul_f32 {v(cA)}, {v(cA)}, {v(cD)}")
        I(f"v_mul_f32 {v(cB)}, {v(cB)}, {v(cD)}")
        for t in range(4):
            def f(t=t):
                e.op(f"ds_read_b64 {v(KVR+2*t,2)}, v6 offset:{512*(3-t)}")
                e.op(f"ds_read_b128 {v(RS,4)}, v7 offset:{1024*t}")
                tk["r"] = e.op(f"ds_read_b128 {v(MR,4)}, v7 offset:{8192+1024*t}")
            F_(f)
            for r in range(4): I(unpack(EE+4*t+r, XQ+4*t+r//2, r & 1))
            F_(lambda: e.wait(tk["r"]))
            for r in range(4):
                g_, x_ = v(GG+4*t+r), v(EE+4*t+r)
                I(f"v_fma_f32 {g_}, {x_}, {v(RS+r)}, {v(MR+r)}")
                I(unpack(RS+r, KVR+2*t+1-r//2, not (r & 1)))
                I(f"v_fma_f32 {g_}, {g_}, {v(cA)}, {v(cB)}")
                I(f"v_mul_f32 {v(RS+r)}, {sDV}, {v(RS+r)}")
                I(f"v_fmac_f32 {x_}, {g_}, {v(RS+r)}")
        c0, cs_, cx = o("cv0", 64), o("cvs", 8), o("cvx", 24)
        weave(mm[:cs_], [])
        tk["s"] = sloads()
        weave(mm[cs_:cx], [])
        tk["x"] = xloads()
        ws.arm(o("cvw", 3))
        weave(mm[cx:c0], [])
        weave(mm[c0:], fill)
        ws.banned = {"lo"}
        e.hook = None
        self.stamp("conv")
        Y = 64
        e(f"s_cmp_eq_u32 {sHW}, 0")
        e("s_cbranch_scc0 L_red1")
        save = (list(e.vm), list(e.lg))
        for hw in (0, 1):
            if hw:
                e.label("L_red1"); e("s_nop 7")
                e.vm, e.lg = list(save[0]), list(save[1])
            keep, send = DA + 16*hw, DA + 16*(1-hw)
            for t in range(4): e.op(f"ds_write_b128 v28, {v(send+4*t,4)} offset:{1024*t}")
            e.waitall(vm=False)
            e("s_barrier")
            rt = [e.op(f"ds_read_b128 {v(Y+4*t,4)}, v29 offset:{1024*t}") for t in range(4)]
            for t in range(4):
                e.wait(rt[t])
                for p in (0, 2): e(f"v_pk_add_f32 {v(Y+4*t+p,2)}, {v(Y+4*t+p,2)}, {v(keep+4*t+p,2)}")
            if not hw: e("s_branch L_red2")
        e.label("L_red2")
        PX, PA = 80, 88
        def pubq(q, so, off):
            e(f"v_permlane16_swap_b32 {v(q)}, {v(q+2)}")
            e(f"v_permlane16_swap_b32 {v(q+1)}, {v(q+3)}")
            e(f"v_min_u32 {v(q+3)}, -2, {v(q+3)}")
            tk["as"] = e.op(f"buffer_store_dwordx4 {v(q,4)}, v4, {SRD_WS}, {so} offen offset:{off} sc1")
        for pi in range(2):
            for t in (2*pi, 2*pi+1):
                for p in (0, 2):
                    y_ = v(Y+4*t+p, 2)
                    e(f"v_pk_fma_f32 {y_}, {v(GG+4*t+p,2)}, {y_}, {v(EE+4*t+p,2)}")
                    e(f"v_pk_mul_f32 {v(GG+4*t+p,2)}, {y_}, {v(cC,2)} op_sel_hi:[1,0]")
                    e(f"v_cvt_pk_bf16_f32 {v(PA+2*t+p//2)}, {v(GG+4*t+p)}, {v(GG+4*t+p+1)}")
                    e(f"v_cvt_pk_bf16_f32 {v(PX+2*t+p//2)}, {v(Y+4*t+p)}, {v(Y+4*t+p+1)}")
            pubq(PA+4*pi, sAS, 2048*pi)
        for pi in range(2): pubq(PX+4*pi, sP[6], 2048*pi)
        self.stamp("a1st")
        if self.stop <= 2: return self.finish()

        e("v_min_u32 v2, 96, v24")
        e("v_lshlrev_b32 v2, 3, v2")
        def fload(): tk["f"] = e.op(f"buffer_load_dwordx4 v[32:35], v2, {SRD_WS}, 0 offen offset:{WS_GF} sc1")
        fload()
        ws.drain_keep(0)
        ws.burst(o("w2", 8))
        sST2, sHS, sMT, sOUT, sUT = sP[0], sP[1], sP[3], sP[4], sP[5]
        sA = [f"s{4+i}" for i in range(7)]
        e("v_bfe_u32 v25, v0, 3, 3")
        e(f"v_mul_u32_u24 v25, {PP}, v25")
        e("v_and_b32 v5, 7, v0")
        e("v_lshl_add_u32 v25, v5, 4, v25")
        e(f"s_mul_i32 {sT[0]}, {sW}, 7168")
        e(f"v_add_u32 v26, {sT[0]}, v24")
        e(f"s_mul_i32 {sT[0]}, {sW}, {56*PP}")
        e(f"s_lshl_b32 {sT[1]}, {sRB}, 9")
        e(f"s_add_u32 {sT[0]}, {sT[0]}, {sT[1]}")
        for i in range(7): e(f"s_add_u32 {sA[i]}, {sT[0]}, {WS_KVG + 8*PP*i}")
        e("v_and_b32 v30, 31, v0")
        e("v_mul_u32_u24 v8, 272, v30")
        e("v_lshlrev_b32 v30, 4, v30")
        e(f"s_lshl_b32 {sST2}, {sRB}, 11")
        e(f"s_add_u32 {sST2}, {sST2}, {WS_ST2}")
        e(f"s_and_b32 {sT[1]}, {sX}, 1")
        e(f"s_lshl_b32 {sMT}, {sRB}, 2")
        e(f"s_add_u32 {sMT}, {sMT}, {sT[1]}")
        e(f"s_lshl_b32 {sT[1]}, {sT[1]}, 1")
        e(f"s_add_u32 {sT[1]}, {sT[1]}, {sHW}")
        e(f"s_lshl_b32 {sT[1]}, {sT[1]}, 12")
        e(f"s_and_b32 {sT[0]}, {sX}, 6")
        e(f"s_add_u32 {sT[0]}, {sT[0]}, {sCH}")
        e(f"s_lshl_b32 {sT[0]}, {sT[0]}, 2")
        e(f"s_add_u32 {sT[0]}, {sT[0]}, {sJQ}")
        e(f"s_mul_i32 {sHS}, {sT[0]}, {PP}")
        e(f"s_add_u32 {sHS}, {sHS}, {sT[1]}")
        e(f"s_add_u32 {sHS}, {sHS}, {WS_XG}")
        e(f"s_lshl_b32 {sUT}, {sFS}, 2")
        e(f"s_add_u32 {sUT}, {sUT}, {sW}")
        e(f"s_lshl_b32 {sUT}, {sUT}, 9")
        e(f"s_add_u32 {sUT}, {sUT}, {WS_UT}")
        e(f"s_add_u32 {sP[6]}, {sUT}, 28672")
        e("v_lshlrev_b32 v3, 5, v5")
        e("v_lshrrev_b32 v6, 3, v0")
        e("v_lshlrev_b32 v9, 4, v6")
        e("v_bfe_u32 v7, v0, 5, 1")
        e(f"s_mul_i32 {sT[1]}, {sW}, 8704")
        e(f"v_lshl_add_u32 v7, v7, 4, {sT[1]}")
        e("v_add_u32 v8, v8, v7")
        e("v_mul_u32_u24 v28, 272, v6")
        e("v_add_u32 v28, v28, v3")
        e("v_lshlrev_b32 v29, 9, v5")
        e("v_lshl_add_u32 v29, v6, 1, v29")
        e(f"v_add_u32 v29, {L_X1}, v29")
        e("v_mul_u32_u24 v31, 896, v6")
        e("v_lshl_add_u32 v31, v5, 4, v31")
        e(f"s_mul_i32 {sOUT}, {sMT}, 28672")
        e(f"s_lshl_b32 {sT[1]}, {sJR}, 7")
        e(f"s_add_u32 {sOUT}, {sOUT}, {sT[1]}")
        e(f"s_lshl_b32 {sT[8]}, {sJR}, 8")
        e(f"s_add_u32 {sT[8]}, {sT[8]}, {WS_MOD + 560*16}")
        e(f"s_lshl_b32 {sT[9]}, {sMT}, 9")
        e(f"s_add_u32 {sT[9]}, {sT[9]}, {WS_ST2}")
        e(f"s_lshl_b32 {sT[0]}, {sJR}, 2")
        e(f"s_add_u32 {sT[0]}, {sT[0]}, {sW}")
        e(f"s_mul_i32 {sT[10]}, {sT[0]}, {8*PP}")
        e(f"s_lshl_b32 {sT[0]}, {sMT}, 7")
        e(f"s_add_u32 {sT[10]}, {sT[10]}, {sT[0]}")
        e(f"s_add_u32 {sT[10]}, {sT[10]}, {WS_KVG + 8192}")
        e(f"s_lshl_b32 {sT[11]}, {sW}, 10")
        BR, ACC, PH, XA, SG = 32, [64, 96], 48, [56, 156], [60, 4]
        AS = [128, 96, 128, 128]
        def aload1(T, i):
            tk["a", T] = e.op(f"buffer_load_dwordx4 {v(AS[T]+4*i,4)}, v25, {SRD_WS}, {sA[i]} offen offset:{128*T} sc1")
        def aloads(T):
            for i in range(7): aload1(T, i)
        def acheck(T):
            e.wait(tk["a", T])
            self.checked(lambda: aloads(T), lambda: self.sentcheck([AS[T]+4*i for i in range(7)], 27), 4 + T)
        def awrite(T, i):
            tk["aw"] = e.op(f"ds_write_b128 v26, {v(AS[T]+4*i,4)} offset:{28672*(T&1) + 1024*i}")
        e.wait(tk["f"])
        self.checked(fload, lambda: self.tagcheck([32]), 27)
        self.stamp("asd")
        aloads(0)
        ws.drain_done()
        assert not any(p[1] == "lo" for p in ws.pend)
        e.waitall(vm=False)
        e("s_barrier")
        ws.free += [("ext", i, None) for i in range(10)]
        ws.limit, ws.rlimit = 112, 88
        ws.burst(o("w3", 8))
        acheck(0)
        self.stamp("a0in")
        for i in range(7): awrite(0, i)
        e.wait(tk["aw"])
        e("s_barrier")
        self.stamp("g1go")

        bt = {}
        def bread1(n):
            T, ks = divmod(n, 28)
            off = 28672*(T & 1) + 1024*ks
            e.op(f"ds_read_b64_tr_b16 {v(BR+4*(n%4),2)}, v11 offset:{off}")
            bt[n] = e.op(f"ds_read_b64_tr_b16 {v(BR+4*(n%4)+2,2)}, v11 offset:{off + 256}")
        def sgload(T):
            tk["sg", T] = e.op(f"buffer_load_dwordx4 {v(SG[T&1],4)}, v30, {SRD_WS}, {sST2} offen offset:{512*T} sc1")
        def utload():
            e.op(f"buffer_load_dwordx4 {v(XA[0],4)}, v30, {SRD_WS}, {sUT} offen sc1")
            tk["ut"] = e.op(f"buffer_load_dwordx4 {v(XA[1],4)}, v30, {SRD_WS}, {sP[6]} offen sc1")
        def utcheck():
            e.wait(tk["ut"])
            self.checked(utload, lambda: self.tagcheck(XA), 3)
            with e.atomic():
                e("s_mov_b32 exec_lo, 0")
                for q in XA:
                    e(f"v_mov_b32 {v(q)}, 0")
                    e(f"v_mov_b32 {v(q+1)}, 0")
                e("s_mov_b32 exec_lo, -1")
        def extra(T):
            A = ACC[T & 1]
            e.wait(tk["sg", T])
            self.checked(lambda: sgload(T), lambda: self.tagcheck([SG[T&1]]), 8 + T)
            for m in range(2):
                e(f"v_mfma_f32_32x32x8_bf16 {v(A+16*m,16)}, {v(XA[m],2)}, {v(SG[T&1],2)}, {v(A+16*m,16)}")
        nop = lambda: None
        def epi(T):
            ops = []
            A = ACC[T & 1]
            for r in range(16):
                ops.append(lambda r=r: e(f"v_max_f32 {v(A+r)}, 0, {v(A+r)}"))
                ops.append(lambda r=r: e(f"v_mul_f32 {v(A+r)}, {v(A+r)}, {v(A+16+r)}"))
                if r & 1: ops.append(lambda r=r: e(f"v_cvt_pk_bf16_f32 {v(PH+r//2)}, {v(A+r-1)}, {v(A+r)}"))
                if r % 8 == 7:
                    def g(ph=r//8):
                        e(f"v_min_u32 {v(PH+4*ph+3)}, -2, {v(PH+4*ph+3)}")
                        if ph == 0:
                            e(f"s_add_u32 {sT[6]}, {sHH}, {hoff(T)}")
                            e.wait(tk["ch"])
                        tk["hs"] = e.op(f"buffer_store_dwordx4 {v(PH+4*ph,4)}, v24, {SRD_WS}, {sT[6]} offen offset:{1024*ph} sc1")
                    ops.append(g)
            return ops
        htok = {}
        def hload(stage, ks, so=sT[7]):
            with e.atomic():
                if ks % 4 == 0: e(f"s_add_u32 {so}, {sHS}, {(WS_HL - WS_XG)*stage + 32*PP*(ks//4)}")
                htok[stage, ks] = e.op(f"buffer_load_dwordx4 {a_(4*ks,4)}, v24, {SRD_WS}, {so} offen offset:{1024*(ks%4)} sc1")
        GB, XR, R2 = 128, 136, 152
        def gloads():
            e.op(f"buffer_load_dwordx4 {v(XR,4)}, v3, {SRD_WS}, {sT[8]} offen sc1")
            e.op(f"buffer_load_dwordx4 {v(XR+4,4)}, v3, {SRD_WS}, {sT[8]} offen offset:16 sc1")
            e.op(f"buffer_load_dwordx4 {v(XR+8,4)}, v9, {SRD_WS}, {sT[9]} offen sc1")
            tk["g"] = e.op(f"buffer_load_dwordx4 {v(XR+12,4)}, v9, {SRD_WS}, {sT[9]} offen offset:1024 sc1")
        def gcheck():
            e.wait(tk["g"])
            self.checked(gloads, lambda: self.tagcheck([XR+4*i for i in range(4)]), 26)
            with e.atomic():
                e(f"s_add_u32 m0, {sT[11]}, {L_X1}")
                e.op(f"buffer_load_dwordx4 v25, {SRD_WS}, {sT[10]} offen sc1 lds")
                e(f"s_add_u32 m0, {sT[11]}, {L_X1 + 4096 - 256}")
                tk["x1"] = e.op(f"buffer_load_dwordx4 v25, {SRD_WS}, {sT[10]} offen offset:256 sc1 lds")
                ws.grp = None
        gops = [lambda r=r: e(unpack(GB+r, XR + 4*(r//4) + (r//2) % 2, r & 1)) for r in range(8)]
        for st in range(2):
            gops += [lambda st=st: e(f"v_and_b32 {v(R2+st)}, {sMASK}, {v(XR+8+4*st)}"),
                     lambda st=st: e(f"v_mul_f32 {v(R2+st)}, {v(R2+st)}, {v(R2+st)}"),
                     lambda st=st: e(f"v_rcp_f32 {v(R2+st)}, {v(R2+st)}")]
        for n in range(3): bread1(n)
        ws.drain_done()
        ws.pace = o("pace1", 72)
        ws.arm(3)
        for T in range(4):
            A = ACC[T & 1]
            mm = []
            for ks in range(28):
                n = 28*T + ks
                for m in range(2):
                    def f(n=n, ks=ks, m=m):
                        if m == 0: e.wait(bt[n])
                        if n < 28: ws.need("gu"[m], ks)
                        c_ = "0" if ks == 0 else v(A+16*m, 16)
                        e(f"v_mfma_f32_32x32x16_bf16 {v(A+16*m,16)}, {a_(112*m+4*ks,4)}, {v(BR+4*(n%4),4)}, {c_}")
                        if m == 0 and n + 3 < 112:
                            if ks == 25:
                                with e.atomic():
                                    e.wait(tk["aw"], bt[n+2]); e("s_barrier")
                            bread1(n + 3)
                    mm.append(f)
            wr = lambda T2: [lambda: acheck(T2)] + [lambda i=i: awrite(T2, i) for i in range(7)]
            ld = lambda T2: [lambda i=i: aload1(T2, i) for i in range(7)]
            if T == 0:
                weave(mm[:14], ld(1))
                weave(mm[14:36], [])
                weave(mm[36:48], wr(1))
                weave(mm[48:], ld(2)[:3])
            elif T == 1:
                weave(mm[:20], ld(2)[3:] + [utload, lambda: sgload(0), lambda: sgload(1), lambda: clear_h(2), nop, lambda: clear_h(3), nop])
                weave(mm[20:28], [])
                weave(mm[28:38], wr(2))
                weave(mm[38:], [utcheck, lambda: extra(0), lambda: extra(1), lambda: sgload(2), lambda: sgload(3)] + [nop]*4 + epi(0), 0, 17)
            elif T == 2:
                fo = [nop]*6 + epi(1)
                for i, f in enumerate(ld(3)): fo.insert(6*i, f)
                weave(mm[:20], fo)
                weave(mm[20:38], [lambda: extra(2)], 8, 10)
                weave(mm[38:48], wr(3))
                weave(mm[48:], [gloads], 4, 8)
            else:
                fo = [nop]*6 + epi(2) + [lambda: extra(3), nop, nop, gcheck] + gops
                def prog(f, i):
                    f(); ws.hmax = (i + 1) // 2
                ws.hload = hload
                weave([lambda f=f, i=i: prog(f, i) for i, f in enumerate(mm)], fo, 0, 50)
            self.stamp(f"t{T}")
        if self.stop <= 3:
            for op in epi(3): op()
            return self.finish()

        def hreload(stage, g, last):
            for ks in range(4*g, last): hload(stage, ks, sT[4])
        def stage_mm(stage):
            A = ACC[stage]
            mm = []
            for ks in range(28):
                for nt in range(2):
                    def f(ks=ks, nt=nt):
                        if nt == 0 and ks % 4 == 0:
                            g = ks // 4
                            ws.hneed(28*stage + ks + 3)
                            last = min(ws.hnext - 28*stage, 28)
                            e.wait(htok[stage, ks+3])
                            self.checked(lambda: hreload(stage, g, last), lambda: self.sentcheck([16*g+4*i for i in range(4)], 12, acc=True), 12 + 7*stage + g)
                        if nt == 0 and stage == 0: ws.need("d", 2*ks + 1)
                        c_ = "0" if ks == 0 else v(A+16*nt, 16)
                        e(f"v_mfma_f32_32x32x16_bf16 {v(A+16*nt,16)}, {ws.dreg(ks,nt)}, {a_(4*ks,4)}, {c_}")
                        if stage == 0 and nt == 1 and 2*ks + 1 >= l0: ws.hmax = 28 + ks + 1
                    mm.append(f)
            return mm
        def stage_out(stage):
            A, sum_, tmp = ACC[stage], 32, 40
            ops = []
            O = ops.append
            for nt in range(2):
                for g in range(4):
                    O(lambda nt=nt, g=g: e.op(f"ds_write_b128 v8, {v(A+16*nt+4*g,4)} offset:{L_RED[stage] + 128*nt + 32*g}"))
            def f():
                e.wait(tk["x1"])
                e.waitall(vm=False)
                e("s_barrier")
            O(f)
            rt = {}
            for w_ in range(4):
                def f(w_=w_):
                    dst = sum_ if w_ == 0 else tmp + 8*(w_-1)
                    e.op(f"ds_read_b128 {v(dst,4)}, v28 offset:{L_RED[stage] + 8704*w_}")
                    rt[w_] = e.op(f"ds_read_b128 {v(dst+4,4)}, v28 offset:{L_RED[stage] + 8704*w_+16}")
                O(f)
            if stage == 0:
                for r in range(16):
                    def f(r=r): rt["x"] = e.op(f"ds_read_u16 {v(XR+r)}, v29 offset:{4096*(r//8) + 64*(r%8)}")
                    O(f)
            for w_ in range(1, 4):
                O(lambda w_=w_: e.wait(rt[w_]))
                for p in range(0, 8, 2):
                    O(lambda w_=w_, p=p: e(f"v_pk_add_f32 {v(sum_+p,2)}, {v(sum_+p,2)}, {v(tmp+8*(w_-1)+p,2)}"))
            if stage == 0:
                O(lambda: e.wait(rt["x"]))
                for r in range(16): O(lambda r=r: e(f"v_lshlrev_b32 {v(XR+r)}, 16, {v(XR+r)}"))
            for p in range(0, 8, 2):
                O(lambda p=p: e(f"v_pk_mul_f32 {v(sum_+p,2)}, {v(sum_+p,2)}, {v(R2,2)} op_sel:[0,{stage}] op_sel_hi:[1,{stage}]"))
                O(lambda p=p: e(f"v_pk_fma_f32 {v(sum_+p,2)}, {v(sum_+p,2)}, {v(GB+p,2)}, {v(XR+8*stage+p,2)}"))
                O(lambda p=p: e(f"v_cvt_pk_bf16_f32 {v(tmp+p//2)}, {v(sum_+p)}, {v(sum_+p+1)}"))
            def f():
                e(f"s_add_u32 {sT[0]}, {sOUT}, {57344*stage}")
                e.op(f"buffer_store_dwordx4 {v(tmp,4)}, v31, {SRD_OUT}, {sT[0]} offen {'sc1' if o('outsc1', 0) else ''}")
            O(f)
            return ops
        l0 = o("l0", 30)
        ws.rlimit = 112
        ws.pace = o("pace2", 56)
        mm = stage_mm(0)
        weave(mm[:10], epi(3), 2, 10)
        self.stamp("g1end")
        weave(mm[10:40], [])
        e("s_barrier")
        weave(mm[40:], [])
        self.stamp("g2m")
        ws.pace = o("pace3", 24)
        for f in stage_out(0): f()
        ws.hneed(55)
        e.hook = None
        self.stamp("g2e")
        for f in stage_mm(1): f()
        self.stamp("g2l")
        for f in stage_out(1): f()
        e("s_cmp_lg_u32 s2, 0")
        e("s_cbranch_scc1 L_noepoch")
        e("v_mov_b32 v2, s46")
        e("v_lshlrev_b32 v4, 25, v0")
        e("v_lshrrev_b32 v5, 7, v0")
        e("v_lshl_or_b32 v4, v5, 25, v4")
        e.op(f"buffer_store_dword v2, v4, {SRD_WS}, 0 offen")
        e.label("L_noepoch")
        self.stamp("out")
        self.finish()

    def helper(self):
        e = self.e
        self.srd(SRD_C, 80, 896)
        self.srd(SRD_WM, 88, 2408448)
        e(f"s_lshr_b32 {sRB}, {sX}, 1")
        e(f"s_lshl_b32 {sRB}, {sRB}, 2")
        e(f"s_add_u32 {sRB}, {sRB}, {sJR}")
        e(f"s_cmp_ge_u32 {sRB}, 7")
        e(f"s_cselect_b32 {sP[6]}, 1, 0")
        e(f"s_cselect_b32 {sT[0]}, 64, 56")
        e(f"s_load_dwordx2 s[28:29], s[0:1], {sT[0]}")
        e("s_mov_b32 s30, 1605632")
        e("s_mov_b32 s31, 0x20000")
        e(f"s_and_b32 {sT[0]}, {sX}, 1")
        e(f"s_sub_u32 {sT[0]}, {sT[0]}, {sP[6]}")
        e(f"s_mul_i32 {sT[0]}, {sT[0]}, 7")
        e(f"s_add_u32 {sP[7]}, {sT[0]}, {sRB}")
        sH = sI
        e(f"s_lshl_b32 {sH}, {sJR}, 3")
        e(f"s_add_u32 {sH}, {sH}, {sX}")
        e(f"s_add_u32 {sT[0]}, {sH}, 7")
        e(f"s_sub_u32 {sT[1]}, {sH}, 7")
        e(f"s_cmp_lt_u32 {sH}, 28")
        e(f"s_cselect_b32 {sT[0]}, {sT[0]}, {sT[1]}")
        e(f"s_cmp_lt_u32 {sH}, 21")
        e(f"s_cselect_b32 {sP[0]}, {sH}, {sT[0]}")
        e(f"s_add_u32 {sT[0]}, {sH}, 25")
        e(f"s_add_u32 {sT[1]}, {sH}, 32")
        e(f"s_cmp_lt_u32 {sH}, 3")
        e(f"s_cselect_b32 {sP[1]}, {sT[0]}, {sT[1]}")
        self.unit_addr(10, 2, 5376)
        e(f"s_mul_i32 {sT[0]}, {sW}, {112*5376}")
        e(f"v_add_u32 v10, {sT[0]}, v10")
        e("v_lshlrev_b32 v3, 1, v0")
        e(f"s_mul_i32 {sP[2]}, {sW}, 14336")
        e("s_waitcnt lgkmcnt(0)")
        self.stamp(self.pts[0])
        e.op(f"buffer_load_ushort v32, v3, {SRD_C}, 0 offen")
        tc = e.op(f"buffer_load_ushort v33, v3, {SRD_C}, 0 offen offset:512")
        self.load_tag()
        LR, GS = 84, 160
        def mdma(task):
            e(f"s_lshl_b32 {sT[2]}, {sP[task]}, 7")
            for u in range(14):
                e(f"s_add_u32 m0, {sP[2]}, {57344*task + 1024*u}")
                e(f"s_add_u32 {sT[1]}, {sT[2]}, {43008*u}")
                t = e.op(f"buffer_load_dwordx4 v10, {SRD_WM}, {sT[1]} offen lds")
            return t
        tL = self.ln1_loads(6, LR)
        tm0 = mdma(0)
        L_SC, L_PART = 114688, 116736
        e.wait(tc)
        for r in (32, 33):
            e(f"v_lshlrev_b32 v{r}, 16, v{r}")
            e(f"v_mul_f32 v34, 0xbfb8aa3b, v{r}")
            e("v_exp_f32 v34, v34")
            e("v_add_f32 v34, 1.0, v34")
            e("v_rcp_f32 v34, v34")
            e(f"v_mul_f32 v{r}, v{r}, v34")
            e(f"v_cvt_pk_bf16_f32 v{r}, v{r}, v{r}")
        e(f"v_add_u32 v3, {L_SC}, v3")
        e("s_waitcnt lgkmcnt(0)")
        e.op("ds_write_b16 v3, v32")
        e.op("ds_write_b16 v3, v33 offset:512")
        self.make_tag()
        for q in (GS, GS+4):
            e(f"v_mov_b32 {v(q+2)}, s46")
            e(f"v_mov_b32 {v(q+3)}, s47")
        self.tr_addr(4, 2, 4)
        e(f"v_add_u32 v4, {sP[2]}, v4")
        e("v_bfe_u32 v5, v0, 5, 1")
        e(f"s_mul_i32 {sT[0]}, {sW}, 224")
        e(f"s_add_u32 {sT[0]}, {sT[0]}, {L_SC}")
        e(f"v_lshl_add_u32 v5, v5, 3, {sT[0]}")
        e("v_lshlrev_b32 v7, 2, v0")
        e(f"v_add_u32 v7, {L_PART}, v7")
        e("v_and_b32 v8, 15, v0")
        e("v_lshlrev_b32 v8, 4, v8")
        e("v_lshrrev_b32 v9, 4, v0")
        e("v_lshl_or_b32 v9, v9, 25, v8")
        e(f"v_add_u32 v8, {L_PART}, v8")
        e.wait(tL)
        self.ln1_stats(LR, GS, 6)()
        SC, WB, AC = 32, 192, 128
        for ks in range(7):
            e.op(f"ds_read_b64 {v(SC+4*ks,2)}, v5 offset:{32*ks}")
            e.op(f"ds_read_b64 {v(SC+4*ks+2,2)}, v5 offset:{32*ks+16}")
        def gemv(task):
            for ks in range(7):
                for nt in range(2):
                    for half in range(2):
                        e.op(f"ds_read_b64_tr_b16 {v(WB+8*ks+4*nt+2*half,2)}, v4 offset:{1024*(2*ks+half) + 512*nt}")
            e.waitall(vm=False)
            for ks in range(7):
                for nt in range(2):
                    c_ = "0" if ks == 0 else v(AC+16*nt, 16)
                    e(f"v_mfma_f32_32x32x16_bf16 {v(AC+16*nt,16)}, {v(SC+4*ks,4)}, {v(WB+8*ks+4*nt,4)}, {c_}")
            e("v_and_b32 v2, 32, v0")
            e("v_cmp_eq_u32 vcc, 0, v2")
            e(f"v_cndmask_b32 v2, {v(AC+16)}, {v(AC)}, vcc")
            e.op(f"ds_write_b32 v7, v2 offset:{1024*task}")
            e.waitall(vm=False)
            e("s_barrier")
            for w_ in range(4): e.op(f"ds_read_b128 {v(WB+4*w_,4)}, v8 offset:{1024*task + 256*w_}")
            e.waitall(vm=False)
            for w_ in range(1, 4):
                for p in (0, 2): e(f"v_pk_add_f32 {v(WB+p,2)}, {v(WB+p,2)}, {v(WB+4*w_+p,2)}")
            e(f"v_cvt_pk_bf16_f32 {v(GS+4)}, {v(WB)}, {v(WB+1)}")
            e(f"v_cvt_pk_bf16_f32 {v(GS+5)}, {v(WB+2)}, {v(WB+3)}")
            e(f"s_lshl_b32 {sT[0]}, {sP[task]}, 8")
            e(f"s_add_u32 {sT[0]}, {sT[0]}, {WS_MOD}")
            e.op(f"buffer_store_dwordx4 {v(GS+4,4)}, v9, {SRD_WS}, {sT[0]} offen sc1")
        e(f"s_cmp_lt_u32 {sH}, 10")
        e("s_cbranch_scc0 L_h_one")
        mdma(1)
        e.wait(tm0)
        e("s_branch L_h_go")
        e.label("L_h_one")
        e("s_waitcnt vmcnt(1)")
        e.label("L_h_go")
        gemv(0)
        self.stamp(self.pts[1])
        e(f"s_cmp_lt_u32 {sH}, 10")
        e("s_cbranch_scc0 L_h_two")
        e("v_add_u32 v4, 57344, v4")
        e.waitall(lg=False)
        gemv(1)
        e.label("L_h_two")
        self.stamp(self.pts[2])
        if self.stop <= 2: return self.finish()
        e("v_and_b32 v24, 63, v0")
        e("v_lshlrev_b32 v24, 4, v24")
        self.tr_addr(11, 2, 8)
        if self.opt.get("gate", 1):
            e(f"s_mul_i32 {sT[8]}, {sH}, {7*PP}")
            e(f"s_add_u32 {sT[8]}, {sT[8]}, {WS_XG}")
            e("v_and_b32 v2, 63, v24")
            self.poll(lambda: e.op(f"buffer_load_dwordx4 v[32:35], v2, {SRD_WS}, {sT[8]} offen sc1"), lambda: self.tagcheck([32]), nap=2, spin=8)
        self.stamp(self.pts[3])
        e(f"s_cmp_ge_u32 {sRB}, 14")
        e("s_cbranch_scc1 L_h_nout")
        e("v_bfe_u32 v10, v0, 2, 4")
        e("v_mul_u32_u24 v10, 3584, v10")
        e("v_and_b32 v2, 3, v0")
        e(f"s_lshl_b32 {sT[0]}, {sP[7]}, 2")
        e(f"s_add_u32 {sT[3]}, {sT[0]}, {sW}")
        e(f"s_lshl_b32 {sT[0]}, {sT[3]}, 6")
        e(f"v_lshl_add_u32 v2, v2, 4, {sT[0]}")
        e("v_add_u32 v10, v10, v2")
        e(f"s_mul_i32 {sT[2]}, {sW}, 28672")
        e(f"v_add_u32 v4, {sT[2]}, v11")
        for ks in range(28):
            e(f"s_add_u32 m0, {sT[2]}, {1024*ks}")
            e(f"s_mov_b32 {sT[1]}, {57344*ks}")
            e.op(f"buffer_load_dwordx4 v10, {SRD_WG}, {sT[1]} offen lds")
        VQ = 32
        e("v_min_u32 v2, 223, v0")
        e("v_lshlrev_b32 v3, 4, v2")
        e(f"s_mov_b32 {sT[8]}, {WS_MOD + 336*16}")
        self.poll(lambda: e.op(f"buffer_load_dwordx4 {v(VQ,4)}, v3, {SRD_WS}, {sT[8]} offen sc1"), lambda: self.tagcheck([VQ]), nap=4)
        for ks in range(28):
            e.op(f"ds_read_b64_tr_b16 {a_(4*ks,2)}, v4 offset:{1024*ks}")
            e.op(f"ds_read_b64_tr_b16 {a_(4*ks+2,2)}, v4 offset:{1024*ks+256}")
        e("v_cmp_le_u32 vcc, 112, v2")
        e("v_cndmask_b32 v5, 0, 1.0, vcc")
        for r in range(4):
            src = v(VQ + r//2)
            e(f"v_and_b32 {v(VQ+4+r)}, {sMASK}, {src}" if r & 1 else f"v_lshlrev_b32 {v(VQ+4+r)}, 16, {src}")
            e(f"v_add_f32 {v(VQ+4+r)}, v5, {v(VQ+4+r)}")
        e(f"v_cvt_pk_bf16_f32 {v(VQ)}, {v(VQ+4)}, {v(VQ+5)}")
        e(f"v_cvt_pk_bf16_f32 {v(VQ+1)}, {v(VQ+6)}, {v(VQ+7)}")
        e("v_lshlrev_b32 v2, 3, v2")
        e(f"v_add_u32 v2, {L_VEC}, v2")
        e.op(f"ds_write_b64 v2, {v(VQ,2)}")
        e("v_and_b32 v2, 1, v0")
        e("v_mul_u32_u24 v2, 896, v2")
        e("v_bfe_u32 v3, v0, 5, 1")
        e("v_lshlrev_b32 v5, 4, v3")
        e("v_sub_u32 v2, v5, v2")
        e(f"v_add_u32 v2, {L_VEC + 896}, v2")
        e("v_lshl_or_b32 v3, v3, 25, v24")
        e(f"s_lshl_b32 {sT[3]}, {sT[3]}, 9")
        e(f"s_mul_i32 {sT[0]}, {sP[6]}, 28672")
        e(f"s_add_u32 {sT[3]}, {sT[3]}, {sT[0]}")
        e(f"s_add_u32 {sT[3]}, {sT[3]}, {WS_UT}")
        e.waitall(vm=False)
        e("s_barrier")
        vt = [e.op(f"ds_read_b128 {a_(112+4*ks,4)}, v2 offset:{32*ks}") for ks in range(28)]
        for ks in range(28):
            e.wait(vt[ks])
            e(f"v_mfma_f32_32x32x16_bf16 {v(AC,16)}, {a_(112+4*ks,4)}, {a_(4*ks,4)}, {'0' if ks == 0 else v(AC,16)}")
        q = GS + 4
        e(f"v_cvt_pk_bf16_f32 {v(q)}, {v(AC)}, {v(AC+1)}")
        e(f"v_lshlrev_b32 v2, 16, {v(q)}")
        e(f"v_and_b32 v5, {sMASK}, {v(q)}")
        e(f"v_sub_f32 v2, {v(AC)}, v2")
        e(f"v_sub_f32 v5, {v(AC+1)}, v5")
        e(f"v_cvt_pk_bf16_f32 {v(q+1)}, v2, v5")
        e.op(f"buffer_store_dwordx4 {v(q,4)}, v3, {SRD_WS}, {sT[3]} offen sc1")
        e.label("L_h_nout")
        e("v_min_u32 v2, 96, v24")
        e("v_lshlrev_b32 v2, 3, v2")
        self.poll(lambda: e.op(f"buffer_load_dwordx4 v[32:35], v2, {SRD_WS}, 0 offen offset:{WS_GF} sc1"), lambda: self.tagcheck([32]), nap=6)
        e("s_barrier")
        self.stamp(self.pts[4])
        e(f"s_mul_i32 {sT[0]}, {sW}, 7168")
        e(f"v_add_u32 v26, {sT[0]}, v24")
        e(f"v_add_u32 v11, {sT[0]}, v11")
        e("v_bfe_u32 v25, v0, 3, 3")
        e(f"v_mul_u32_u24 v25, {PP}, v25")
        e("v_and_b32 v5, 7, v0")
        e("v_lshl_add_u32 v25, v5, 4, v25")
        e(f"s_lshl_b32 {sP[3]}, {sRB}, 2")
        e(f"s_and_b32 {sT[0]}, {sX}, 1")
        e(f"s_add_u32 {sP[3]}, {sP[3]}, {sT[0]}")
        e(f"s_mul_i32 {sT[0]}, {sW}, {56*PP}")
        e(f"s_lshl_b32 {sT[1]}, {sP[3]}, 7")
        e(f"s_add_u32 {sT[0]}, {sT[0]}, {sT[1]}")
        sA = [f"s{4+i}" for i in range(7)]
        for i in range(7): e(f"s_add_u32 {sA[i]}, {sT[0]}, {WS_KVG + 8192 + 8*PP*i}")
        e(f"s_lshl_b32 {sP[3]}, {sP[3]}, 9")
        e(f"s_add_u32 {sP[3]}, {sP[3]}, {WS_ST2}")
        e("v_and_b32 v8, 31, v0")
        e("v_lshrrev_b32 v9, 5, v0")
        e("v_lshlrev_b32 v2, 4, v8")
        e("v_lshl_or_b32 v9, v9, 25, v2")
        e("v_lshlrev_b32 v8, 2, v8")
        e(f"v_add_u32 v8, {L_PART}, v8")
        e(f"s_mov_b32 {sP[5]}, 0x3f803f80")
        XT, FR = 32, 64
        for job in range(2):
            def xl():
                for i in range(7):
                    e.op(f"buffer_load_dwordx4 {v(XT+4*i,4)}, v25, {SRD_WS}, {sA[i]} offen offset:{256*job} sc1")
            if job == 0:
                self.poll(lambda: e.op(f"buffer_load_dwordx4 {v(XT,4)}, v25, {SRD_WS}, {sA[0]} offen sc1"),
                          lambda: self.sentcheck([XT], 27), nap=self.opt.get('nap2', 3))
            self.poll(xl, lambda: self.sentcheck([XT+4*i for i in range(7)], 27))
            for i in range(7): e.op(f"ds_write_b128 v26, {v(XT+4*i,4)} offset:{1024*i}")
            rt = []
            for i in range(7):
                e.op(f"ds_read_b64_tr_b16 {v(FR+4*i,2)}, v11 offset:{1024*i}")
                rt.append(e.op(f"ds_read_b64_tr_b16 {v(FR+4*i+2,2)}, v11 offset:{1024*i+256}"))
            e("v_mov_b32 v2, 0")
            e("v_mov_b32 v3, 0")
            for i in range(7):
                e.wait(rt[i])
                for r in range(4):
                    e(f"v_dot2c_f32_bf16 v2, {sP[5]}, {v(FR+4*i+r)}")
                    e(f"v_dot2c_f32_bf16 v3, {v(FR+4*i+r)}, {v(FR+4*i+r)}")
            e("v_permlane32_swap_b32 v2, v3")
            e("v_add_f32 v2, v2, v3")
            e.op(f"ds_write_b32 v7, v2 offset:{1024*job}")
            e.waitall(vm=False)
            e("s_barrier")
            for w_ in range(4):
                o = 256*job + 64*w_
                e.op(f"ds_read_b32 {v(FR+2*w_)}, v8 offset:{4*o}")
                e.op(f"ds_read_b32 {v(FR+2*w_+1)}, v8 offset:{4*o+128}")
            e.waitall(vm=False)
            e(f"v_pk_add_f32 {v(FR,2)}, {v(FR,2)}, {v(FR+2,2)}")
            e(f"v_pk_add_f32 {v(FR+4,2)}, {v(FR+4,2)}, {v(FR+6,2)}")
            e(f"v_pk_add_f32 {v(GS,2)}, {v(FR,2)}, {v(FR+4,2)}")
            self.stats_finish(GS, GS+1, True)
            e(f"v_mov_b32 {v(GS+1)}, {v(GS)}")
            e.op(f"buffer_store_dwordx4 {v(GS,4)}, v9, {SRD_WS}, {sP[3]} offen offset:{1024*job} sc1")
            self.stamp(self.pts[5 + job])
        self.finish()


HEADER = "".join(l for l in open(f"cdna_kernels/{NAME}.s.ref").readlines()[:18] if "@launch" not in l) \
    if __import__("os").path.exists(f"cdna_kernels/{NAME}.s.ref") else ""


def generate(**kw):
    body = Gen(**kw).build()
    return f"""{HEADER}; @launch grid=(256,1,1) block=(256,1,1) lds={LDS_BYTES}
.amdgcn_target "amdgcn-amd-amdhsa--gfx950"
.text
.globl {NAME}_kernel
.p2align 8
.type {NAME}_kernel,@function
{NAME}_kernel:
{body}
.section .rodata,"a"
.p2align 6
.amdhsa_kernel {NAME}_kernel
  .amdhsa_next_free_vgpr 512
  .amdhsa_next_free_sgpr 102
  .amdhsa_accum_offset 256
  .amdhsa_group_segment_fixed_size 0
  .amdhsa_kernarg_size 120
  .amdhsa_user_sgpr_count 2
  .amdhsa_user_sgpr_kernarg_segment_ptr 1
  .amdhsa_system_sgpr_workgroup_id_x 1
  .amdhsa_float_denorm_mode_32 3
.end_amdhsa_kernel
"""


if __name__ == "__main__":
    out = sys.argv[1] if len(sys.argv) > 1 else f"cdna_kernels/{NAME}.s"
    kw = {}
    for a in sys.argv[2:]:
        k, val = a.split("=")
        kw[k] = int(val) if val.lstrip('-').isdigit() else val
    open(out, "w").write(generate(**kw))
```

```python
import re

TRANS = ("v_exp_f32", "v_log_f32", "v_rcp_f32", "v_rsq_f32", "v_sqrt_f32", "v_sin_f32", "v_cos_f32")
_reg_re = re.compile(r"\b([vas])(?:(\d+)\b|\[(\d+):(\d+)\])")

def regs_of(tok):
    out = set()
    for m in _reg_re.finditer(tok):
        k = m.group(1)
        if m.group(2) is not None:
            out.add((k, int(m.group(2))))
        else:
            out.update((k, i) for i in range(int(m.group(3)), int(m.group(4)) + 1))
    if re.search(r"\bvcc\b", tok): out.update({("s", 106), ("s", 107)})
    if re.search(r"\bm0\b", tok): out.add(("s", 124))
    if re.search(r"\bexec\b", tok): out.update({("s", 126), ("s", 127)})
    return out

class Ins:
    def __init__(self, text):
        self.text = text
        t = text.split(";")[0].strip()
        self.is_label = t.endswith(":")
        self.is_dir = t.startswith(".")
        parts = t.split(None, 1)
        self.op = parts[0] if parts else ""
        ops = [o.strip() for o in parts[1].split(",")] if len(parts) > 1 else []
        if ops:
            last = ops[-1].split()
            ops[-1] = last[0] if last else ""
        for n, o in enumerate(ops):
            if " " in o:
                ops = ops[:n] + [o.split()[0]]
                break
        self.ops = ops
        op = self.op
        self.mfma = op.startswith("v_mfma")
        self.valu = op.startswith("v_") and not self.mfma
        self.salu = op.startswith("s_")
        self.ds = op.startswith("ds_")
        self.vmem = op.startswith("buffer_") or op.startswith("global_")
        self.dpp = "_dpp" in op
        self.perml = op.startswith("v_permlane")
        self.rdlane = op.startswith("v_readlane") or op.startswith("v_readfirstlane")
        self.trans = op.replace("_e32", "").replace("_e64", "") in TRANS
        self.dot = op.startswith("v_dot")
        self.dma = self.vmem and re.search(r"\blds\b", t) is not None
        self.store = self.vmem and ("store" in op or "atomic" in op)
        self.widest = self.store and ("x4" in op or "x3" in op)
        R = [regs_of(o) for o in ops]
        w, r = set(), set()
        if self.is_label or self.is_dir or not R:
            pass
        elif self.mfma:
            w = R[0]; r = R[1] | R[2] | R[3]
            self.a, self.b, self.c = R[1], R[2], R[3]
            self.passes = 8 if "32x32" in op else 4
        elif self.perml:
            w = R[0] | R[1]; r = R[0] | R[1]
        elif self.valu:
            w = R[0]; r = set().union(*R[1:]) if len(R) > 1 else set()
            if "fmac" in op or "dot2c" in op or self.dpp: r |= R[0]
            if "_co_" in op: w |= R[1]
        elif self.ds:
            if "write" in op: r = set().union(*R)
            else:
                w = R[0]; r = set().union(*R[1:])
                if "d16" in op: r |= R[0]
        elif self.vmem:
            if self.store or self.dma: r = set().union(*R)
            else: w = R[0]; r = set().union(*R[1:])
            if self.dma: r.add(("s", 124))
            if self.store:
                self.data = R[0] if op.startswith("buffer_") else R[1]
        elif self.salu:
            if op.startswith("s_cmp") or op.startswith("s_cbranch") or op in ("s_waitcnt", "s_nop", "s_barrier", "s_branch", "s_setprio", "s_endpgm", "s_sleep"):
                r = set().union(*R)
            else:
                w = R[0]; r = set().union(*R[1:]) if len(R) > 1 else set()
                if "saveexec" in op: w = w | {("s", 126), ("s", 127)}
        self.w, self.r = w, r
    def states(self):
        if self.is_label or self.is_dir: return 0
        if self.op == "s_nop": return int(self.ops[0]) + 1
        return 1

def need(p, c):
    n = 0
    pv = {x for x in p.w if x[0] != "s"}
    ps = {x for x in p.w if x[0] == "s"}
    if p.valu:
        if c.mfma and pv & c.r: n = max(n, 2)
        if (c.dpp or c.perml) and pv & c.r: n = max(n, 2)
        if c.rdlane and pv & c.r: n = max(n, 1)
        if p.trans and c.valu and not c.trans and pv & c.r: n = max(n, 1)
        if p.dot and (c.valu or c.mfma or c.vmem or c.ds) and pv & (c.r | c.w):
            if not (c.op == p.op and pv == c.w): n = max(n, 3)
        if ps & c.r:
            if c.vmem: n = max(n, 5)
            elif c.rdlane: n = max(n, 4)
            elif c.valu: n = max(n, 2)
            elif c.salu: n = max(n, 1)
    if p.mfma:
        big = 12 if p.passes == 8 else 8
        if c.mfma:
            if p.w & (c.a | c.b): n = max(n, big)
            if p.w & c.c and not (p.w == c.c and p.passes == c.passes): n = max(n, big - 2)
            if p.w & c.w and not (p.w == c.c): n = max(n, big - 2)
        elif p.w & (c.r | c.w): n = max(n, big)
        if c.valu and p.c & c.w: n = max(n, 7 if p.passes == 8 else 3)
    if p.widest and p.data & c.w: n = max(n, 2)
    if p.salu and ("s", 124) in p.w and c.dma: n = max(n, 1)
    return n

class Tok:
    def __init__(self, kind): self.kind = kind; self.done = False

class Emit:
    def __init__(self):
        self.t = 0
        self.mfree = 0
        self.hook = None
        self.lock = 0
        self.nvm = 0
        self.log = []; self.nmf = 0
        self.ins = []
        self.vm = []
        self.lg = []
        self.nlab = 0
    def __call__(self, text):
        for ln in text.split("\n"):
            ln = ln.strip()
            if ln: self._one(ln)
    def _one(self, text):
        c = Ins(text)
        if not (c.is_label or c.is_dir):
            dist = 0; pad = 0
            for p in reversed(self.ins):
                if dist >= 20: break
                if not (p.is_label or p.is_dir):
                    pad = max(pad, need(p, c) - dist)
                dist += p.states()
            if pad > 0:
                self.ins.append(Ins(f"s_nop {pad-1}")); self.t += 4 + pad
        self.ins.append(c)
        if c.mfma:
            self.nmf += 1
            self.t = max(self.t, self.mfree); self.mfree = self.t + 4 * c.passes; self.t += 8
        elif not (c.is_label or c.is_dir):
            self.t += 8 if c.trans else 4
        tok = None
        if c.vmem:
            tok = Tok("vm"); self.vm.append(tok); self.nvm += 1; tok.seq = self.nvm; tok.t = self.t; tok.text = text
        elif c.ds:
            tok = Tok("lg"); self.lg.append(tok)
        if self.hook and not self.lock:
            self.lock += 1; self.hook(); self.lock -= 1
        self.last = tok
        return tok
    def atomic(self):
        em = self
        class L:
            def __enter__(s_): em.lock += 1
            def __exit__(s_, *a): em.lock -= 1
        return L()
    def op(self, text):
        return self._one(text)
    def wait(self, *toks):
        parts = []
        for kind, q, cap, name in (("vm", self.vm, 63, "vmcnt"), ("lg", self.lg, 15, "lgkmcnt")):
            idx = [q.index(t) for t in toks if t is not None and t.kind == kind and not t.done]
            if not idx: continue
            n = min(len(q) - 1 - max(idx), cap)
            k = len(q) - n
            if kind == "vm": self.log.append((self.nmf, self.t, self.t - q[k-1].t, n, q[k-1].text))
            for t in q[:k]: t.done = True
            del q[:k]
            parts.append(f"{name}({n})")
        if parts: self._one("s_waitcnt " + " ".join(parts))
    def waitall(self, vm=True, lg=True):
        parts = []
        if vm:
            for t in self.vm: t.done = True
            self.vm = []; parts.append("vmcnt(0)")
        if lg:
            for t in self.lg: t.done = True
            self.lg = []; parts.append("lgkmcnt(0)")
        self._one("s_waitcnt " + " ".join(parts))
    def forget(self):
        self.vm = []; self.lg = []
    def label(self, name): self._one(name + ":")
    def newlabel(self, p="L"):
        self.nlab += 1
        return f"{p}_{self.nlab}"
    def text(self):
        return "\n".join(("" if i.is_label else "    ") + i.text for i in self.ins)

def weave(main, fill, start=0, end=None):
    end = len(main) if end is None else end
    n = max(end - start, 1)
    done = 0
    for i, m in enumerate(main):
        m()
        if start <= i < end:
            upto = (len(fill) * (i - start + 1) + n - 1) // n
            while done < upto:
                fill[done](); done += 1
    while done < len(fill):
        fill[done](); done += 1
```

```python
import sys
from emit import Emit, weave

NAME = "adaLN_cond__ssm_conv_h3__glu_gated_reglu__prompt"
S, D, F = 2048, 448, 1792

WS_EPOCH = 0
WS_GF = 0x400
WS_ST1 = 0x1000
WS_MOD = 0x5000
WS_ST2 = 0x8000
WS_UT = 0x10000
PP = 16384 + 512
WS_KVG = 0x20000
WS_XG = WS_KVG + 224 * PP
WS_HL = WS_XG + 224 * PP
WS_STAMP = WS_HL + 224 * PP
WS_SIZE = WS_STAMP + 256 * 4 * 128

L_WST = 0
L_TK = 114688
L_UR = L_TK + 17024
L_ST = L_UR + 9216
L_VEC = L_ST + 16384
L_S1 = L_VEC + 2048
L_HI = 57344
L_EXT = 114688
L_X1 = L_EXT + 40960
L_RED = [0, 34816]
LDS_BYTES = 163840
BIG = 0x7fffff00
SPIN = 1 << 15

SRD_K, SRD_V, SRD_X, SRD_WS = "s[4:7]", "s[8:11]", "s[12:15]", "s[16:19]"
SRD_SH, SRD_SSM, SRD_WG, SRD_WU, SRD_WD, SRD_OUT = "s[20:23]", "s[24:27]", "s[28:31]", "s[32:35]", "s[36:39]", "s[40:43]"
SRD_C, SRD_WM = "s[4:7]", "s[8:11]"
TAG = "s[46:47]"
sW, sX, sJQ, sJR, sI, sD0, sRB, sFS = "s48", "s49", "s50", "s51", "s52", "s53", "s54", "s55"
sMASK, sSPIN, sDV, sLN = "s56", "s57", "s58", "s59"
sT = ["s%d" % i for i in range(60, 72)]
sC = ["s[72:73]", "s[74:75]", "s[76:77]", "s[78:79]"]
sLO, sEXT = "s80", "s81"
sKW = ["0", "s82", "s83", "s84"]
sKD = ["0", "s85", "s86", "s87"]
sP = ["s%d" % i for i in range(20, 28)]
STAMP0 = 90


def v(a, n=1): return f"v{a}" if n == 1 else f"v[{a}:{a+n-1}]"
def a_(a, n=1): return f"a{a}" if n == 1 else f"a[{a}:{a+n-1}]"


class WStream:
    def __init__(self, e):
        self.e = e
        self.units = [(k, 4*q + i) for q in range(7) for k in "gu" for i in range(4)] + [("d", i) for i in range(56)]
        self.next = 0; self.limit = 0; self.rlimit = 0
        self.free = [("hi", i, None) for i in range(14)] + [("lo", i, None) for i in range(14)]
        self.banned = set()
        self.pend = []
        self.pace = 96; self.lag = 12; self.tnext = 0; self.seen = 0
        self.grp = None
        self.cur = {"w": 0, "d": 0}
        self.rtok = {}
        self.skip = ''
        self.hload = None; self.hnext = 0; self.hmax = 0; self.lead = 4; self.lagw = 9999
    def dest(self, kind, i):
        if kind == "g": return [a_(4*i, 2), a_(4*i+2, 2)]
        if kind == "u": return [a_(112+4*i, 2), a_(112+4*i+2, 2)]
        ks, half = divmod(i, 2)
        return [self.dreg(ks, nt, 2*half, 2) for nt in range(2)]
    @staticmethod
    def dreg(ks, nt, off=0, n=4):
        if ks < 12: return v(160 + 8*ks + 4*nt + off, n)
        if ks < 16: return a_(224 + 8*(ks-12) + 4*nt + off, n)
        return a_(112 + 8*(ks-16) + 4*nt + off, n)
    def can_dma(self):
        return self.next < min(self.limit, len(self.units)) and any(s[0] not in self.banned for s in self.free)
    def dma(self):
        e = self.e
        kind, i = self.units[self.next]
        slot = next(s for s in self.free if s[0] not in self.banned)
        self.free.remove(slot)
        reg, idx, tok = slot
        e.wait(tok)
        g = self.grp
        k = i - g[1] if g and g[0] == kind else -1
        if not (0 < k < 4 and g[2] == reg and idx - g[3] == k and i // 8 == g[1] // 8):
            k = 0
            self.grp = (kind, i, reg, idx)
            key, vr = ("d", "v19") if kind == "d" else ("w", "v10")
            src = 7168 * (i + 8 * (i // 8)) if kind == "d" else 57344 * i
            if src != self.cur[key]:
                e(f"v_add_u32 {vr}, {(src - self.cur[key]) & 0xffffffff:#x}, {vr}")
                self.cur[key] = src
            base, off = {"lo": (sLO, 0), "hi": (sLO, L_HI), "ext": (sEXT, 0)}[reg]
            e(f"s_add_u32 m0, {base}, {off + 1024*idx}")
        vr, srd, cs = {"g": ("v10", SRD_WG, sKW), "u": ("v10", SRD_WU, sKW), "d": ("v19", SRD_WD, sKD)}[kind]
        if kind in self.skip: t = e.op("s_nop 0") or type("T", (), dict(done=True, kind="vm", seq=0))(); self.tnext = e.t + self.pace
        else: t = e.op(f"buffer_load_dwordx4 {vr}, {srd}, {cs[k]} offen offset:{1024*k} lds")
        self.pend.append((self.next, reg, idx, t))
        self.next += 1
    def read(self):
        e = self.e
        n, reg, idx, t = self.pend.pop(0)
        kind, i = self.units[n]
        e.wait(t)
        vb = {"hi": "v20", "ext": "v21"}[reg] if kind == "d" else {"lo": "v16", "hi": "v17", "ext": "v18"}[reg]
        step = 512 if kind == "d" else 256
        for j, d_ in enumerate(self.dest(kind, i)):
            tok = e.op(f"ds_read_b64_tr_b16 {d_}, {vb} offset:{1024*idx + step*j}")
        self.rtok[n] = tok
        self.free.append((reg, idx, tok))
    def hook(self):
        e = self.e
        if e.nvm > self.seen:
            self.tnext = max(self.tnext, e.t - self.pace) + self.pace * (e.nvm - self.seen)
            self.seen = e.nvm
        if e.t >= self.tnext and self.step():
            pass
        elif self.pend and self.pend[0][0] < self.rlimit and (self.pend[0][3].done or e.t - self.pend[0][3].t >= self.lag):
            self.read()
    def step(self):
        hs, hk = divmod(self.hnext, 28)
        h_ok = self.hload and self.hnext < self.hmax
        if self.can_dma() and not (h_ok and hs == 0 and hk <= (self.next - 56) // 2 - self.lead): self.dma()
        elif h_ok: self.hload(hs, hk); self.hnext += 1
        else: return False
        return True
    def aged(self):
        p = self.pend
        lag = self.lag if p and p[0][0] >= 56 else min(self.lag, self.lagw)
        return p and p[0][0] < self.rlimit and (p[0][3].done or self.e.t - p[0][3].t >= lag)
    def urgent(self): return self.next < 56
    def hneed(self, n):
        with self.e.atomic():
            while self.hnext <= n:
                assert self.hnext < self.hmax
                self.hload(*divmod(self.hnext, 28)); self.hnext += 1
    def need(self, kind, i):
        n = self.units.index((kind, i))
        if n not in self.rtok: self.flush(n + 1)
        self.e.wait(self.rtok[n])
    def drain_done(self):
        with self.e.atomic():
            while self.pend and self.pend[0][0] < self.rlimit and self.pend[0][3].done: self.read()
    def drain_keep(self, k):
        with self.e.atomic():
            while len(self.pend) > k and self.pend[0][0] < self.rlimit: self.read()
    def arm(self, recent=0):
        self.seen = self.e.nvm - recent; self.tnext = self.e.t
        self.e.hook = self.hook
    def burst(self, n):
        with self.e.atomic():
            for _ in range(n):
                if self.can_dma(): self.dma()
    def flush(self, upto):
        with self.e.atomic():
            self.limit = max(self.limit, upto); self.rlimit = max(self.rlimit, upto)
            while self.next < upto or (self.pend and self.pend[0][0] < upto):
                if self.next < upto and self.can_dma(): self.dma()
                else: self.read()


def vm(f):
    f.vm = True
    return f


def span(ops, first, last):
    n = len(ops)
    return [(first, first + ((last - first) * (k + 1)) // n, f) for k, f in enumerate(ops)]


def sched(e, ws, mm, chains, reserve=8):
    chains = [list(c) for c in chains]
    tnext = e.t
    for i, m in enumerate(mm):
        m()
        nvm = e.nvm
        while True:
            heads = sorted((c for c in chains if c and c[0][0] <= i), key=lambda c: c[0][1])
            room = e.mfree - e.t - reserve
            forced = [c for c in heads if c[0][1] <= i]
            due = e.t >= tnext and e.nvm == nvm
            vmh = [c for c in heads if getattr(c[0][2], "vm", False)]
            oth = [c for c in heads if not getattr(c[0][2], "vm", False)]
            n0 = e.nvm
            if forced: forced[0].pop(0)[2]()
            elif room < 4: break
            elif due and vmh and not ws.urgent(): vmh[0].pop(0)[2]()
            elif due and ws.step(): pass
            elif room >= 8 and ws.aged(): ws.read()
            elif oth: oth[0].pop(0)[2]()
            else: break
            if e.nvm > n0: tnext = max(tnext, e.t - ws.pace) + ws.pace * (e.nvm - n0)
    assert not any(chains)


class Gen:
    def __init__(self, stop=99, diag=False, pts=None, **opt):
        self.e = Emit()
        self.opt = opt
        mid = (pts or "kv,kvin,a1st,g1go,g1end,g2l").split(",")
        self.pts = ["start"] + mid + [None] * (6 - len(mid))
        self.stop = stop
        self.diag = diag
        self.tail = []
        self.in_helper = False
        self.clk = "s_memtime" if opt.get("cyc") else "s_memrealtime"

    def stamp(self, name):
        if name is not None and name == self.opt.get("probe") and not self.in_helper: self.e("s_memrealtime s[92:93]")
        if self.diag and name is not None and name in self.pts:
            k = self.pts.index(name)
            r = 44 if k == 0 else STAMP0 + 2*(k-1)
            self.e(f"{self.clk} s[{r}:{r+1}]")

    def srd(self, srd, off, nbytes):
        e = self.e
        b = int(srd[2:srd.index(":")])
        e(f"s_load_dwordx2 s[{b}:{b+1}], s[0:1], {off}")
        e(f"s_mov_b32 s{b+2}, {nbytes}")
        e(f"s_mov_b32 s{b+3}, 0x20000")

    def finish(self):
        e = self.e
        e.hook = None
        if self.opt.get("probe") and not self.in_helper:
            e.waitall()
            if self.opt["probe"] == "end": e("s_memrealtime s[92:93]\ns_waitcnt lgkmcnt(0)")
            e("s_sub_u32 s92, s92, s90\ns_lshl_b32 s92, s92, 2\ns_add_u32 s92, s92, 4000")
            if self.opt.get("only") is not None:
                e(f"s_cmp_eq_u32 s2, {self.opt['only']}\ns_cselect_b32 s92, s92, 0")
            e.label("L_pad")
            e("s_memrealtime s[94:95]\ns_waitcnt lgkmcnt(0)\ns_sub_u32 s94, s94, s90\ns_cmp_lt_u32 s94, s92\ns_cbranch_scc1 L_pad")
        if self.diag:
            e.waitall()
            e(f"{self.clk} s[62:63]")
            e(f"s_lshl_b32 {sT[0]}, s2, 2")
            e(f"s_add_u32 {sT[0]}, {sT[0]}, {sW}")
            e(f"s_lshl_b32 {sT[0]}, {sT[0]}, 7")
            e(f"s_add_u32 {sT[0]}, {sT[0]}, {WS_STAMP}")
            e(f"v_mov_b32 v1, {sT[0]}")
            e("s_waitcnt lgkmcnt(0)")
            for k, r in enumerate([44] + [STAMP0 + 2*i for i in range(6)] + [62, 3]):
                e(f"v_mov_b32 v2, s{r}")
                e(f"buffer_store_dword v2, v1, {SRD_WS}, 0 offen offset:{4*k}")
        e("s_endpgm")

    def tagcheck(self, quads):
        e = self.e
        for n, q in enumerate(quads):
            dst = "vcc" if n == 0 else sC[(n - 1) % 4]
            e(f"v_cmp_ne_u64 {dst}, {TAG}, {v(q+2,2)}")
            if n >= 2: e(f"s_or_b64 vcc, vcc, {sC[(n-2)%4]}")
        if len(quads) > 1: e(f"s_or_b64 vcc, vcc, {sC[(len(quads)-2)%4]}")

    def sentcheck(self, regs, tmp, acc=False):
        e = self.e
        regs = [r + 3 for r in regs]
        if acc:
            for n, r in enumerate(regs): e(f"v_accvgpr_read_b32 {v(tmp+n)}, {a_(r)}")
            regs = [tmp + n for n in range(len(regs))]
        cur = regs[0]; rest = regs[1:]
        while rest:
            if len(rest) >= 2:
                e(f"v_max3_u32 {v(tmp)}, {v(cur)}, {v(rest[0])}, {v(rest[1])}"); rest = rest[2:]
            else:
                e(f"v_max_u32 {v(tmp)}, {v(cur)}, {v(rest[0])}"); rest = rest[1:]
            cur = tmp
        e(f"v_cmp_eq_u32 vcc, -1, {v(cur)}")

    def poll(self, loads, check, nap=1, spin=SPIN):
        e = self.e
        top, out = e.newlabel("poll"), e.newlabel("pollend")
        e(f"s_mov_b32 {sSPIN}, {spin}")
        e.label(top)
        loads()
        e.waitall(lg=False)
        check()
        e(f"s_cbranch_vccz {out}")
        if nap: e(f"s_sleep {nap}")
        e(f"s_sub_u32 {sSPIN}, {sSPIN}, 1")
        e(f"s_cbranch_scc0 {top}")
        e.label(out)

    def checked(self, loads, check, cnt=None):
        e = self.e
        stub, back = e.newlabel("retry"), e.newlabel("back")
        with e.atomic():
            check()
            e(f"s_cbranch_vccnz {stub}")
            e.label(back)
        def emit_stub():
            e.forget()
            e.label(stub)
            e("s_nop 7")
            if self.diag and cnt is not None: e(f"s_bitset1_b32 s3, {cnt}")
            self.poll(loads, check)
            e(f"s_branch {back}")
        self.tail.append(emit_stub)

    def bfround(self, r):
        e = self.e
        e(f"v_cvt_pk_bf16_f32 {v(r)}, {v(r)}, {v(r)}")
        e(f"v_lshlrev_b32 {v(r)}, 16, {v(r)}")

    def stats_finish(self, rs, rq, neg):
        e = self.e
        e(f"v_mul_f32 {v(rs)}, 0x3b124925, {v(rs)}")
        e(f"v_mul_f32 {v(rq)}, 0x3b124925, {v(rq)}")
        e(f"v_fma_f32 {v(rq)}, -{v(rs)}, {v(rs)}, {v(rq)}")
        e(f"v_max_f32 {v(rq)}, 0, {v(rq)}")
        self.bfround(rq)
        e(f"v_add_f32 {v(rq)}, 0x3727c5ac, {v(rq)}")
        self.bfround(rq)
        e(f"v_sqrt_f32 {v(rq)}, {v(rq)}")
        e(f"v_cvt_pk_bf16_f32 {v(rs)}, {'-' if neg else ''}{v(rs)}, {v(rq)}")

    def ln1_addr(self, va, dst):
        e = self.e
        e(f"v_lshrrev_b32 {v(va)}, 5, v0")
        e(f"s_lshl_b32 {sT[0]}, {sLN}, 3")
        e(f"v_add_u32 {v(va)}, {sT[0]}, {v(va)}")
        e(f"v_mul_u32_u24 {v(va)}, 896, {v(va)}")
        e(f"v_and_b32 {v(dst)}, 31, v0")
        e(f"v_lshl_add_u32 {v(va)}, {v(dst)}, 4, {v(va)}")
        e(f"v_cmp_gt_u32 vcc, 28, {v(dst)}")
        e(f"v_mov_b32 {v(dst)}, {BIG}")
        e(f"v_cndmask_b32 {v(va)}, {v(dst)}, {v(va)}, vcc")

    def ln1_loads(self, va, dst):
        e = self.e
        e.op(f"buffer_load_dwordx4 {v(dst,4)}, {v(va)}, {SRD_X}, 0 offen")
        return e.op(f"buffer_load_dwordx4 {v(dst+4,4)}, {v(va)}, {SRD_X}, 0 offen offset:448")

    def ln1_stats(self, src, g, va):
        e = self.e
        s_, q_ = g, g + 1
        e(f"s_mov_b32 {sT[1]}, 0x3f803f80")
        e(f"v_mov_b32 {v(s_)}, 0")
        e(f"v_mov_b32 {v(q_)}, 0")
        for i in range(8):
            e(f"v_dot2c_f32_bf16 {v(s_)}, {sT[1]}, {v(src+i)}")
            e(f"v_dot2c_f32_bf16 {v(q_)}, {v(src+i)}, {v(src+i)}")
        for ctl in ("quad_perm:[1,0,3,2]", "quad_perm:[2,3,0,1]", "row_half_mirror", "row_mirror"):
            e(f"v_add_f32_dpp {v(s_)}, {v(s_)}, {v(s_)} {ctl} row_mask:0xf bank_mask:0xf")
            e(f"v_add_f32_dpp {v(q_)}, {v(q_)}, {v(q_)} {ctl} row_mask:0xf bank_mask:0xf")
        e(f"v_mov_b32 {v(src)}, {v(s_)}")
        e(f"v_mov_b32 {v(src+1)}, {v(q_)}")
        e(f"v_permlane16_swap_b32 {v(s_)}, {v(src)}")
        e(f"v_permlane16_swap_b32 {v(q_)}, {v(src+1)}")
        e(f"v_add_f32 {v(s_)}, {v(s_)}, {v(src)}")
        e(f"v_add_f32 {v(q_)}, {v(q_)}, {v(src+1)}")
        self.stats_finish(s_, q_, False)
        e(f"v_lshrrev_b32 {v(q_)}, 5, v0")
        e(f"v_lshlrev_b32 {v(q_)}, 2, {v(q_)}")
        e(f"v_add_u32 {v(q_)}, {L_S1}, {v(q_)}")
        tw = e.op(f"ds_write_b32 {v(q_)}, {v(s_)}")
        e(f"s_lshl_b32 {sT[0]}, {sLN}, 6")
        e(f"s_add_u32 {sT[0]}, {sT[0]}, {WS_ST1}")
        e(f"v_and_b32 {v(src)}, 3, v0")
        e(f"v_lshrrev_b32 {v(src+1)}, 2, v0")
        e(f"v_lshl_add_u32 {v(va)}, {v(src)}, 4, {sT[0]}")
        e(f"v_lshl_add_u32 {v(va)}, {v(src+1)}, 25, {v(va)}")
        e(f"v_lshlrev_b32 {v(src)}, 3, {v(src)}")
        e(f"v_add_u32 {v(src)}, {L_S1}, {v(src)}")
        def publish(between=None):
            e.waitall(vm=False)
            e("s_barrier")
            t = e.op(f"ds_read_b64 {v(g,2)}, {v(src)}")
            if between: between()
            e.wait(t)
            e.op(f"buffer_store_dwordx4 {v(g,4)}, {v(va)}, {SRD_WS}, 0 offen sc1")
        return publish

    def tr_addr(self, dst, tmp, hmul):
        e = self.e
        e(f"v_bfe_u32 {v(dst)}, v0, 2, 2")
        e(f"v_bfe_u32 {v(tmp)}, v0, 5, 1")
        e(f"v_mad_u32_u24 {v(dst)}, {v(tmp)}, {hmul}, {v(dst)}")
        e(f"v_lshlrev_b32 {v(dst)}, 6, {v(dst)}")
        e(f"v_bfe_u32 {v(tmp)}, v0, 4, 1")
        e(f"v_lshl_add_u32 {v(dst)}, {v(tmp)}, 5, {v(dst)}")
        e(f"v_and_b32 {v(tmp)}, 3, v0")
        e(f"v_lshl_add_u32 {v(dst)}, {v(tmp)}, 3, {v(dst)}")

    def unit_addr(self, dst, tmp, rowbytes):
        e = self.e
        e(f"v_bfe_u32 {v(dst)}, v0, 2, 3")
        e(f"v_mul_u32_u24 {v(dst)}, {rowbytes}, {v(dst)}")
        e(f"v_bfe_u32 {v(tmp)}, v0, 5, 1")
        e(f"v_lshl_add_u32 {v(dst)}, {v(tmp)}, 6, {v(dst)}")
        e(f"v_and_b32 {v(tmp)}, 3, v0")
        e(f"v_lshl_add_u32 {v(dst)}, {v(tmp)}, 4, {v(dst)}")

    def touch_small(self, va):
        e = self.e
        e(f"s_lshl_b32 {sT[0]}, s2, 2")
        e(f"s_add_u32 {sT[0]}, {sT[0]}, {sW}")
        e(f"s_lshl_b32 {sT[0]}, {sT[0]}, 7")
        e(f"v_mov_b32 {v(va)}, {sT[0]}")
        e.op(f"buffer_load_dword v1, {v(va)}, {SRD_WS}, 0 offen")

    def load_tag(self):
        e = self.e
        e(f"s_load_dword s46, s[16:17], {WS_EPOCH}")

    def make_tag(self):
        e = self.e
        e("s_add_u32 s46, s46, 0x9e3779b9")
        e("s_mov_b32 s47, -1")

    def build(self):
        e = self.e
        e("s_cmp_ge_u32 s2, 256")
        e("s_cbranch_scc1 L_exit")
        self.stamp("entry")
        if self.opt.get("probe"): e("s_memrealtime s[90:91]")
        self.srd(SRD_X, 0, 1835008)
        self.srd(SRD_WS, 112, WS_SIZE)
        e("s_getpc_b64 s[44:45]")
        e(f"s_bfe_u32 {sT[0]}, s2, 0x30003")
        e(f"s_lshl_b32 {sT[0]}, {sT[0]}, 12")
        e(f"v_lshl_add_u32 v1, v0, 4, {sT[0]}")
        e("v_min_u32 v1, L_end - L_pc - 4, v1")
        e.label("L_pc")
        e.op("global_load_dword v1, v1, s[44:45]")
        e(f"s_and_b32 {sX}, s2, 7")
        e(f"s_lshr_b32 {sT[0]}, s2, 3")
        e(f"s_mul_i32 {sJQ}, {sT[0]}, 37")
        e(f"s_lshr_b32 {sJQ}, {sJQ}, 8")
        e(f"s_mul_i32 {sJR}, {sJQ}, 7")
        e(f"s_sub_u32 {sJR}, {sT[0]}, {sJR}")
        e(f"s_lshl_b32 {sLN}, {sX}, 5")
        e(f"s_add_u32 {sLN}, {sLN}, {sT[0]}")
        e("v_lshrrev_b32 v2, 6, v0")
        e(f"s_mov_b32 {sMASK}, 0xffff0000")
        e(f"v_readfirstlane_b32 {sW}, v2")
        if self.diag:
            for k in range(2 if "entry" in self.pts else 0, 12): e(f"s_mov_b32 s{STAMP0+k}, 0")
            e("s_mov_b32 s3, 0")
        e(f"s_cmp_ge_u32 {sT[0]}, 28")
        e("s_cbranch_scc1 L_helper")
        vm0 = list(e.vm)
        self.main()
        e.forget(); e.vm = list(vm0)
        for t in vm0: t.done = False
        e.label("L_helper")
        self.in_helper = True
        self.helper()
        for t in self.tail: t()
        e.label("L_exit")
        e("s_endpgm")
        e.label("L_end")
        return e.text()

    def main(self):
        e = self.e
        o = self.opt.get
        def unpack(dst, src, hi):
            return f"v_and_b32 {v(dst)}, {sMASK}, {v(src)}" if hi else f"v_lshlrev_b32 {v(dst)}, 16, {v(src)}"
        self.srd(SRD_K, 8, 1835008)
        self.srd(SRD_V, 16, 1835008)
        self.srd(SRD_SH, 24, 3584)
        e(f"s_lshl_b32 {sI}, {sX}, 2")
        e(f"s_add_u32 {sI}, {sI}, {sJQ}")
        e(f"s_lshl_b32 {sD0}, {sJR}, 5")
        e(f"s_add_u32 {sD0}, {sD0}, {sI}")
        e(f"s_lshl_b32 {sD0}, {sD0}, 1")
        e(f"s_mul_i32 {sT[0]}, {sI}, 57344")
        e(f"s_lshl_b32 {sT[1]}, {sJR}, 7")
        e(f"s_add_u32 {sT[0]}, {sT[0]}, {sT[1]}")
        vKo, vKh, vXo, vSh, vLn, vSs, vRk, vRh, vTw, vP1, vP2 = range(232, 243)
        vGs, vRx = 31, 26
        e(f"s_mul_i32 {sLO}, {sW}, 14336")
        e(f"s_add_u32 {sT[0]}, {sT[0]}, {sLO}")
        e(f"v_bfe_u32 {v(vKo)}, v0, 3, 3")
        e(f"v_and_b32 v2, 4, {v(vKo)}")
        e(f"v_cmp_lt_u32 vcc, 4, {v(vKo)}")
        e(f"v_mul_u32_u24 {v(vKo)}, 896, {v(vKo)}")
        e("v_and_b32 v3, 7, v0")
        e("v_xor_b32 v3, v3, v2")
        e(f"v_lshl_add_u32 v3, v3, 4, {sT[0]}")
        e(f"v_add_u32 {v(vKo)}, {v(vKo)}, v3")
        e(f"v_subrev_u32 {v(vKh)}, 7168, {v(vKo)}")
        e(f"v_mov_b32 v3, {BIG}")
        e(f"v_cndmask_b32 {v(vKh)}, v3, {v(vKh)}, vcc")
        e(f"v_bfe_u32 {v(vSh)}, v0, 2, 4")
        e(f"s_lshl_b32 {sT[1]}, {sJR}, 9")
        e(f"v_lshl_add_u32 {v(vSh)}, {v(vSh)}, 5, {sT[1]}")
        self.srd(SRD_SSM, 32, 1835008)
        e("s_load_dwordx2 s[88:89], s[0:1], 40")
        self.srd(SRD_WG, 56, 1605632)
        self.srd(SRD_WU, 64, 1605632)
        self.srd(SRD_WD, 72, 1605632)
        self.srd(SRD_OUT, 96, 1835008)
        self.srd("s[72:75]", 88, 2408448)
        K, V_, SH, X, SS, LR = 32, 46, 56, 64, 72, 84
        e("v_and_b32 v24, 63, v0")
        e("v_lshlrev_b32 v24, 4, v24")
        e(f"s_lshl_b32 {sT[1]}, {sD0}, 1")
        e(f"s_add_u32 {sT[2]}, {sT[1]}, {sW}")
        e(f"s_lshl_b32 {sT[2]}, {sT[2]}, 11")
        e(f"v_add_u32 {v(vSs)}, {sT[2]}, v24")
        e(f"s_and_b32 {sT[3]}, {sW}, 1")
        e(f"s_lshl_b32 {sT[3]}, {sT[3]}, 2")
        e(f"s_sub_u32 {sT[2]}, {sT[2]}, {sT[3]}")
        e(f"s_movk_i32 {sT[3]}, 7168")
        e(f"s_add_u32 m0, {sLO}, 1152")
        self.stamp("pre")
        e("s_waitcnt lgkmcnt(0)")
        self.stamp("start")
        e.op(f"buffer_load_dwordx4 {v(vKo)}, {SRD_K}, 0 offen lds")
        e(f"s_add_u32 m0, {sLO}, 2304")
        self.load_tag()
        e.op(f"buffer_load_dwordx4 {v(vKo)}, {SRD_K}, {sT[3]} offen lds")
        e(f"s_mov_b32 m0, {sLO}")
        e(f"s_load_dword {sDV}, s[88:89], {sT[1]}")
        e.op(f"buffer_load_dwordx4 {v(vKh)}, {SRD_K}, 0 offen lds")
        e(f"s_add_u32 m0, {sLO}, 3456")
        e.op(f"buffer_load_dwordx4 {v(SH,4)}, {v(vSh)}, {SRD_SH}, 0 offen")
        tK = e.op(f"buffer_load_dwordx4 {v(SH+4,4)}, {v(vSh)}, {SRD_SH}, 0 offen offset:16")
        e.op(f"buffer_load_dwordx4 {v(vKo)}, {SRD_V}, 0 offen lds")
        e(f"s_add_u32 m0, {sLO}, 4608")
        e(f"s_load_dword s76, s[24:25], {sT[2]}")
        tV = e.op(f"buffer_load_dwordx4 {v(vKo)}, {SRD_V}, {sT[3]} offen lds")
        tk = {}
        def ld_x():
            e(f"s_add_u32 m0, {sLO}, 5760")
            e(f"s_movk_i32 {sT[0]}, 14336")
            e.op(f"buffer_load_dwordx4 {v(vXo)}, {SRD_X}, 0 offen lds")
            e(f"s_add_u32 m0, {sLO}, 6912")
            e.op(f"buffer_load_dwordx4 {v(vXo)}, {SRD_X}, {sT[0]} offen lds")
            tk["X"] = self.ln1_loads(vLn, LR)
        def ld_s():
            e.op(f"buffer_load_dwordx4 {v(SS,4)}, {v(vSs)}, {SRD_SSM}, 0 offen")
            tk["S"] = e.op(f"buffer_load_dwordx4 {v(SS+4,4)}, {v(vSs)}, {SRD_SSM}, 0 offen offset:1024")
        def touch_m(): e.op(f"buffer_load_dword v1, v22, s[72:75], 0 offen")
        def touch_s(): self.touch_small(23)
        def touch_prep():
            e("v_and_b32 v22, 63, v0")
            e("v_min_u32 v22, 13, v22")
            e("v_lshlrev_b32 v22, 7, v22")
            e(f"s_lshr_b32 {sT[0]}, s2, 3")
            e(f"s_lshl_b32 {sT[0]}, {sT[0]}, 2")
            e(f"s_add_u32 {sT[0]}, {sT[0]}, {sW}")
        def touch_w():
            touch_prep()
            e(f"s_lshr_b32 {sT[1]}, {sX}, 1")
            e(f"s_lshl_b32 {sT[0]}, {sT[0]}, 2")
            e(f"s_add_u32 {sT[0]}, {sT[0]}, {sT[1]}")
            e(f"s_lshl_b32 {sT[0]}, {sT[0]}, 1")
            e(f"s_and_b32 {sT[1]}, {sX}, 1")
            e(f"s_add_u32 {sT[0]}, {sT[0]}, {sT[1]}")
            e(f"s_mul_i32 {sT[0]}, {sT[0]}, 1792")
            e.op(f"buffer_load_dword v1, v22, {SRD_WG}, {sT[0]} offen")
            e.op(f"buffer_load_dword v1, v22, {SRD_WU}, {sT[0]} offen")
        def touch_d():
            touch_prep()
            e(f"s_lshl_b32 {sT[0]}, {sT[0]}, 3")
            e(f"s_add_u32 {sT[0]}, {sT[0]}, {sX}")
            e(f"s_mul_i32 {sT[0]}, {sT[0]}, 1792")
            e.op(f"buffer_load_dword v1, v22, {SRD_WD}, {sT[0]} offen")
        def place(pos):
            for key, dflt, f in (("ps", 0, ld_s), ("px", 0, ld_x), ("pm", 0, touch_m), ("pt", 0, touch_s), ("pw", 7, touch_w), ("pd", 7, touch_d)):
                if o(key, dflt) == pos: f()
        place(6)
        self.stamp("ldiss")
        e(f"s_and_b32 {sT[1]}, {sW}, 1")
        e(f"s_lshr_b32 {sT[2]}, {sW}, 1")
        e(f"s_mul_i32 {sT[1]}, {sT[1]}, 3584")
        e(f"s_mul_i32 {sT[2]}, {sT[2]}, 28672")
        e(f"s_add_u32 {sT[1]}, {sT[1]}, {sT[2]}")
        e(f"s_sub_u32 {sT[1]}, {sT[1]}, {sLO}")
        e(f"v_mul_u32_u24 {v(vXo)}, 896, v2")
        e(f"v_add3_u32 {v(vXo)}, {v(vXo)}, {v(vKo)}, {sT[1]}")
        self.ln1_addr(vLn, LR)
        if o("pm", 5) != 9:
            e("v_bfe_u32 v22, v0, 2, 4")
            e(f"v_min_u32 v22, {o('pmn', 5)}, v22")
            e(f"v_lshl_add_u32 v22, v22, 3, {sX}")
            e("v_subrev_u32 v23, 21, v22")
            e("v_cmp_gt_u32 vcc, 7, v23")
            e("v_cndmask_b32 v25, 0, 14, vcc")
            e("v_cmp_gt_u32 vcc, 14, v23")
            e("v_cndmask_b32 v23, 0, -7, vcc")
            e("v_add3_u32 v22, v22, v23, v25")
            e("v_min_u32 v22, 41, v22")
            e("v_and_b32 v23, 3, v0")
            e(f"s_lshr_b32 {sT[0]}, s2, 3")
            e(f"s_lshl_b32 {sT[0]}, {sT[0]}, 2")
            e(f"s_add_u32 {sT[0]}, {sT[0]}, {sW}")
            e(f"s_mul_i32 {sT[0]}, {sT[0]}, {4*5376}")
            e("v_mul_u32_u24 v23, 5376, v23")
            e("v_lshl_add_u32 v22, v22, 7, v23")
            e(f"v_add_u32 v22, {sT[0]}, v22")
        G, G2, GS = 128, 144, 92
        for q in list(range(G, G+32, 4)) + [GS]: e(f"v_mov_b32 {v(q+3)}, -1")
        place(0)
        e(f"s_lshl_b32 {sT[1]}, {sW}, 12")
        e(f"v_add_u32 v9, {sT[1]}, v24")
        for i in range(4): e(f"v_mov_b32 v{12+i}, -1")
        e("v_bfe_u32 v2, v0, 2, 4")
        e("v_and_b32 v3, 3, v0")
        e(f"v_mul_u32_u24 {v(vGs)}, {2*PP}, v2")
        e(f"v_lshl_add_u32 {v(vGs)}, v3, 4, {v(vGs)}")
        e("v_mul_u32_u24 v10, 3584, v2")
        e("v_lshl_add_u32 v10, v3, 4, v10")
        e(f"v_mul_u32_u24 {v(vP1)}, 4256, v3")
        e("v_min_u32 v4, 4, v2")
        e(f"v_lshl_add_u32 {v(vP1)}, v4, 4, {v(vP1)}")
        e(f"v_add_u32 {v(vP1)}, {L_TK}, {v(vP1)}")
        e("v_lshlrev_b32 v2, 3, v2")
        for dst, g1 in ((vRk, "v_sub_u32 v4, 5, v3"), (vRh, "v_sub_u32 v4, 4, v3"), (vRx, "v_add_u32 v4, 10, v3")):
            e(g1)
            e("v_and_b32 v5, 1, v4")
            e("v_lshrrev_b32 v4, 1, v4")
            e("v_mul_u32_u24 v5, 576, v5")
            e("v_mul_u32_u24 v4, 1152, v4")
            e("v_xor_b32 v5, v5, v2")
            e(f"v_add3_u32 {v(dst)}, v4, v5, {sLO}")
        e(f"s_mul_i32 {sT[0]}, {sJR}, {32*PP}")
        e(f"s_lshl_b32 {sT[1]}, {sI}, 8")
        e(f"s_lshl_b32 {sT[2]}, {sW}, 6")
        e(f"s_add_u32 {sT[1]}, {sT[1]}, {sT[2]}")
        e(f"s_sub_u32 {sT[4]}, {sT[0]}, {sT[1]}")
        e(f"s_add_u32 {sT[4]}, {sT[4]}, {WS_KVG + 508*16}")
        e(f"s_lshr_b32 {sT[1]}, {sI}, 2")
        e(f"s_lshl_b32 {sT[1]}, {sT[1]}, 10")
        e(f"s_and_b32 {sT[2]}, {sI}, 3")
        e(f"s_lshl_b32 {sT[2]}, {sT[2]}, 6")
        e(f"s_lshl_b32 {sT[3]}, {sW}, 8")
        e(f"s_add_u32 {sT[1]}, {sT[1]}, {sT[2]}")
        e(f"s_add_u32 {sT[1]}, {sT[1]}, {sT[3]}")
        e(f"s_add_u32 {sT[8]}, {sT[0]}, {sT[1]}")
        e(f"s_add_u32 {sT[8]}, {sT[8]}, {WS_XG}")
        for c in range(1, 4):
            e(f"s_add_u32 {sT[4+c]}, {sT[4]}, {PP*(c>>1) + 8192*(c&1)}")
            e(f"s_add_u32 {sT[8+c]}, {sT[8]}, {PP*(c>>1) + 8192*(c&1)}")
        place(5)
        e(f"s_lshr_b32 {sRB}, {sX}, 1")
        e(f"s_lshl_b32 {sRB}, {sRB}, 2")
        e(f"s_add_u32 {sRB}, {sRB}, {sJQ}")
        e(f"s_and_b32 {sFS}, {sX}, 1")
        e(f"s_mul_i32 {sFS}, {sFS}, 7")
        e(f"s_add_u32 {sFS}, {sFS}, {sJR}")
        e(f"s_lshl_b32 {sT[0]}, {sFS}, 8")
        e(f"s_lshl_b32 {sT[1]}, {sW}, 6")
        e(f"s_add_u32 {sT[0]}, {sT[0]}, {sT[1]}")
        e(f"v_add_u32 v10, {sT[0]}, v10")
        self.unit_addr(19, 2, 896)
        e(f"s_lshr_b32 {sT[0]}, {sW}, 1")
        e(f"s_mul_i32 {sT[0]}, {sT[0]}, {896*896}")
        e(f"s_and_b32 {sT[1]}, {sW}, 1")
        e(f"s_mul_i32 {sT[1]}, {sT[1]}, {64*896}")
        e(f"s_add_u32 {sT[0]}, {sT[0]}, {sT[1]}")
        e(f"s_lshl_b32 {sT[1]}, {sJR}, 7")
        e(f"s_add_u32 {sT[0]}, {sT[0]}, {sT[1]}")
        e(f"v_add_u32 v19, {sT[0]}, v19")
        e(f"s_mul_i32 {sEXT}, {sW}, 10240")
        e(f"s_add_u32 {sEXT}, {sEXT}, {L_EXT}")
        for k in range(1, 4):
            e(f"s_mov_b32 {sKW[k]}, {56320*k}")
            e(f"s_mov_b32 {sKD[k]}, {6144*k}")
        self.tr_addr(11, 2, 8)
        e(f"v_add_u32 v16, {sLO}, v11")
        e(f"v_add_u32 v17, {L_HI}, v16")
        e("v_bfe_u32 v2, v0, 5, 1")
        e("v_lshlrev_b32 v2, 8, v2")
        e(f"v_add_u32 v18, {sEXT}, v11")
        e("v_sub_u32 v20, v17, v2")
        e("v_sub_u32 v21, v18, v2")
        e(f"s_lshr_b32 {sT[0]}, {sW}, 1")
        e(f"s_mul_i32 {sT[0]}, {sT[0]}, {8512 - 4096}")
        e(f"s_lshl_b32 {sT[1]}, {sW}, 11")
        e(f"s_add_u32 {sT[0]}, {sT[0]}, {sT[1]}")
        e(f"s_add_u32 {sT[0]}, {sT[0]}, {L_TK + 80}")
        e(f"v_add_u32 {v(vTw)}, {sT[0]}, v24")
        e("v_and_b32 v3, 1, v0")
        e(f"v_mul_u32_u24 {v(vP2)}, 4608, v3")
        e("v_bfe_u32 v2, v0, 1, 5")
        e(f"v_lshl_add_u32 {v(vP2)}, v2, 4, {v(vP2)}")
        e(f"v_add_u32 {v(vP2)}, {L_UR + 4096}, {v(vP2)}")
        for i in range(4): e(f"v_mov_b32 v{96+i}, 0")
        e("v_and_b32 v8, 3, v0")
        e("v_and_b32 v2, v2, v3")
        e("v_add_u32 v8, v8, v2")
        e("v_mul_u32_u24 v8, 1792, v8")
        e("v_mul_u32_u24 v3, 4256, v3")
        e("v_and_b32 v2, 7, v0")
        e("v_or_b32 v2, 1, v2")
        e("v_bfe_u32 v4, v0, 3, 1")
        e("v_lshl_add_u32 v2, v4, 5, v2")
        e("v_bfe_u32 v27, v0, 4, 2")
        e("v_lshl_add_u32 v2, v27, 3, v2")
        e("v_lshlrev_b32 v2, 1, v2")
        e("v_sub_u32 v2, v2, v3")
        sHW, sCH = sT[3], sT[2]
        e(f"s_and_b32 {sHW}, {sW}, 1")
        e(f"s_lshr_b32 {sCH}, {sW}, 1")
        e(f"s_mul_i32 {sT[0]}, {sCH}, 8512")
        e(f"s_lshl_b32 {sT[1]}, {sHW}, 8")
        e(f"s_add_u32 {sT[0]}, {sT[0]}, {sT[1]}")
        e(f"s_add_u32 {sT[0]}, {sT[0]}, {L_TK + 4256 + 2}")
        e(f"v_add_u32 v2, {sT[0]}, v2")
        e(f"s_mul_i32 {sT[0]}, {sCH}, 512")
        e(f"s_add_u32 {sT[0]}, {sT[0]}, {L_UR}")
        e("v_lshrrev_b32 v30, 1, v9")
        e(f"v_add_u32 v3, {sT[0]}, v30")
        e(f"v_add_u32 v30, {L_ST}, v30")
        e("v_and_b32 v5, 3, v0")
        e("v_bfe_u32 v6, v0, 2, 2")
        e("v_lshlrev_b32 v4, 4, v5")
        e("v_lshl_add_u32 v5, v6, 3, v5")
        e("v_lshl_add_u32 v4, v6, 8, v4")
        e("v_bfe_u32 v6, v0, 4, 1")
        e("v_bfe_u32 v28, v0, 5, 1")
        e("v_lshl_add_u32 v7, v5, 1, v6")
        e("v_lshl_add_u32 v7, v28, 3, v7")
        e("v_lshl_add_u32 v4, v6, 10, v4")
        e("v_lshl_add_u32 v4, v28, 7, v4")
        e("v_sub_u32 v5, v27, v5")
        e(f"s_mul_i32 {sT[1]}, {sCH}, 4608")
        e(f"s_lshl_b32 {sT[0]}, {sHW}, 8")
        e(f"s_add_u32 {sT[0]}, {sT[0]}, {sT[1]}")
        e(f"s_add_u32 {sT[0]}, {sT[0]}, {L_UR + 2*(2008-1792)}")
        e(f"v_lshl_add_u32 v5, v5, 4, {sT[0]}")
        e(f"s_lshl_b32 {sT[0]}, {sHW}, 11")
        e(f"s_sub_u32 {sT[0]}, {sT[1]}, {sT[0]}")
        e(f"s_add_u32 {sT[0]}, {sT[0]}, {L_UR + 2*(2044-768)}")
        e("v_lshlrev_b32 v6, 3, v7")
        e(f"v_sub_u32 v6, {sT[0]}, v6")
        e(f"s_lshl_b32 {sT[0]}, {sHW}, 12")
        e(f"s_add_u32 {sT[0]}, {sT[0]}, {L_ST}")
        e(f"v_lshl_add_u32 v7, v7, 4, {sT[0]}")
        e(f"v_add_u32 v28, {L_TK}, v9")
        e("v_xor_b32 v29, 0x1000, v9")
        e(f"v_add_u32 v29, {L_TK}, v29")

        self.stamp("setup")
        e("s_waitcnt lgkmcnt(0)")
        self.stamp("tag")
        e(f"s_lshl_b32 {sT[0]}, {sCH}, 4")
        e(f"s_lshr_b32 {sDV}, {sDV}, {sT[0]}")
        e(f"s_lshl_b32 {sDV}, {sDV}, 16")
        e(f"s_mul_i32 s76, s76, {sHW}")
        e(f"v_mov_b32 {v(SS+8)}, s76")
        e.op(f"ds_write_b128 {v(vP1)}, v[96:99]")
        e.op(f"ds_write_b128 {v(vP2)}, v[96:99]")
        self.make_tag()
        for q in list(range(G, G+32, 4)) + [GS]: e(f"v_mov_b32 {v(q+2)}, s46")
        place(1)
        WF, KF, AC, VF, PK = 96, 176, 112, 208, 224
        self.stamp("issued")
        e.wait(tK)
        self.stamp("kin")
        kt = [e.op(f"ds_read_b64 {v(K+2*r,2)}, {v(vRh)} offset:{128*(r+1)}") for r in range(3)]
        kt += [e.op(f"ds_read_b64 {v(K+6+2*r,2)}, {v(vRk)} offset:{128*r}") for r in range(4)]
        for c in range(4):
            for j in range(4): e(unpack(WF+4*j+c, SH+2*c+j//2, j & 1))
        for r in range(7):
            e.wait(kt[r])
            for c in range(4): e(unpack(KF+4*r+c, K+2*r+c//2, c & 1))
        for j in (3, 2, 1, 0):
            if j == 1:
                e.wait(tV)
                self.stamp("vin")
                vt_ = [e.op(f"ds_read_b64 {v(V_+2*r,2)}, {v(vRk)} offset:{2304 + 128*r}") for r in range(4)]
            for r in range(4):
                for p in (0, 2):
                    d_, k_, w_ = v(AC+4*r+p, 2), v(KF+4*(r+3-j)+p, 2), v(WF+4*j+p, 2)
                    e(f"v_pk_mul_f32 {d_}, {k_}, {w_}" if j == 3 else f"v_pk_fma_f32 {d_}, {k_}, {w_}, {d_}")
        e.wait(vt_[3])
        def kvstore(c): tk["kst"] = e.op(f"buffer_store_dwordx4 {v(G+4*c,4)}, {v(vGs)}, {SRD_WS}, {sT[4+c]} offen sc1")
        for p in (0, 2):
            for r in range(4):
                for c in (p, p+1): e(unpack(VF+4*r+c, V_+2*r+c//2, c & 1))
                e(f"v_pk_mul_f32 {v(AC+4*r+p,2)}, {v(AC+4*r+p,2)}, {v(VF+4*r+p,2)}")
            for c in (p, p+1):
                e(f"v_cvt_pk_bf16_f32 {v(G+4*c)}, {v(AC+12+c)}, {v(AC+8+c)}")
                e(f"v_cvt_pk_bf16_f32 {v(G+4*c+1)}, {v(AC+4+c)}, {v(AC+c)}")
        self.stamp("kv")
        place(2)
        e.wait(tk["S"])
        self.stamp("sin")
        CB = 96
        e(f"v_readlane_b32 s76, {v(SS+3)}, 63")
        e.op(f"ds_write_b128 {v(vTw)}, {v(SS,4)}")
        e.op(f"ds_write_b128 {v(vTw)}, {v(SS+4,4)} offset:1024")
        e(f"v_mov_b32 {v(SS+9)}, s76")
        for h in range(2):
            for i in range(1, 4): e(f"v_alignbit_b32 {v(CB+4*h+i)}, {v(SS+4*h+i)}, {v(SS+4*h+i-1)}, 16")
            e(f"v_mov_b32_dpp {v(SS+8+h)}, {v(SS+4*h+3)} wave_shr:1 row_mask:0xf bank_mask:0xf")
            e(f"v_alignbit_b32 {v(CB+4*h)}, {v(SS+4*h)}, {v(SS+8+h)}, 16")
            e.op(f"ds_write_b128 {v(vTw)}, {v(CB+4*h,4)} offset:{4256 + 1024*h}")
        def xwork():
            e(f"s_mov_b32 {sT[0]}, 0x05040100")
            e(f"s_mov_b32 {sT[1]}, 0x07060302")
            e.wait(tk["X"])
            self.stamp("xin")
            for r in range(4): t = e.op(f"ds_read_b64 {v(X+2*r,2)}, {v(vRx)} offset:{128*r}")
            e.wait(t)
            for c in range(4):
                e(f"v_perm_b32 {v(G2+4*c)}, {v(X+2+c//2)}, {v(X+c//2)}, {sT[c&1]}")
                e(f"v_perm_b32 {v(G2+4*c+1)}, {v(X+6+c//2)}, {v(X+4+c//2)}, {sT[c&1]}")
            return self.ln1_stats(LR, GS, 27)
        def xstore(c): tk["xst", c] = e.op(f"buffer_store_dwordx4 {v(G2+4*c,4)}, {v(vGs)}, {SRD_WS}, {sT[8+c]} offen sc1")
        sKVG, sXG, sHH, sMOD, sST1, sAS = sP[0], sP[1], sP[2], sP[3], sP[4], sP[5]
        e(f"s_mul_i32 {sT[0]}, {sD0}, {PP//2}")
        e(f"s_add_u32 {sKVG}, {sT[0]}, {WS_KVG}")
        e(f"s_add_u32 {sXG}, {sT[0]}, {WS_XG}")
        e(f"s_mov_b32 {sST1}, {WS_ST1}")
        e(f"s_lshr_b32 {sMOD}, {sD0}, 2")
        e(f"s_lshl_b32 {sMOD}, {sMOD}, 4")
        e(f"s_add_u32 {sMOD}, {sMOD}, {WS_MOD}")
        e(f"s_lshl_b32 {sT[0]}, {sW}, 11")
        e(f"s_add_u32 {sHH}, {sXG}, {sT[0]}")
        e(f"s_lshl_b32 {sT[0]}, {sCH}, 6")
        e(f"s_lshl_b32 {sT[1]}, {sHW}, 12")
        e(f"s_add_u32 {sT[0]}, {sT[0]}, {sT[1]}")
        e(f"s_add_u32 {sAS}, {sKVG}, {sT[0]}")
        e(f"s_add_u32 {sP[6]}, {sAS}, 8192")
        pub = xwork()
        e.waitall(lg=False)
        pub(lambda: (self.stamp("allin"), [kvstore(c) for c in range(4)]))
        xe = o("xe", 3)
        xord = (2, 3, 1, 0)
        for c in xord[:xe]: xstore(c)
        self.stamp("tkbar")
        ws = WStream(e)
        ws.pace, ws.lag = o("pace", 64), o("lag", 1300)
        ws.limit, ws.rlimit = 56, 56
        ws.skip = str(o("skip", ""))
        ws.burst(o("w0", 0))
        KG = 32
        def kvloads():
            for i in range(4): t = e.op(f"buffer_load_dwordx4 {v(KG+4*i,4)}, v9, {SRD_WS}, {sKVG} offen offset:{1024*i} sc1")
            return t
        def treg(rl, p, off=0, n=4):
            return v(160 + (rl*8+p)*4 + off, n) if rl < 3 else a_(224 + p*4 + off, n)
        tr = []
        for pp in range(4):
            for p in (2*pp, 2*pp+1):
                for rl in range(4):
                    def f(pp=pp, p=p, rl=rl):
                        of = rl*16 + (p & 1)*128
                        e.op(f"ds_read2_b32 {treg(rl,p,0,2)}, v2 offset0:{of} offset1:{of+1}")
                        e.op(f"ds_read2_b32 {treg(rl,p,2,2)}, v2 offset0:{of+2} offset1:{of+3}")
                        if (p & 1) and rl == 3 and pp < 3: e("v_add_u32 v2, 1024, v2")
                    tr.append(f)
        kvat = o("kvat", 16)
        for f in tr[:kvat]: f()
        e.wait(tk["kst"])
        self.stamp("clr")
        for c in xord[xe:]: xstore(c)
        kv2 = o("kv2", 32)
        for f in tr[kvat:kv2]: f()
        if o("xt", 4): e.wait(tk["xst", xord[o("xt", 4) - 1]])
        self.stamp("stc")
        tkv = kvloads()
        place(3)
        for f in tr[kv2:]: f()
        ws.burst(o("w1", 0))
        self.stamp("toep")
        e.wait(tkv)
        self.checked(kvloads, lambda: self.tagcheck([KG+4*i for i in range(4)]), 0)
        for i in range(4): e.op(f"ds_write_b64 v3, {v(KG+4*i,2)} offset:{512*i}")
        place(4)
        e.waitall(vm=False)
        e("s_barrier")
        self.stamp("kvin")
        if self.stop <= 1: return self.finish()

        BR, DA, NB = 64, 96, 6
        XQ, SQ, MQ, EE, GG, KVR, RS, MR = 128, 144, 88, 32, 48, 144, 152, 156
        cA, cB, cC, cD = 25, 26, 22, 23
        seq = [(rl, m) for rl in range(4) for m in range(8)]
        btok = {}
        def bread(n):
            rl, m = seq[n]
            btok[n] = e.op(f"ds_read_b128 {v(BR+4*(n%NB),4)}, v5 offset:{rl*64 + (7-m)*512}")
        mm = []
        for n, (rl, m) in enumerate(seq):
            for p in range(8 - m):
                def f(n=n, rl=rl, m=m, p=p):
                    if p == 0: e.wait(btok[n])
                    c_ = "0" if (rl == 0 and m == 0) else v(DA+4*(p+m), 4)
                    e(f"v_mfma_f32_16x16x32_bf16 {v(DA+4*(p+m),4)}, {treg(rl,p)}, {v(BR+4*(n%NB),4)}, {c_}")
                    if p == 0 and n + NB - 1 < 32: bread(n + NB - 1)
                mm.append(f)
        for n in range(NB - 1): bread(n)
        def sloads():
            for i in range(4): t = e.op(f"buffer_load_dwordx4 {v(SQ+4*i,4)}, v9, {SRD_WS}, {sST1} offen offset:{1024*i} sc1")
            return t
        def xloads():
            for i in range(4): e.op(f"buffer_load_dwordx4 {v(XQ+4*i,4)}, v9, {SRD_WS}, {sXG} offen offset:{1024*i} sc1")
            return e.op(f"buffer_load_dwordx4 {v(MQ,4)}, v8, {SRD_WS}, {sMOD} offen sc1")
        def hoff(T): return 8192*(T & 1) + (WS_HL - WS_XG)*(T >> 1)
        def clear_h(T):
            if o("noclrh", 0):
                tk["ch"] = None
                return
            with e.atomic():
                e(f"s_add_u32 {sT[0]}, {sHH}, {hoff(T)}")
                e.op(f"buffer_store_dwordx4 v[12:15], v24, {SRD_WS}, {sT[0]} offen sc1")
                tk["ch"] = e.op(f"buffer_store_dwordx4 v[12:15], v24, {SRD_WS}, {sT[0]} offen offset:1024 sc1")
        fill = []
        F_ = fill.append
        def I(txt): F_(lambda: e(txt))
        def f():
            e.wait(tk["s"])
            self.checked(sloads, lambda: self.tagcheck([SQ+4*i for i in range(4)]), 1)
        F_(f)
        for i in range(4):
            q = SQ + 4*i
            for r in range(2):
                I(f"v_and_b32 {v(q+2+r)}, {sMASK}, {v(q+r)}")
                I(f"v_rcp_f32 {v(q+2+r)}, {v(q+2+r)}")
                I(f"v_lshlrev_b32 {v(q+r)}, 16, {v(q+r)}")
                I(f"v_mul_f32 {v(q+r)}, -{v(q+r)}, {v(q+2+r)}")
            F_(lambda q=q, i=i: e.op(f"ds_write_b64 v30, {v(q+2,2)} offset:{512*i}"))
            def f(q=q, i=i): tk["w"] = e.op(f"ds_write_b64 v30, {v(q,2)} offset:{8192+512*i}")
            F_(f)
        def f():
            e.wait(tk["x"])
            self.checked(xloads, lambda: self.tagcheck([XQ+4*i for i in range(4)] + [MQ]), 2)
        F_(f)
        def f():
            e.wait(tk["w"])
            e("s_barrier")
            with e.atomic():
                e(f"s_lshl_b32 {sT[0]}, {sI}, 2")
                e(f"s_add_u32 {sT[0]}, {sT[0]}, {sW}")
                e(f"s_cmp_lg_u32 {sT[0]}, 0")
                e("s_cbranch_scc1 L_noflag")
                e(f"s_lshl_b32 {sT[0]}, {sJR}, 7")
                e("v_lshrrev_b32 v27, 2, v0")
                e("v_lshlrev_b32 v27, 25, v27")
                e("v_and_or_b32 v27, v24, 63, v27")
                e(f"buffer_store_dwordx4 {v(GS,4)}, v27, {SRD_WS}, {sT[0]} offen offset:{WS_GF} sc1")
                e.vm.pop()
                e.label("L_noflag")
        F_(f)
        def f():
            with e.atomic():
                e(f"s_bitcmp1_b32 {sD0}, 1")
                e("s_cselect_b64 vcc, -1, 0")
        F_(f)
        I(f"v_cndmask_b32 {v(MQ)}, {v(MQ)}, {v(MQ+1)}, vcc")
        I(f"s_lshl_b32 {sT[1]}, {sCH}, 4")
        I(f"v_lshrrev_b32 {v(MQ)}, {sT[1]}, {v(MQ)}")
        I(f"v_lshlrev_b32 {v(MQ)}, 16, {v(MQ)}")
        I(f"v_add_f32 {v(MQ+1)}, 1.0, {v(MQ)}")
        F_(lambda: self.bfround(MQ+1))
        I(f"v_mov_b32_dpp {v(cB)}, {v(MQ)} quad_perm:[0,0,0,0] row_mask:0xf bank_mask:0xf")
        I(f"v_mov_b32_dpp {v(cD)}, {v(MQ)} quad_perm:[2,2,2,2] row_mask:0xf bank_mask:0xf")
        I(f"v_mov_b32_dpp {v(cA)}, {v(MQ+1)} quad_perm:[1,1,1,1] row_mask:0xf bank_mask:0xf")
        I(f"v_mov_b32_dpp {v(cC)}, {v(MQ+1)} quad_perm:[3,3,3,3] row_mask:0xf bank_mask:0xf")
        I(f"v_mul_f32 {v(cA)}, {v(cA)}, {v(cD)}")
        I(f"v_mul_f32 {v(cB)}, {v(cB)}, {v(cD)}")
        for t in range(4):
            def f(t=t):
                e.op(f"ds_read_b64 {v(KVR+2*t,2)}, v6 offset:{512*(3-t)}")
                e.op(f"ds_read_b128 {v(RS,4)}, v7 offset:{1024*t}")
                tk["r"] = e.op(f"ds_read_b128 {v(MR,4)}, v7 offset:{8192+1024*t}")
            F_(f)
            for r in range(4): I(unpack(EE+4*t+r, XQ+4*t+r//2, r & 1))
            F_(lambda: e.wait(tk["r"]))
            for r in range(4):
                g_, x_ = v(GG+4*t+r), v(EE+4*t+r)
                I(f"v_fma_f32 {g_}, {x_}, {v(RS+r)}, {v(MR+r)}")
                I(unpack(RS+r, KVR+2*t+1-r//2, not (r & 1)))
                I(f"v_fma_f32 {g_}, {g_}, {v(cA)}, {v(cB)}")
                I(f"v_mul_f32 {v(RS+r)}, {sDV}, {v(RS+r)}")
                I(f"v_fmac_f32 {x_}, {g_}, {v(RS+r)}")
        c0, cs_, cx = o("cv0", 64), o("cvs", 4), o("cvx", 24)
        weave(mm[:cs_], [])
        tk["s"] = sloads()
        weave(mm[cs_:cx], [])
        tk["x"] = xloads()
        place(7)
        ws.arm(o("cvw", 3))
        weave(mm[cx:c0], [])
        weave(mm[c0:], fill)
        e.hook = None
        self.stamp("conv")
        Y = 64
        e(f"s_cmp_eq_u32 {sHW}, 0")
        e("s_cbranch_scc0 L_red1")
        save = (list(e.vm), list(e.lg))
        for hw in (0, 1):
            if hw:
                e.label("L_red1"); e("s_nop 7")
                e.vm, e.lg = list(save[0]), list(save[1])
            keep, send = DA + 16*hw, DA + 16*(1-hw)
            for t in range(4): e.op(f"ds_write_b128 v28, {v(send+4*t,4)} offset:{1024*t}")
            e.waitall(vm=False)
            e("s_barrier")
            rt = [e.op(f"ds_read_b128 {v(Y+4*t,4)}, v29 offset:{1024*t}") for t in range(4)]
            for t in range(4):
                e.wait(rt[t])
                for p in (0, 2): e(f"v_pk_add_f32 {v(Y+4*t+p,2)}, {v(Y+4*t+p,2)}, {v(keep+4*t+p,2)}")
            if not hw: e("s_branch L_red2")
        e.label("L_red2")
        PX, PA = 80, 88
        def pubq(q, so, off):
            e(f"v_permlane16_swap_b32 {v(q)}, {v(q+2)}")
            e(f"v_permlane16_swap_b32 {v(q+1)}, {v(q+3)}")
            e(f"v_min_u32 {v(q+3)}, -2, {v(q+3)}")
            tk["as"] = e.op(f"buffer_store_dwordx4 {v(q,4)}, v4, {SRD_WS}, {so} offen offset:{off} sc1")
        for pi in range(2):
            for t in (2*pi, 2*pi+1):
                for p in (0, 2):
                    y_ = v(Y+4*t+p, 2)
                    e(f"v_pk_fma_f32 {y_}, {v(GG+4*t+p,2)}, {y_}, {v(EE+4*t+p,2)}")
                    e(f"v_pk_mul_f32 {v(GG+4*t+p,2)}, {y_}, {v(cC,2)} op_sel_hi:[1,0]")
                    e(f"v_cvt_pk_bf16_f32 {v(PA+2*t+p//2)}, {v(GG+4*t+p)}, {v(GG+4*t+p+1)}")
                    e(f"v_cvt_pk_bf16_f32 {v(PX+2*t+p//2)}, {v(Y+4*t+p)}, {v(Y+4*t+p+1)}")
            pubq(PA+4*pi, sAS, 2048*pi)
        for pi in range(2): pubq(PX+4*pi, sP[6], 2048*pi)
        self.stamp("a1st")
        if self.stop <= 2: return self.finish()

        e("v_min_u32 v2, 96, v24")
        e("v_lshlrev_b32 v2, 3, v2")
        def fload(): tk["f"] = e.op(f"buffer_load_dwordx4 v[32:35], v2, {SRD_WS}, 0 offen offset:{WS_GF} sc1")
        fload()
        ws.drain_keep(o("keep2", 8))
        ws.burst(o("w2", 10))
        sST2, sHS, sMT, sOUT, sUT = sP[0], sP[1], sP[3], sP[4], sP[5]
        sA = [f"s{4+i}" for i in range(7)]
        e("v_bfe_u32 v25, v0, 3, 3")
        e(f"v_mul_u32_u24 v25, {PP}, v25")
        e("v_and_b32 v5, 7, v0")
        e("v_lshl_add_u32 v25, v5, 4, v25")
        e(f"s_mul_i32 {sT[0]}, {sW}, 7168")
        e(f"v_add_u32 v26, {sT[0]}, v24")
        e(f"s_mul_i32 {sT[0]}, {sW}, {56*PP}")
        e(f"s_lshl_b32 {sT[1]}, {sRB}, 9")
        e(f"s_add_u32 {sT[0]}, {sT[0]}, {sT[1]}")
        for i in range(7): e(f"s_add_u32 {sA[i]}, {sT[0]}, {WS_KVG + 8*PP*i}")
        e("v_and_b32 v30, 31, v0")
        e("v_mul_u32_u24 v8, 272, v30")
        e("v_lshlrev_b32 v30, 4, v30")
        e(f"s_lshl_b32 {sST2}, {sRB}, 11")
        e(f"s_add_u32 {sST2}, {sST2}, {WS_ST2}")
        e(f"s_and_b32 {sT[1]}, {sX}, 1")
        e(f"s_lshl_b32 {sMT}, {sRB}, 2")
        e(f"s_add_u32 {sMT}, {sMT}, {sT[1]}")
        e(f"s_lshl_b32 {sT[1]}, {sT[1]}, 1")
        e(f"s_add_u32 {sT[1]}, {sT[1]}, {sHW}")
        e(f"s_lshl_b32 {sT[1]}, {sT[1]}, 12")
        e(f"s_and_b32 {sT[0]}, {sX}, 6")
        e(f"s_add_u32 {sT[0]}, {sT[0]}, {sCH}")
        e(f"s_lshl_b32 {sT[0]}, {sT[0]}, 2")
        e(f"s_add_u32 {sT[0]}, {sT[0]}, {sJQ}")
        e(f"s_mul_i32 {sHS}, {sT[0]}, {PP}")
        e(f"s_add_u32 {sHS}, {sHS}, {sT[1]}")
        e(f"s_add_u32 {sHS}, {sHS}, {WS_XG}")
        e(f"s_lshl_b32 {sUT}, {sFS}, 2")
        e(f"s_add_u32 {sUT}, {sUT}, {sW}")
        e(f"s_lshl_b32 {sUT}, {sUT}, 9")
        e(f"s_add_u32 {sUT}, {sUT}, {WS_UT}")
        e(f"s_add_u32 {sP[6]}, {sUT}, 28672")
        e("v_lshlrev_b32 v3, 5, v5")
        e("v_lshrrev_b32 v6, 3, v0")
        e("v_lshlrev_b32 v9, 4, v6")
        e("v_bfe_u32 v7, v0, 5, 1")
        e(f"s_mul_i32 {sT[1]}, {sW}, 8704")
        e(f"v_lshl_add_u32 v7, v7, 4, {sT[1]}")
        e("v_add_u32 v8, v8, v7")
        e("v_mul_u32_u24 v28, 272, v6")
        e("v_add_u32 v28, v28, v3")
        e("v_lshlrev_b32 v29, 9, v5")
        e("v_lshl_add_u32 v29, v6, 1, v29")
        e(f"v_add_u32 v29, {L_X1}, v29")
        e("v_mul_u32_u24 v31, 896, v6")
        e("v_lshl_add_u32 v31, v5, 4, v31")
        e(f"s_mul_i32 {sOUT}, {sMT}, 28672")
        e(f"s_lshl_b32 {sT[1]}, {sJR}, 7")
        e(f"s_add_u32 {sOUT}, {sOUT}, {sT[1]}")
        e(f"s_lshl_b32 {sT[8]}, {sJR}, 8")
        e(f"s_add_u32 {sT[8]}, {sT[8]}, {WS_MOD + 560*16}")
        e(f"s_lshl_b32 {sT[9]}, {sMT}, 9")
        e(f"s_add_u32 {sT[9]}, {sT[9]}, {WS_ST2}")
        e(f"s_lshl_b32 {sT[0]}, {sJR}, 2")
        e(f"s_add_u32 {sT[0]}, {sT[0]}, {sW}")
        e(f"s_mul_i32 {sT[10]}, {sT[0]}, {8*PP}")
        e(f"s_lshl_b32 {sT[0]}, {sMT}, 7")
        e(f"s_add_u32 {sT[10]}, {sT[10]}, {sT[0]}")
        e(f"s_add_u32 {sT[10]}, {sT[10]}, {WS_KVG + 8192}")
        e(f"s_lshl_b32 {sT[11]}, {sW}, 10")
        BR, ACC, PH, XA, SG = 32, [64, 96], 48, [56, 156], [60, 4]
        AS = [128, 96, 128, 128]
        def aload1(T, i):
            tk["a", T] = e.op(f"buffer_load_dwordx4 {v(AS[T]+4*i,4)}, v25, {SRD_WS}, {sA[i]} offen offset:{128*T} sc1")
        def aloads(T):
            for i in range(7): aload1(T, i)
        def acheck(T):
            e.wait(tk["a", T])
            self.checked(lambda: aloads(T), lambda: self.sentcheck([AS[T]+4*i for i in range(7)], 27), 4 + T)
        def awrite(T, i):
            tk["aw"] = e.op(f"ds_write_b128 v26, {v(AS[T]+4*i,4)} offset:{28672*(T&1) + 1024*i}")
        e.wait(tk["f"])
        self.checked(fload, lambda: self.tagcheck([32]), 27)
        self.stamp("asd")
        aloads(0)
        aloads(1)
        ws.banned = {"lo"}
        ws.drain_keep(0)
        e.waitall(vm=False)
        e("s_barrier")
        ws.free += [("ext", i, None) for i in range(10)]
        ws.limit, ws.rlimit = 112, 88
        ws.burst(o("w3", 4))
        acheck(0)
        self.stamp("a0in")
        for i in range(7): awrite(0, i)
        e.wait(tk["aw"])
        e("s_barrier")
        self.stamp("g1go")

        bt = {}
        def bread1(n, h):
            T, ks = divmod(n, 28)
            bt[n] = e.op(f"ds_read_b64_tr_b16 {v(BR+4*(n%4)+2*h,2)}, v11 offset:{28672*(T & 1) + 1024*ks + 256*h}")
        def sgload(T):
            tk["sg", T] = e.op(f"buffer_load_dwordx4 {v(SG[T&1],4)}, v30, {SRD_WS}, {sST2} offen offset:{512*T} sc1")
        def utload(m):
            tk["ut"] = e.op(f"buffer_load_dwordx4 {v(XA[m],4)}, v30, {SRD_WS}, {(sUT, sP[6])[m]} offen sc1")
        def utcheck():
            e.wait(tk["ut"])
            self.checked(lambda: (utload(0), utload(1)), lambda: self.tagcheck(XA), 3)
        def utzero():
            e("s_mov_b32 exec_lo, 0")
            for q in XA:
                e(f"v_mov_b32 {v(q)}, 0")
                e(f"v_mov_b32 {v(q+1)}, 0")
            e("s_mov_b32 exec_lo, -1")
        def extra(T):
            A = ACC[T & 1]
            e.wait(tk["sg", T])
            self.checked(lambda: sgload(T), lambda: self.tagcheck([SG[T&1]]), 8 + T)
            for m in range(2):
                e(f"v_mfma_f32_32x32x8_bf16 {v(A+16*m,16)}, {v(XA[m],2)}, {v(SG[T&1],2)}, {v(A+16*m,16)}")
        nop = lambda: None
        def epi(T):
            ops = []
            A = ACC[T & 1]
            for r in range(16):
                ops.append(lambda r=r: e(f"v_max_f32 {v(A+r)}, 0, {v(A+r)}"))
                ops.append(lambda r=r: e(f"v_mul_f32 {v(A+r)}, {v(A+r)}, {v(A+16+r)}"))
                if r & 1: ops.append(lambda r=r: e(f"v_cvt_pk_bf16_f32 {v(PH+r//2)}, {v(A+r-1)}, {v(A+r)}"))
                if r == 3: ops.append(lambda: e(f"s_add_u32 {sT[6]}, {sHH}, {hoff(T)}"))
                if r % 8 == 7:
                    ph = r // 8
                    ops.append(lambda ph=ph: e(f"v_min_u32 {v(PH+4*ph+3)}, -2, {v(PH+4*ph+3)}"))
                    def g(ph=ph):
                        e.wait(tk["ch"])
                        tk["hs"] = e.op(f"buffer_store_dwordx4 {v(PH+4*ph,4)}, v24, {SRD_WS}, {sT[6]} offen offset:{1024*ph} sc1")
                    ops.append(g)
            return ops
        htok = {}
        def hload(stage, ks, so=sT[7]):
            with e.atomic():
                if ks % 4 == 0: e(f"s_add_u32 {so}, {sHS}, {(WS_HL - WS_XG)*stage + 32*PP*(ks//4)}")
                htok[stage, ks] = e.op(f"buffer_load_dwordx4 {a_(4*ks,4)}, v24, {SRD_WS}, {so} offen offset:{1024*(ks%4)} sc1")
        GB, XR, R2 = 128, 136, 152
        def gload(i):
            va, so, off = (("v3", sT[8], 0), ("v3", sT[8], 16), ("v9", sT[9], 0), ("v9", sT[9], 1024))[i]
            tk["g"] = e.op(f"buffer_load_dwordx4 {v(XR+4*i,4)}, {va}, {SRD_WS}, {so} offen offset:{off} sc1")
        gld = [vm(lambda i=i: gload(i)) for i in range(4)]
        def gcheck():
            e.wait(tk["g"])
            self.checked(lambda: [f() for f in gld], lambda: self.tagcheck([XR+4*i for i in range(4)]), 26)
        def x1load(st):
            e(f"s_add_u32 m0, {sT[11]}, {L_X1 + (4096 - 256)*st}")
            tk["x1"] = e.op(f"buffer_load_dwordx4 v25, {SRD_WS}, {sT[10]} offen offset:{256*st} sc1 lds")
            ws.grp = None
        gops = [lambda r=r: e(unpack(GB+r, XR + 4*(r//4) + (r//2) % 2, r & 1)) for r in range(8)]
        for st in range(2):
            gops += [lambda st=st: e(f"v_and_b32 {v(R2+st)}, {sMASK}, {v(XR+8+4*st)}"),
                     lambda st=st: e(f"v_mul_f32 {v(R2+st)}, {v(R2+st)}, {v(R2+st)}"),
                     lambda st=st: e(f"v_rcp_f32 {v(R2+st)}, {v(R2+st)}")]
        for n in range(3): bread1(n, 0); bread1(n, 1)
        ws.pace, ws.lagw = o("pace1", 80), o("lagw", 900)
        ws.hload = hload
        mm = []
        for n in range(112):
            for m in range(2):
                def f(n=n, m=m):
                    T, ks = divmod(n, 28)
                    A = ACC[T & 1]
                    if m == 0: e.wait(bt[n])
                    if T == 0: ws.need("gu"[m], ks)
                    c_ = "0" if ks == 0 else v(A+16*m, 16)
                    e(f"v_mfma_f32_32x32x16_bf16 {v(A+16*m,16)}, {a_(112*m+4*ks,4)}, {v(BR+4*(n%4),4)}, {c_}")
                    if T == 3: ws.hmax = ks + 1
                    if n + 3 < 112:
                        if ks == 25 and m == 0:
                            e.wait(tk["aw"], bt[n+2]); e("s_barrier")
                        bread1(n + 3, m)
                    if ks == 27 and m == 1: self.stamp(f"t{T}")
                mm.append(f)
        wr = lambda T2: [lambda: acheck(T2)] + [lambda i=i: awrite(T2, i) for i in range(7)]
        ld = lambda T2: [vm(lambda i=i: aload1(T2, i)) for i in range(7)]
        waw = [lambda: e.wait(tk["aw"])]
        def clr1(T, ph):
            if ph == 0: e(f"s_add_u32 {sT[5]}, {sHH}, {hoff(T)}")
            tk["ch"] = e.op(f"buffer_store_dwordx4 v[12:15], v24, {SRD_WS}, {sT[5]} offen offset:{1024*ph} sc1")
        slow = lambda ops, a, b: [(a + ((b - a) * k) // len(ops), d, f) for k, (_, d, f) in enumerate(span(ops, a + 2, b + 2))]
        s0 = o("s0", 58)
        ca = slow(wr(1), 16, 44) + slow(wr(2), 66, 82) + span(waw + ld(3), 86, 112) + slow(wr(3), 142, 157) + span(waw + gld, 162, 174)
        cb_ = span(ld(2), 6, 44) + slow([vm(lambda T=T, ph=ph: clr1(T, ph)) for T in (2, 3) for ph in (0, 1)], 36, 60)
        cs = (span([vm(lambda: utload(0)), vm(lambda: utload(1)), vm(lambda: sgload(0)), vm(lambda: sgload(1))], s0 - 6, s0 + 6)
              + slow([utcheck, utzero, lambda: extra(0), lambda: extra(1)], s0 + 28, s0 + 34) + span(epi(0), s0 + 38, 111)
              + span([vm(lambda: sgload(2)), vm(lambda: sgload(3))], 112, 120) + span(epi(1), 116, 150) + span([lambda: extra(2)], 158, 164)
              + span(epi(2), 172, 204) + slow([lambda: extra(3), gcheck, vm(lambda: x1load(0)), vm(lambda: x1load(1))], 204, 212) + span(gops, 212, 223))
        sched(e, ws, mm, [ca, cb_, cs], o("rsv", 8))
        if self.stop <= 3:
            for op in epi(3): op()
            return self.finish()

        def hreload(stage, g, last):
            for ks in range(4*g, last): hload(stage, ks, sT[4])
        def stage_mm(stage):
            A = ACC[stage]
            mm = []
            for ks in range(28):
                for nt in range(2):
                    def f(ks=ks, nt=nt):
                        if nt == 0 and ks % 4 == 0:
                            g = ks // 4
                            ws.hneed(28*stage + ks + 3)
                            last = min(ws.hnext - 28*stage, 28)
                            e.wait(htok[stage, ks+3])
                            self.checked(lambda: hreload(stage, g, last), lambda: self.sentcheck([16*g+4*i for i in range(4)], 12, acc=True), 12 + 7*stage + g)
                        if nt == 0 and stage == 0: ws.need("d", 2*ks + 1)
                        c_ = "0" if ks == 0 else v(A+16*nt, 16)
                        e(f"v_mfma_f32_32x32x16_bf16 {v(A+16*nt,16)}, {ws.dreg(ks,nt)}, {a_(4*ks,4)}, {c_}")
                        if stage == 0 and nt == 1 and 2*ks + 1 >= l0: ws.hmax = 28 + ks + 1
                    mm.append(f)
            return mm
        def stage_out(stage):
            A, sum_, tmp = ACC[stage], 32, 40
            ops = []
            O = ops.append
            for nt in range(2):
                for g in range(4):
                    O(lambda nt=nt, g=g: e.op(f"ds_write_b128 v8, {v(A+16*nt+4*g,4)} offset:{L_RED[stage] + 128*nt + 32*g}"))
            def f():
                e.wait(tk["x1"])
                e.waitall(vm=False)
                e("s_barrier")
            O(f)
            rt = {}
            for w_ in range(4):
                def f(w_=w_):
                    dst = sum_ if w_ == 0 else tmp + 8*(w_-1)
                    e.op(f"ds_read_b128 {v(dst,4)}, v28 offset:{L_RED[stage] + 8704*w_}")
                    rt[w_] = e.op(f"ds_read_b128 {v(dst+4,4)}, v28 offset:{L_RED[stage] + 8704*w_+16}")
                O(f)
            if stage == 0:
                for r in range(16):
                    def f(r=r): rt["x"] = e.op(f"ds_read_u16 {v(XR+r)}, v29 offset:{4096*(r//8) + 64*(r%8)}")
                    O(f)
            pk = stage == 1
            for w_ in range(1, 4):
                O(lambda w_=w_: e.wait(rt[w_]))
                for p in range(0, 8, 2 if pk else 1):
                    if pk: O(lambda w_=w_, p=p: e(f"v_pk_add_f32 {v(sum_+p,2)}, {v(sum_+p,2)}, {v(tmp+8*(w_-1)+p,2)}"))
                    else: O(lambda w_=w_, p=p: e(f"v_add_f32 {v(sum_+p)}, {v(sum_+p)}, {v(tmp+8*(w_-1)+p)}"))
            if stage == 0:
                O(lambda: e.wait(rt["x"]))
                for r in range(16): O(lambda r=r: e(f"v_lshlrev_b32 {v(XR+r)}, 16, {v(XR+r)}"))
            for p in range(0, 8, 2):
                if pk: O(lambda p=p: e(f"v_pk_fma_f32 {v(sum_+p,2)}, {v(sum_+p,2)}, {v(GB+p,2)}, {v(XR+8+p,2)}"))
                else:
                    for q in (p, p+1):
                        O(lambda q=q: e(f"v_mul_f32 {v(sum_+q)}, {v(sum_+q)}, {v(R2)}"))
                        O(lambda q=q: e(f"v_fma_f32 {v(sum_+q)}, {v(sum_+q)}, {v(GB+q)}, {v(XR+q)}"))
                        O(lambda q=q: e(f"v_mul_f32 {v(GB+q)}, {v(GB+q)}, {v(R2+1)}"))
                O(lambda p=p: e(f"v_cvt_pk_bf16_f32 {v(tmp+p//2)}, {v(sum_+p)}, {v(sum_+p+1)}"))
            def f():
                e(f"s_add_u32 {sT[0]}, {sOUT}, {57344*stage}")
                e.op(f"buffer_store_dwordx4 {v(tmp,4)}, v31, {SRD_OUT}, {sT[0]} offen {'sc1' if o('outsc1', 1) else ''}")
            O(f)
            return ops
        l0, age = o("l0", 24), o("age", 11)
        ws.rlimit = 112
        e.hook = None
        mm = stage_mm(0)
        def old(t): return t.done or e.nvm - t.seq >= age
        def pump():
            while ws.pend and old(ws.pend[0][3]): ws.read()
            return ws.step()
        def ready(stage, ks):
            h = htok.get((stage, ks | 3))
            return h is not None and old(h) and (stage == 1 or 56 + min(2*ks + 3, 55) in ws.rtok)
        def run(stage, mm, k0, k1, side=()):
            side = list(side)
            per = -(-len(side) // max(2*(k1 - k0), 1))
            for ks in range(k0, k1):
                while not ready(stage, ks) and pump(): pass
                for nt in range(2):
                    mm[2*ks + nt]()
                    for f in side[:per]: f()
                    side = side[per:]
                    if nt == 0: pump()
        run(0, mm, 0, 5, [nop]*10 + epi(3))
        self.stamp("g1end")
        run(0, mm, 5, 20)
        e("s_barrier")
        run(0, mm, 20, 28)
        self.stamp("g2m")
        so = stage_out(0)
        mm = stage_mm(1)
        n0 = o("so0", 0)
        for i, f in enumerate(so[:n0]):
            f()
            pump()
        self.stamp("g2e")
        run(1, mm, 0, 24, [nop]*6 + so[n0:])
        run(1, mm, 24, 28)
        self.stamp("g2l")
        for f in stage_out(1): f()
        e("s_cmp_lg_u32 s2, 0")
        e("s_cbranch_scc1 L_noepoch")
        e("v_mov_b32 v2, s46")
        e("v_lshlrev_b32 v4, 25, v0")
        e("v_lshrrev_b32 v5, 7, v0")
        e("v_lshl_or_b32 v4, v5, 25, v4")
        e.op(f"buffer_store_dword v2, v4, {SRD_WS}, 0 offen")
        e.label("L_noepoch")
        self.stamp("out")
        self.finish()

    def helper(self):
        e = self.e
        if self.opt.get("nohelp"):
            e("s_waitcnt lgkmcnt(0)")
            self.stamp("start")
            return self.finish()
        self.srd(SRD_C, 80, 896)
        self.srd(SRD_WM, 88, 2408448)
        e(f"s_lshr_b32 {sRB}, {sX}, 1")
        e(f"s_lshl_b32 {sRB}, {sRB}, 2")
        e(f"s_add_u32 {sRB}, {sRB}, {sJR}")
        e(f"s_cmp_ge_u32 {sRB}, 7")
        e(f"s_cselect_b32 {sP[6]}, 1, 0")
        e(f"s_cselect_b32 {sT[0]}, 64, 56")
        e(f"s_load_dwordx2 s[28:29], s[0:1], {sT[0]}")
        e("s_mov_b32 s30, 1605632")
        e("s_mov_b32 s31, 0x20000")
        e(f"s_and_b32 {sT[0]}, {sX}, 1")
        e(f"s_sub_u32 {sT[0]}, {sT[0]}, {sP[6]}")
        e(f"s_mul_i32 {sT[0]}, {sT[0]}, 7")
        e(f"s_add_u32 {sP[7]}, {sT[0]}, {sRB}")
        sH = sI
        e(f"s_lshl_b32 {sH}, {sJR}, 3")
        e(f"s_add_u32 {sH}, {sH}, {sX}")
        e(f"s_add_u32 {sT[0]}, {sH}, 7")
        e(f"s_sub_u32 {sT[1]}, {sH}, 7")
        e(f"s_cmp_lt_u32 {sH}, 28")
        e(f"s_cselect_b32 {sT[0]}, {sT[0]}, {sT[1]}")
        e(f"s_cmp_lt_u32 {sH}, 21")
        e(f"s_cselect_b32 {sP[0]}, {sH}, {sT[0]}")
        e(f"s_add_u32 {sT[0]}, {sH}, 25")
        e(f"s_add_u32 {sT[1]}, {sH}, 32")
        e(f"s_cmp_lt_u32 {sH}, 3")
        e(f"s_cselect_b32 {sP[1]}, {sT[0]}, {sT[1]}")
        self.unit_addr(10, 2, 5376)
        e(f"s_mul_i32 {sT[0]}, {sW}, {112*5376}")
        e(f"v_add_u32 v10, {sT[0]}, v10")
        e("v_lshlrev_b32 v3, 1, v0")
        e(f"s_mul_i32 {sP[2]}, {sW}, 14336")
        self.ln1_addr(6, 84)
        e("s_waitcnt lgkmcnt(0)")
        self.stamp(self.pts[0])
        e.op(f"buffer_load_ushort v32, v3, {SRD_C}, 0 offen")
        tc = e.op(f"buffer_load_ushort v33, v3, {SRD_C}, 0 offen offset:512")
        self.load_tag()
        LR, GS = 84, 160
        def mdma(task):
            e(f"s_lshl_b32 {sT[2]}, {sP[task]}, 7")
            for u in range(14):
                e(f"s_add_u32 m0, {sP[2]}, {57344*task + 1024*u}")
                e(f"s_add_u32 {sT[1]}, {sT[2]}, {43008*u}")
                t = e.op(f"buffer_load_dwordx4 v10, {SRD_WM}, {sT[1]} offen lds")
            return t
        tL = self.ln1_loads(6, LR)
        if self.opt.get("pt", 0) != 9: self.touch_small(23)
        tm0 = mdma(0)
        L_SC, L_PART = 114688, 116736
        e.wait(tc)
        for r in (32, 33):
            e(f"v_lshlrev_b32 v{r}, 16, v{r}")
            e(f"v_mul_f32 v34, 0xbfb8aa3b, v{r}")
            e("v_exp_f32 v34, v34")
            e("v_add_f32 v34, 1.0, v34")
            e("v_rcp_f32 v34, v34")
            e(f"v_mul_f32 v{r}, v{r}, v34")
            e(f"v_cvt_pk_bf16_f32 v{r}, v{r}, v{r}")
        e(f"v_add_u32 v3, {L_SC}, v3")
        e("s_waitcnt lgkmcnt(0)")
        e.op("ds_write_b16 v3, v32")
        e.op("ds_write_b16 v3, v33 offset:512")
        self.make_tag()
        for q in (GS, GS+4):
            e(f"v_mov_b32 {v(q+2)}, s46")
            e(f"v_mov_b32 {v(q+3)}, s47")
        self.tr_addr(4, 2, 4)
        e(f"v_add_u32 v4, {sP[2]}, v4")
        e("v_bfe_u32 v5, v0, 5, 1")
        e(f"s_mul_i32 {sT[0]}, {sW}, 224")
        e(f"s_add_u32 {sT[0]}, {sT[0]}, {L_SC}")
        e(f"v_lshl_add_u32 v5, v5, 3, {sT[0]}")
        e("v_lshlrev_b32 v7, 2, v0")
        e(f"v_add_u32 v7, {L_PART}, v7")
        e("v_and_b32 v8, 15, v0")
        e("v_lshlrev_b32 v8, 4, v8")
        e("v_lshrrev_b32 v9, 4, v0")
        e("v_lshl_or_b32 v9, v9, 25, v8")
        e(f"v_add_u32 v8, {L_PART}, v8")
        e.wait(tL)
        self.ln1_stats(LR, GS, 6)()
        SC, WB, AC = 32, 192, 128
        for ks in range(7):
            e.op(f"ds_read_b64 {v(SC+4*ks,2)}, v5 offset:{32*ks}")
            e.op(f"ds_read_b64 {v(SC+4*ks+2,2)}, v5 offset:{32*ks+16}")
        def gemv(task):
            for ks in range(7):
                for nt in range(2):
                    for half in range(2):
                        e.op(f"ds_read_b64_tr_b16 {v(WB+8*ks+4*nt+2*half,2)}, v4 offset:{1024*(2*ks+half) + 512*nt}")
            e.waitall(vm=False)
            for ks in range(7):
                for nt in range(2):
                    c_ = "0" if ks == 0 else v(AC+16*nt, 16)
                    e(f"v_mfma_f32_32x32x16_bf16 {v(AC+16*nt,16)}, {v(SC+4*ks,4)}, {v(WB+8*ks+4*nt,4)}, {c_}")
            e("v_and_b32 v2, 32, v0")
            e("v_cmp_eq_u32 vcc, 0, v2")
            e(f"v_cndmask_b32 v2, {v(AC+16)}, {v(AC)}, vcc")
            e.op(f"ds_write_b32 v7, v2 offset:{1024*task}")
            e.waitall(vm=False)
            e("s_barrier")
            for w_ in range(4): e.op(f"ds_read_b128 {v(WB+4*w_,4)}, v8 offset:{1024*task + 256*w_}")
            e.waitall(vm=False)
            for w_ in range(1, 4):
                for p in (0, 2): e(f"v_pk_add_f32 {v(WB+p,2)}, {v(WB+p,2)}, {v(WB+4*w_+p,2)}")
            e(f"v_cvt_pk_bf16_f32 {v(GS+4)}, {v(WB)}, {v(WB+1)}")
            e(f"v_cvt_pk_bf16_f32 {v(GS+5)}, {v(WB+2)}, {v(WB+3)}")
            e(f"s_lshl_b32 {sT[0]}, {sP[task]}, 8")
            e(f"s_add_u32 {sT[0]}, {sT[0]}, {WS_MOD}")
            e.op(f"buffer_store_dwordx4 {v(GS+4,4)}, v9, {SRD_WS}, {sT[0]} offen sc1")
        e.wait(tm0)
        gemv(0)
        self.stamp(self.pts[1])
        e(f"s_cmp_lt_u32 {sH}, 10")
        e("s_cbranch_scc0 L_h_two")
        mdma(1)
        e("v_add_u32 v4, 57344, v4")
        e.waitall(lg=False)
        gemv(1)
        e.label("L_h_two")
        self.stamp(self.pts[2])
        if self.stop <= 2: return self.finish()
        e("v_and_b32 v24, 63, v0")
        e("v_lshlrev_b32 v24, 4, v24")
        self.tr_addr(11, 2, 8)
        if self.opt.get("gate", 0):
            e(f"s_mul_i32 {sT[8]}, {sH}, {7*PP}")
            e(f"s_add_u32 {sT[8]}, {sT[8]}, {WS_XG}")
            e("v_and_b32 v2, 63, v24")
            self.poll(lambda: e.op(f"buffer_load_dwordx4 v[32:35], v2, {SRD_WS}, {sT[8]} offen sc1"), lambda: self.tagcheck([32]), nap=2, spin=8)
        self.stamp(self.pts[3])
        e(f"s_cmp_ge_u32 {sRB}, 14")
        e("s_cbranch_scc1 L_h_nout")
        e("v_bfe_u32 v10, v0, 2, 4")
        e("v_mul_u32_u24 v10, 3584, v10")
        e("v_and_b32 v2, 3, v0")
        e(f"s_lshl_b32 {sT[0]}, {sP[7]}, 2")
        e(f"s_add_u32 {sT[3]}, {sT[0]}, {sW}")
        e(f"s_lshl_b32 {sT[0]}, {sT[3]}, 6")
        e(f"v_lshl_add_u32 v2, v2, 4, {sT[0]}")
        e("v_add_u32 v10, v10, v2")
        e(f"s_mul_i32 {sT[2]}, {sW}, 28672")
        e(f"v_add_u32 v4, {sT[2]}, v11")
        for ks in range(28):
            e(f"s_add_u32 m0, {sT[2]}, {1024*ks}")
            e(f"s_mov_b32 {sT[1]}, {57344*ks}")
            e.op(f"buffer_load_dwordx4 v10, {SRD_WG}, {sT[1]} offen lds")
        VQ = 32
        e("v_min_u32 v2, 223, v0")
        e("v_lshlrev_b32 v3, 4, v2")
        e(f"s_mov_b32 {sT[8]}, {WS_MOD + 336*16}")
        self.poll(lambda: e.op(f"buffer_load_dwordx4 {v(VQ,4)}, v3, {SRD_WS}, {sT[8]} offen sc1"), lambda: self.tagcheck([VQ]), nap=4)
        for ks in range(28):
            e.op(f"ds_read_b64_tr_b16 {a_(4*ks,2)}, v4 offset:{1024*ks}")
            e.op(f"ds_read_b64_tr_b16 {a_(4*ks+2,2)}, v4 offset:{1024*ks+256}")
        e("v_cmp_le_u32 vcc, 112, v2")
        e("v_cndmask_b32 v5, 0, 1.0, vcc")
        for r in range(4):
            src = v(VQ + r//2)
            e(f"v_and_b32 {v(VQ+4+r)}, {sMASK}, {src}" if r & 1 else f"v_lshlrev_b32 {v(VQ+4+r)}, 16, {src}")
            e(f"v_add_f32 {v(VQ+4+r)}, v5, {v(VQ+4+r)}")
        e(f"v_cvt_pk_bf16_f32 {v(VQ)}, {v(VQ+4)}, {v(VQ+5)}")
        e(f"v_cvt_pk_bf16_f32 {v(VQ+1)}, {v(VQ+6)}, {v(VQ+7)}")
        e("v_lshlrev_b32 v2, 3, v2")
        e(f"v_add_u32 v2, {L_VEC}, v2")
        e.op(f"ds_write_b64 v2, {v(VQ,2)}")
        e("v_and_b32 v2, 1, v0")
        e("v_mul_u32_u24 v2, 896, v2")
        e("v_bfe_u32 v3, v0, 5, 1")
        e("v_lshlrev_b32 v5, 4, v3")
        e("v_sub_u32 v2, v5, v2")
        e(f"v_add_u32 v2, {L_VEC + 896}, v2")
        e("v_lshl_or_b32 v3, v3, 25, v24")
        e(f"s_lshl_b32 {sT[3]}, {sT[3]}, 9")
        e(f"s_mul_i32 {sT[0]}, {sP[6]}, 28672")
        e(f"s_add_u32 {sT[3]}, {sT[3]}, {sT[0]}")
        e(f"s_add_u32 {sT[3]}, {sT[3]}, {WS_UT}")
        e.waitall(vm=False)
        e("s_barrier")
        vt = [e.op(f"ds_read_b128 {a_(112+4*ks,4)}, v2 offset:{32*ks}") for ks in range(28)]
        for ks in range(28):
            e.wait(vt[ks])
            e(f"v_mfma_f32_32x32x16_bf16 {v(AC,16)}, {a_(112+4*ks,4)}, {a_(4*ks,4)}, {'0' if ks == 0 else v(AC,16)}")
        q = GS + 4
        e(f"v_cvt_pk_bf16_f32 {v(q)}, {v(AC)}, {v(AC+1)}")
        e(f"v_lshlrev_b32 v2, 16, {v(q)}")
        e(f"v_and_b32 v5, {sMASK}, {v(q)}")
        e(f"v_sub_f32 v2, {v(AC)}, v2")
        e(f"v_sub_f32 v5, {v(AC+1)}, v5")
        e(f"v_cvt_pk_bf16_f32 {v(q+1)}, v2, v5")
        e.op(f"buffer_store_dwordx4 {v(q,4)}, v3, {SRD_WS}, {sT[3]} offen sc1")
        e.label("L_h_nout")
        e("v_min_u32 v2, 96, v24")
        e("v_lshlrev_b32 v2, 3, v2")
        self.poll(lambda: e.op(f"buffer_load_dwordx4 v[32:35], v2, {SRD_WS}, 0 offen offset:{WS_GF} sc1"), lambda: self.tagcheck([32]), nap=6)
        e("s_barrier")
        self.stamp(self.pts[4])
        e(f"s_mul_i32 {sT[0]}, {sW}, 7168")
        e(f"v_add_u32 v26, {sT[0]}, v24")
        e(f"v_add_u32 v11, {sT[0]}, v11")
        e("v_bfe_u32 v25, v0, 3, 3")
        e(f"v_mul_u32_u24 v25, {PP}, v25")
        e("v_and_b32 v5, 7, v0")
        e("v_lshl_add_u32 v25, v5, 4, v25")
        e(f"s_lshl_b32 {sP[3]}, {sRB}, 2")
        e(f"s_and_b32 {sT[0]}, {sX}, 1")
        e(f"s_add_u32 {sP[3]}, {sP[3]}, {sT[0]}")
        e(f"s_mul_i32 {sT[0]}, {sW}, {56*PP}")
        e(f"s_lshl_b32 {sT[1]}, {sP[3]}, 7")
        e(f"s_add_u32 {sT[0]}, {sT[0]}, {sT[1]}")
        sA = [f"s{4+i}" for i in range(7)]
        for i in range(7): e(f"s_add_u32 {sA[i]}, {sT[0]}, {WS_KVG + 8192 + 8*PP*i}")
        e(f"s_lshl_b32 {sP[3]}, {sP[3]}, 9")
        e(f"s_add_u32 {sP[3]}, {sP[3]}, {WS_ST2}")
        e("v_and_b32 v8, 31, v0")
        e("v_lshrrev_b32 v9, 5, v0")
        e("v_lshlrev_b32 v2, 4, v8")
        e("v_lshl_or_b32 v9, v9, 25, v2")
        e("v_lshlrev_b32 v8, 2, v8")
        e(f"v_add_u32 v8, {L_PART}, v8")
        e(f"s_mov_b32 {sP[5]}, 0x3f803f80")
        XT, FR = 32, 64
        for job in range(2):
            def xl():
                for i in range(7):
                    e.op(f"buffer_load_dwordx4 {v(XT+4*i,4)}, v25, {SRD_WS}, {sA[i]} offen offset:{256*job} sc1")
            if job == 0:
                self.poll(lambda: e.op(f"buffer_load_dwordx4 {v(XT,4)}, v25, {SRD_WS}, {sA[0]} offen sc1"),
                          lambda: self.sentcheck([XT], 27), nap=self.opt.get('nap2', 3))
            self.poll(xl, lambda: self.sentcheck([XT+4*i for i in range(7)], 27))
            for i in range(7): e.op(f"ds_write_b128 v26, {v(XT+4*i,4)} offset:{1024*i}")
            rt = []
            for i in range(7):
                e.op(f"ds_read_b64_tr_b16 {v(FR+4*i,2)}, v11 offset:{1024*i}")
                rt.append(e.op(f"ds_read_b64_tr_b16 {v(FR+4*i+2,2)}, v11 offset:{1024*i+256}"))
            e("v_mov_b32 v2, 0")
            e("v_mov_b32 v3, 0")
            for i in range(7):
                e.wait(rt[i])
                for r in range(4):
                    e(f"v_dot2c_f32_bf16 v2, {sP[5]}, {v(FR+4*i+r)}")
                    e(f"v_dot2c_f32_bf16 v3, {v(FR+4*i+r)}, {v(FR+4*i+r)}")
            e("v_permlane32_swap_b32 v2, v3")
            e("v_add_f32 v2, v2, v3")
            e.op(f"ds_write_b32 v7, v2 offset:{1024*job}")
            e.waitall(vm=False)
            e("s_barrier")
            for w_ in range(4):
                o = 256*job + 64*w_
                e.op(f"ds_read_b32 {v(FR+2*w_)}, v8 offset:{4*o}")
                e.op(f"ds_read_b32 {v(FR+2*w_+1)}, v8 offset:{4*o+128}")
            e.waitall(vm=False)
            e(f"v_pk_add_f32 {v(FR,2)}, {v(FR,2)}, {v(FR+2,2)}")
            e(f"v_pk_add_f32 {v(FR+4,2)}, {v(FR+4,2)}, {v(FR+6,2)}")
            e(f"v_pk_add_f32 {v(GS,2)}, {v(FR,2)}, {v(FR+4,2)}")
            self.stats_finish(GS, GS+1, True)
            e(f"v_mov_b32 {v(GS+1)}, {v(GS)}")
            e.op(f"buffer_store_dwordx4 {v(GS,4)}, v9, {SRD_WS}, {sP[3]} offen offset:{1024*job} sc1")
            self.stamp(self.pts[5 + job])
        self.finish()


HEADER = "".join(l for l in open(f"cdna_kernels/{NAME}.s.ref").readlines()[:18] if "@launch" not in l) \
    if __import__("os").path.exists(f"cdna_kernels/{NAME}.s.ref") else ""


def generate(**kw):
    body = Gen(**kw).build()
    return f"""{HEADER}; @launch grid=(256,1,1) block=(256,1,1) lds={LDS_BYTES}
.amdgcn_target "amdgcn-amd-amdhsa--gfx950"
.text
.globl {NAME}_kernel
.p2align 8
.type {NAME}_kernel,@function
{NAME}_kernel:
{body}
.section .rodata,"a"
.p2align 6
.amdhsa_kernel {NAME}_kernel
  .amdhsa_next_free_vgpr 512
  .amdhsa_next_free_sgpr 102
  .amdhsa_accum_offset 256
  .amdhsa_group_segment_fixed_size 0
  .amdhsa_kernarg_size 120
  .amdhsa_user_sgpr_count 2
  .amdhsa_user_sgpr_kernarg_segment_ptr 1
  .amdhsa_system_sgpr_workgroup_id_x 1
  .amdhsa_float_denorm_mode_32 3
.end_amdhsa_kernel
"""


if __name__ == "__main__":
    out = sys.argv[1] if len(sys.argv) > 1 else f"cdna_kernels/{NAME}.s"
    kw = {}
    for a in sys.argv[2:]:
        k, val = a.split("=")
        kw[k] = int(val) if val.lstrip('-').isdigit() else val
    open(out, "w").write(generate(**kw))
```

```python
import sys
from emit import Emit, weave

NAME = "adaLN_cond__ssm_conv_h3__glu_gated_reglu__prompt"
S, D, F = 2048, 448, 1792

WS_EPOCH = 0
WS_GF = 0x400
WS_GO = 0x800
WS_ST1 = 0x1000
WS_MOD = 0x5000
WS_ST2 = 0x8000
WS_UT = 0x10000
PP = 16384 + 512
WS_KVG = 0x20000
WS_XG = WS_KVG + 224 * PP
WS_HL = WS_XG + 224 * PP
WS_STAMP = WS_HL + 224 * PP
WS_SIZE = WS_STAMP + 256 * 4 * 128

L_WST = 0
L_TK = 114688
L_UR = L_TK + 17024
L_ST = L_UR + 9216
L_VEC = L_ST + 16384
L_S1 = L_VEC + 2048
L_HI = 57344
L_EXT = 114688
L_X1 = L_EXT + 40960
L_RED = [0, 34816]
LDS_BYTES = 163840
BIG = 0x7fffff00
SPIN = 1 << 15

SRD_K, SRD_V, SRD_X, SRD_WS = "s[4:7]", "s[8:11]", "s[12:15]", "s[16:19]"
SRD_SH, SRD_SSM, SRD_WG, SRD_WU, SRD_WD, SRD_OUT = "s[20:23]", "s[24:27]", "s[28:31]", "s[32:35]", "s[36:39]", "s[40:43]"
SRD_C, SRD_WM = "s[4:7]", "s[8:11]"
TAG = "s[46:47]"
sW, sX, sJQ, sJR, sI, sD0, sRB, sFS = "s48", "s49", "s50", "s51", "s52", "s53", "s54", "s55"
sMASK, sSPIN, sDV, sLN = "s56", "s57", "s58", "s59"
sT = ["s%d" % i for i in range(60, 72)]
sC = ["s[72:73]", "s[74:75]", "s[76:77]", "s[78:79]"]
sLO, sEXT = "s80", "s81"
sKW = ["0", "s82", "s83", "s84"]
sKD = ["0", "s85", "s86", "s87"]
sP = ["s%d" % i for i in range(20, 28)]
STAMP0 = 90


def v(a, n=1): return f"v{a}" if n == 1 else f"v[{a}:{a+n-1}]"
def a_(a, n=1): return f"a{a}" if n == 1 else f"a[{a}:{a+n-1}]"


class WStream:
    def __init__(self, e):
        self.e = e
        self.units = [(k, 4*q + i) for q in range(7) for k in "gu" for i in range(4)] + [("d", i) for i in range(56)]
        self.next = 0; self.limit = 0; self.rlimit = 0
        self.free = [("hi", i, None) for i in range(14)] + [("lo", i, None) for i in range(14)]
        self.banned = set()
        self.pend = []
        self.pace = 96; self.lag = 12; self.tnext = 0; self.seen = 0
        self.grp = None
        self.cur = {"w": 0, "d": 0}
        self.rtok = {}
        self.skip = ''
        self.hload = None; self.hnext = 0; self.hmax = 0; self.lead = 4; self.lagw = 9999
    def dest(self, kind, i):
        if kind == "g": return [a_(4*i, 2), a_(4*i+2, 2)]
        if kind == "u": return [a_(112+4*i, 2), a_(112+4*i+2, 2)]
        ks, half = divmod(i, 2)
        return [self.dreg(ks, nt, 2*half, 2) for nt in range(2)]
    @staticmethod
    def dreg(ks, nt, off=0, n=4):
        if ks < 12: return v(160 + 8*ks + 4*nt + off, n)
        if ks < 16: return a_(224 + 8*(ks-12) + 4*nt + off, n)
        return a_(112 + 8*(ks-16) + 4*nt + off, n)
    def can_dma(self):
        return self.next < min(self.limit, len(self.units)) and any(s[0] not in self.banned for s in self.free)
    def dma(self):
        e = self.e
        kind, i = self.units[self.next]
        slot = next(s for s in self.free if s[0] not in self.banned)
        self.free.remove(slot)
        reg, idx, tok = slot
        e.wait(tok)
        g = self.grp
        k = i - g[1] if g and g[0] == kind else -1
        if not (0 < k < 4 and g[2] == reg and idx - g[3] == k and i // 8 == g[1] // 8):
            k = 0
            self.grp = (kind, i, reg, idx)
            key, vr = ("d", "v19") if kind == "d" else ("w", "v10")
            src = 7168 * (i + 8 * (i // 8)) if kind == "d" else 57344 * i
            if src != self.cur[key]:
                e(f"v_add_u32 {vr}, {(src - self.cur[key]) & 0xffffffff:#x}, {vr}")
                self.cur[key] = src
            base, off = {"lo": (sLO, 0), "hi": (sLO, L_HI), "ext": (sEXT, 0)}[reg]
            e(f"s_add_u32 m0, {base}, {off + 1024*idx}")
        vr, srd, cs = {"g": ("v10", SRD_WG, sKW), "u": ("v10", SRD_WU, sKW), "d": ("v19", SRD_WD, sKD)}[kind]
        if kind in self.skip: t = e.op("s_nop 0") or type("T", (), dict(done=True, kind="vm", seq=0))(); self.tnext = e.t + self.pace
        else: t = e.op(f"buffer_load_dwordx4 {vr}, {srd}, {cs[k]} offen offset:{1024*k} lds")
        self.pend.append((self.next, reg, idx, t))
        self.next += 1
    def read(self):
        e = self.e
        n, reg, idx, t = self.pend.pop(0)
        kind, i = self.units[n]
        e.wait(t)
        vb = {"hi": "v20", "ext": "v21"}[reg] if kind == "d" else {"lo": "v16", "hi": "v17", "ext": "v18"}[reg]
        step = 512 if kind == "d" else 256
        for j, d_ in enumerate(self.dest(kind, i)):
            tok = e.op(f"ds_read_b64_tr_b16 {d_}, {vb} offset:{1024*idx + step*j}")
        self.rtok[n] = tok
        self.free.append((reg, idx, tok))
    def hook(self):
        e = self.e
        if e.nvm > self.seen:
            self.tnext = max(self.tnext, e.t - self.pace) + self.pace * (e.nvm - self.seen)
            self.seen = e.nvm
        if e.t >= self.tnext and self.step():
            pass
        elif self.pend and self.pend[0][0] < self.rlimit and (self.pend[0][3].done or e.t - self.pend[0][3].t >= self.lag):
            self.read()
    def step(self):
        hs, hk = divmod(self.hnext, 28)
        h_ok = self.hload and self.hnext < self.hmax
        if self.can_dma() and not (h_ok and hs == 0 and hk <= (self.next - 56) // 2 - self.lead): self.dma()
        elif h_ok: self.hload(hs, hk); self.hnext += 1
        else: return False
        return True
    def aged(self):
        p = self.pend
        lag = self.lag if p and p[0][0] >= 56 else min(self.lag, self.lagw)
        return p and p[0][0] < self.rlimit and (p[0][3].done or self.e.t - p[0][3].t >= lag)
    def urgent(self): return self.next < 56
    def hneed(self, n):
        with self.e.atomic():
            while self.hnext <= n:
                assert self.hnext < self.hmax
                self.hload(*divmod(self.hnext, 28)); self.hnext += 1
    def need(self, kind, i):
        n = self.units.index((kind, i))
        if n not in self.rtok: self.flush(n + 1)
        self.e.wait(self.rtok[n])
    def drain_done(self):
        with self.e.atomic():
            while self.pend and self.pend[0][0] < self.rlimit and self.pend[0][3].done: self.read()
    def drain_keep(self, k):
        with self.e.atomic():
            while len(self.pend) > k and self.pend[0][0] < self.rlimit: self.read()
    def arm(self, recent=0):
        self.seen = self.e.nvm - recent; self.tnext = self.e.t
        self.e.hook = self.hook
    def burst(self, n):
        with self.e.atomic():
            for _ in range(n):
                if self.can_dma(): self.dma()
    def flush(self, upto):
        with self.e.atomic():
            self.limit = max(self.limit, upto); self.rlimit = max(self.rlimit, upto)
            while self.next < upto or (self.pend and self.pend[0][0] < upto):
                if self.next < upto and self.can_dma(): self.dma()
                else: self.read()


def vm(f):
    f.vm = True
    return f


def span(ops, first, last):
    n = len(ops)
    return [(first, first + ((last - first) * (k + 1)) // n, f) for k, f in enumerate(ops)]


def sched(e, ws, mm, chains, reserve=8):
    chains = [list(c) for c in chains]
    tnext = e.t
    for i, m in enumerate(mm):
        m()
        nvm = e.nvm
        while True:
            heads = sorted((c for c in chains if c and c[0][0] <= i), key=lambda c: c[0][1])
            room = e.mfree - e.t - reserve
            forced = [c for c in heads if c[0][1] <= i]
            due = e.t >= tnext and e.nvm == nvm
            vmh = [c for c in heads if getattr(c[0][2], "vm", False)]
            oth = [c for c in heads if not getattr(c[0][2], "vm", False)]
            n0 = e.nvm
            if forced: forced[0].pop(0)[2]()
            elif room < 4: break
            elif due and vmh and not ws.urgent(): vmh[0].pop(0)[2]()
            elif due and ws.step(): pass
            elif room >= 8 and ws.aged(): ws.read()
            elif oth: oth[0].pop(0)[2]()
            else: break
            if e.nvm > n0: tnext = max(tnext, e.t - ws.pace) + ws.pace * (e.nvm - n0)
    assert not any(chains)


class Gen:
    def __init__(self, stop=99, diag=False, pts=None, **opt):
        self.e = Emit()
        self.opt = opt
        mid = (pts or "kv,kvin,a1st,g1go,g1end,g2l").split(",")
        self.pts = ["start"] + mid + [None] * (6 - len(mid))
        self.stop = stop
        self.diag = diag
        self.tail = []
        self.in_helper = False
        self.clk = "s_memtime" if opt.get("cyc") else "s_memrealtime"

    def stamp(self, name):
        if name is not None and name == self.opt.get("probe") and not self.in_helper: self.e("s_memrealtime s[92:93]")
        if self.diag and name is not None and name in self.pts:
            k = self.pts.index(name)
            r = 44 if k == 0 else STAMP0 + 2*(k-1)
            self.e(f"{self.clk} s[{r}:{r+1}]")

    def srd(self, srd, off, nbytes):
        e = self.e
        b = int(srd[2:srd.index(":")])
        e(f"s_load_dwordx2 s[{b}:{b+1}], s[0:1], {off}")
        e(f"s_mov_b32 s{b+2}, {nbytes}")
        e(f"s_mov_b32 s{b+3}, 0x20000")

    def finish(self):
        e = self.e
        e.hook = None
        if self.opt.get("probe") and not self.in_helper:
            e.waitall()
            if self.opt["probe"] == "end": e("s_memrealtime s[92:93]\ns_waitcnt lgkmcnt(0)")
            e("s_sub_u32 s92, s92, s90\ns_lshl_b32 s92, s92, 2\ns_add_u32 s92, s92, 4000")
            if self.opt.get("only") is not None:
                e(f"s_cmp_eq_u32 s2, {self.opt['only']}\ns_cselect_b32 s92, s92, 0")
            e.label("L_pad")
            e("s_memrealtime s[94:95]\ns_waitcnt lgkmcnt(0)\ns_sub_u32 s94, s94, s90\ns_cmp_lt_u32 s94, s92\ns_cbranch_scc1 L_pad")
        if self.diag:
            e.waitall()
            e(f"{self.clk} s[62:63]")
            e(f"s_lshl_b32 {sT[0]}, s2, 2")
            e(f"s_add_u32 {sT[0]}, {sT[0]}, {sW}")
            e(f"s_lshl_b32 {sT[0]}, {sT[0]}, 7")
            e(f"s_add_u32 {sT[0]}, {sT[0]}, {WS_STAMP}")
            e(f"v_mov_b32 v1, {sT[0]}")
            e("s_waitcnt lgkmcnt(0)")
            for k, r in enumerate([44] + [STAMP0 + 2*i for i in range(6)] + [62, 3]):
                e(f"v_mov_b32 v2, s{r}")
                e(f"buffer_store_dword v2, v1, {SRD_WS}, 0 offen offset:{4*k}")
        e("s_endpgm")

    def tagcheck(self, quads):
        e = self.e
        for n, q in enumerate(quads):
            dst = "vcc" if n == 0 else sC[(n - 1) % 4]
            e(f"v_cmp_ne_u64 {dst}, {TAG}, {v(q+2,2)}")
            if n >= 2: e(f"s_or_b64 vcc, vcc, {sC[(n-2)%4]}")
        if len(quads) > 1: e(f"s_or_b64 vcc, vcc, {sC[(len(quads)-2)%4]}")

    def sentcheck(self, regs, tmp, acc=False):
        e = self.e
        regs = [r + 3 for r in regs]
        if acc:
            for n, r in enumerate(regs): e(f"v_accvgpr_read_b32 {v(tmp+n)}, {a_(r)}")
            regs = [tmp + n for n in range(len(regs))]
        cur = regs[0]; rest = regs[1:]
        while rest:
            if len(rest) >= 2:
                e(f"v_max3_u32 {v(tmp)}, {v(cur)}, {v(rest[0])}, {v(rest[1])}"); rest = rest[2:]
            else:
                e(f"v_max_u32 {v(tmp)}, {v(cur)}, {v(rest[0])}"); rest = rest[1:]
            cur = tmp
        e(f"v_cmp_eq_u32 vcc, -1, {v(cur)}")

    def poll(self, loads, check, nap=1, spin=SPIN):
        e = self.e
        top, out = e.newlabel("poll"), e.newlabel("pollend")
        e(f"s_mov_b32 {sSPIN}, {spin}")
        e.label(top)
        loads()
        e.waitall(lg=False)
        check()
        e(f"s_cbranch_vccz {out}")
        if nap: e(f"s_sleep {nap}")
        e(f"s_sub_u32 {sSPIN}, {sSPIN}, 1")
        e(f"s_cbranch_scc0 {top}")
        e.label(out)

    def checked(self, loads, check, cnt=None, spin=SPIN):
        e = self.e
        stub, back = e.newlabel("retry"), e.newlabel("back")
        with e.atomic():
            check()
            e(f"s_cbranch_vccnz {stub}")
            e.label(back)
        def emit_stub():
            e.forget()
            e.label(stub)
            e("s_nop 7")
            if self.diag and cnt is not None: e(f"s_bitset1_b32 s3, {cnt}")
            self.poll(loads, check, spin=spin)
            e(f"s_branch {back}")
        self.tail.append(emit_stub)

    def bfround(self, r):
        e = self.e
        e(f"v_cvt_pk_bf16_f32 {v(r)}, {v(r)}, {v(r)}")
        e(f"v_lshlrev_b32 {v(r)}, 16, {v(r)}")

    def stats_finish(self, rs, rq, neg):
        e = self.e
        e(f"v_mul_f32 {v(rs)}, 0x3b124925, {v(rs)}")
        e(f"v_mul_f32 {v(rq)}, 0x3b124925, {v(rq)}")
        e(f"v_fma_f32 {v(rq)}, -{v(rs)}, {v(rs)}, {v(rq)}")
        e(f"v_max_f32 {v(rq)}, 0, {v(rq)}")
        self.bfround(rq)
        e(f"v_add_f32 {v(rq)}, 0x3727c5ac, {v(rq)}")
        self.bfround(rq)
        e(f"v_sqrt_f32 {v(rq)}, {v(rq)}")
        e(f"v_cvt_pk_bf16_f32 {v(rs)}, {'-' if neg else ''}{v(rs)}, {v(rq)}")

    def ln1_addr(self, va, dst):
        e = self.e
        e(f"v_lshrrev_b32 {v(va)}, 5, v0")
        e(f"s_lshl_b32 {sT[0]}, {sLN}, 3")
        e(f"v_add_u32 {v(va)}, {sT[0]}, {v(va)}")
        e(f"v_mul_u32_u24 {v(va)}, 896, {v(va)}")
        e(f"v_and_b32 {v(dst)}, 31, v0")
        e(f"v_lshl_add_u32 {v(va)}, {v(dst)}, 4, {v(va)}")
        e(f"v_cmp_gt_u32 vcc, 28, {v(dst)}")
        e(f"v_mov_b32 {v(dst)}, {BIG}")
        e(f"v_cndmask_b32 {v(va)}, {v(dst)}, {v(va)}, vcc")

    def ln1_loads(self, va, dst):
        e = self.e
        e.op(f"buffer_load_dwordx4 {v(dst,4)}, {v(va)}, {SRD_X}, 0 offen")
        return e.op(f"buffer_load_dwordx4 {v(dst+4,4)}, {v(va)}, {SRD_X}, 0 offen offset:448")

    def ln1_stats(self, src, g, va):
        e = self.e
        s_, q_ = g, g + 1
        e(f"s_mov_b32 {sT[1]}, 0x3f803f80")
        e(f"v_mov_b32 {v(s_)}, 0")
        e(f"v_mov_b32 {v(q_)}, 0")
        for i in range(8):
            e(f"v_dot2c_f32_bf16 {v(s_)}, {sT[1]}, {v(src+i)}")
            e(f"v_dot2c_f32_bf16 {v(q_)}, {v(src+i)}, {v(src+i)}")
        for ctl in ("quad_perm:[1,0,3,2]", "quad_perm:[2,3,0,1]", "row_half_mirror", "row_mirror"):
            e(f"v_add_f32_dpp {v(s_)}, {v(s_)}, {v(s_)} {ctl} row_mask:0xf bank_mask:0xf")
            e(f"v_add_f32_dpp {v(q_)}, {v(q_)}, {v(q_)} {ctl} row_mask:0xf bank_mask:0xf")
        e(f"v_mov_b32 {v(src)}, {v(s_)}")
        e(f"v_mov_b32 {v(src+1)}, {v(q_)}")
        e(f"v_permlane16_swap_b32 {v(s_)}, {v(src)}")
        e(f"v_permlane16_swap_b32 {v(q_)}, {v(src+1)}")
        e(f"v_add_f32 {v(s_)}, {v(s_)}, {v(src)}")
        e(f"v_add_f32 {v(q_)}, {v(q_)}, {v(src+1)}")
        self.stats_finish(s_, q_, False)
        e(f"v_lshrrev_b32 {v(q_)}, 5, v0")
        e(f"v_lshlrev_b32 {v(q_)}, 2, {v(q_)}")
        e(f"v_add_u32 {v(q_)}, {L_S1}, {v(q_)}")
        tw = e.op(f"ds_write_b32 {v(q_)}, {v(s_)}")
        e(f"s_lshl_b32 {sT[0]}, {sLN}, 6")
        e(f"s_add_u32 {sT[0]}, {sT[0]}, {WS_ST1}")
        e(f"v_and_b32 {v(src)}, 3, v0")
        e(f"v_lshrrev_b32 {v(src+1)}, 2, v0")
        e(f"v_lshl_add_u32 {v(va)}, {v(src)}, 4, {sT[0]}")
        e(f"v_lshl_add_u32 {v(va)}, {v(src+1)}, 25, {v(va)}")
        e(f"v_lshlrev_b32 {v(src)}, 3, {v(src)}")
        e(f"v_add_u32 {v(src)}, {L_S1}, {v(src)}")
        def publish(between=None):
            e.waitall(vm=False)
            e("s_barrier")
            t = e.op(f"ds_read_b64 {v(g,2)}, {v(src)}")
            if between: between()
            e.wait(t)
            e.op(f"buffer_store_dwordx4 {v(g,4)}, {v(va)}, {SRD_WS}, 0 offen sc1")
        return publish

    def tr_addr(self, dst, tmp, hmul):
        e = self.e
        e(f"v_bfe_u32 {v(dst)}, v0, 2, 2")
        e(f"v_bfe_u32 {v(tmp)}, v0, 5, 1")
        e(f"v_mad_u32_u24 {v(dst)}, {v(tmp)}, {hmul}, {v(dst)}")
        e(f"v_lshlrev_b32 {v(dst)}, 6, {v(dst)}")
        e(f"v_bfe_u32 {v(tmp)}, v0, 4, 1")
        e(f"v_lshl_add_u32 {v(dst)}, {v(tmp)}, 5, {v(dst)}")
        e(f"v_and_b32 {v(tmp)}, 3, v0")
        e(f"v_lshl_add_u32 {v(dst)}, {v(tmp)}, 3, {v(dst)}")

    def unit_addr(self, dst, tmp, rowbytes):
        e = self.e
        e(f"v_bfe_u32 {v(dst)}, v0, 2, 3")
        e(f"v_mul_u32_u24 {v(dst)}, {rowbytes}, {v(dst)}")
        e(f"v_bfe_u32 {v(tmp)}, v0, 5, 1")
        e(f"v_lshl_add_u32 {v(dst)}, {v(tmp)}, 6, {v(dst)}")
        e(f"v_and_b32 {v(tmp)}, 3, v0")
        e(f"v_lshl_add_u32 {v(dst)}, {v(tmp)}, 4, {v(dst)}")

    def touch_small(self, va):
        e = self.e
        e(f"s_lshl_b32 {sT[0]}, s2, 2")
        e(f"s_add_u32 {sT[0]}, {sT[0]}, {sW}")
        e(f"s_lshl_b32 {sT[0]}, {sT[0]}, 7")
        e(f"v_mov_b32 {v(va)}, {sT[0]}")
        e.op(f"buffer_load_dword v1, {v(va)}, {SRD_WS}, 0 offen")

    def load_tag(self):
        e = self.e
        e(f"s_load_dword s46, s[16:17], {WS_EPOCH}")

    def make_tag(self):
        e = self.e
        e("s_add_u32 s46, s46, 0x9e3779b9")
        e("s_mov_b32 s47, -1")

    def build(self):
        e = self.e
        e("s_cmp_ge_u32 s2, 256")
        e("s_cbranch_scc1 L_exit")
        self.stamp("entry")
        if self.opt.get("probe"): e("s_memrealtime s[90:91]")
        self.srd(SRD_X, 0, 1835008)
        self.srd(SRD_WS, 112, WS_SIZE)
        e("s_getpc_b64 s[44:45]")
        e(f"s_bfe_u32 {sT[0]}, s2, 0x30003")
        e(f"s_lshl_b32 {sT[0]}, {sT[0]}, 12")
        e(f"v_lshl_add_u32 v1, v0, 4, {sT[0]}")
        e("v_min_u32 v1, L_end - L_pc - 4, v1")
        e.label("L_pc")
        e.op("global_load_dword v1, v1, s[44:45]")
        e(f"s_and_b32 {sX}, s2, 7")
        e(f"s_lshr_b32 {sT[0]}, s2, 3")
        e(f"s_mul_i32 {sJQ}, {sT[0]}, 37")
        e(f"s_lshr_b32 {sJQ}, {sJQ}, 8")
        e(f"s_mul_i32 {sJR}, {sJQ}, 7")
        e(f"s_sub_u32 {sJR}, {sT[0]}, {sJR}")
        e(f"s_lshl_b32 {sLN}, {sX}, 5")
        e(f"s_add_u32 {sLN}, {sLN}, {sT[0]}")
        e("v_lshrrev_b32 v2, 6, v0")
        e(f"s_mov_b32 {sMASK}, 0xffff0000")
        e(f"v_readfirstlane_b32 {sW}, v2")
        if self.diag:
            for k in range(2 if "entry" in self.pts else 0, 12): e(f"s_mov_b32 s{STAMP0+k}, 0")
            e("s_mov_b32 s3, 0")
        e(f"s_cmp_ge_u32 {sT[0]}, 28")
        e("s_cbranch_scc1 L_helper")
        vm0 = list(e.vm)
        self.main()
        e.forget(); e.vm = list(vm0)
        for t in vm0: t.done = False
        e.label("L_helper")
        self.in_helper = True
        self.helper()
        for t in self.tail: t()
        e.label("L_exit")
        e("s_endpgm")
        e.label("L_end")
        return e.text()

    def main(self):
        e = self.e
        o = self.opt.get
        def unpack(dst, src, hi):
            return f"v_and_b32 {v(dst)}, {sMASK}, {v(src)}" if hi else f"v_lshlrev_b32 {v(dst)}, 16, {v(src)}"
        self.srd(SRD_K, 8, 1835008)
        self.srd(SRD_V, 16, 1835008)
        self.srd(SRD_SH, 24, 3584)
        e(f"s_lshl_b32 {sI}, {sX}, 2")
        e(f"s_add_u32 {sI}, {sI}, {sJQ}")
        e(f"s_lshl_b32 {sD0}, {sJR}, 5")
        e(f"s_add_u32 {sD0}, {sD0}, {sI}")
        e(f"s_lshl_b32 {sD0}, {sD0}, 1")
        e(f"s_mul_i32 {sT[0]}, {sI}, 57344")
        e(f"s_lshl_b32 {sT[1]}, {sJR}, 7")
        e(f"s_add_u32 {sT[0]}, {sT[0]}, {sT[1]}")
        vKo, vKh, vXo, vSh, vLn, vSs, vRk, vRh, vTw, vP1, vP2 = range(232, 243)
        vGs, vRx = 31, 26
        e(f"s_mul_i32 {sLO}, {sW}, 14336")
        e(f"s_add_u32 {sT[0]}, {sT[0]}, {sLO}")
        e(f"v_bfe_u32 {v(vKo)}, v0, 3, 3")
        e(f"v_and_b32 v2, 4, {v(vKo)}")
        e(f"v_cmp_lt_u32 vcc, 4, {v(vKo)}")
        e(f"v_mul_u32_u24 {v(vKo)}, 896, {v(vKo)}")
        e("v_and_b32 v3, 7, v0")
        e("v_xor_b32 v3, v3, v2")
        e(f"v_lshl_add_u32 v3, v3, 4, {sT[0]}")
        e(f"v_add_u32 {v(vKo)}, {v(vKo)}, v3")
        e(f"v_subrev_u32 {v(vKh)}, 7168, {v(vKo)}")
        e(f"v_mov_b32 v3, {BIG}")
        e(f"v_cndmask_b32 {v(vKh)}, v3, {v(vKh)}, vcc")
        e(f"v_bfe_u32 {v(vSh)}, v0, 2, 4")
        e(f"s_lshl_b32 {sT[1]}, {sJR}, 9")
        e(f"v_lshl_add_u32 {v(vSh)}, {v(vSh)}, 5, {sT[1]}")
        self.srd(SRD_SSM, 32, 1835008)
        e("s_load_dwordx2 s[88:89], s[0:1], 40")
        self.srd(SRD_WG, 56, 1605632)
        self.srd(SRD_WU, 64, 1605632)
        self.srd(SRD_WD, 72, 1605632)
        self.srd(SRD_OUT, 96, 1835008)
        self.srd("s[72:75]", 88, 2408448)
        K, V_, SH, X, SS, LR = 32, 46, 56, 64, 72, 84
        e("v_and_b32 v24, 63, v0")
        e("v_lshlrev_b32 v24, 4, v24")
        e(f"s_lshl_b32 {sT[1]}, {sD0}, 1")
        e(f"s_add_u32 {sT[2]}, {sT[1]}, {sW}")
        e(f"s_lshl_b32 {sT[2]}, {sT[2]}, 11")
        e(f"v_add_u32 {v(vSs)}, {sT[2]}, v24")
        e(f"s_and_b32 {sT[3]}, {sW}, 1")
        e(f"s_lshl_b32 {sT[3]}, {sT[3]}, 2")
        e(f"s_sub_u32 {sT[2]}, {sT[2]}, {sT[3]}")
        e(f"s_movk_i32 {sT[3]}, 7168")
        e(f"s_add_u32 m0, {sLO}, 1152")
        self.stamp("pre")
        e("s_waitcnt lgkmcnt(0)")
        self.stamp("start")
        e.op(f"buffer_load_dwordx4 {v(vKo)}, {SRD_K}, 0 offen lds")
        e(f"s_add_u32 m0, {sLO}, 2304")
        self.load_tag()
        e.op(f"buffer_load_dwordx4 {v(vKo)}, {SRD_K}, {sT[3]} offen lds")
        e(f"s_mov_b32 m0, {sLO}")
        e(f"s_load_dword {sDV}, s[88:89], {sT[1]}")
        e.op(f"buffer_load_dwordx4 {v(vKh)}, {SRD_K}, 0 offen lds")
        e(f"s_add_u32 m0, {sLO}, 3456")
        e.op(f"buffer_load_dwordx4 {v(SH,4)}, {v(vSh)}, {SRD_SH}, 0 offen")
        tK = e.op(f"buffer_load_dwordx4 {v(SH+4,4)}, {v(vSh)}, {SRD_SH}, 0 offen offset:16")
        e.op(f"buffer_load_dwordx4 {v(vKo)}, {SRD_V}, 0 offen lds")
        e(f"s_add_u32 m0, {sLO}, 4608")
        e(f"s_load_dword s76, s[24:25], {sT[2]}")
        tV = e.op(f"buffer_load_dwordx4 {v(vKo)}, {SRD_V}, {sT[3]} offen lds")
        tk = {}
        def ld_x():
            e(f"s_add_u32 m0, {sLO}, 5760")
            e(f"s_movk_i32 {sT[0]}, 14336")
            e.op(f"buffer_load_dwordx4 {v(vXo)}, {SRD_X}, 0 offen lds")
            e(f"s_add_u32 m0, {sLO}, 6912")
            e.op(f"buffer_load_dwordx4 {v(vXo)}, {SRD_X}, {sT[0]} offen lds")
            tk["X"] = self.ln1_loads(vLn, LR)
        def ld_s():
            e.op(f"buffer_load_dwordx4 {v(SS,4)}, {v(vSs)}, {SRD_SSM}, 0 offen")
            tk["S"] = e.op(f"buffer_load_dwordx4 {v(SS+4,4)}, {v(vSs)}, {SRD_SSM}, 0 offen offset:1024")
        def touch_m(): e.op(f"buffer_load_dword v1, v22, s[72:75], 0 offen")
        def touch_s(): self.touch_small(23)
        def touch_prep():
            e("v_and_b32 v22, 63, v0")
            e("v_min_u32 v22, 13, v22")
            e("v_lshlrev_b32 v22, 7, v22")
            e(f"s_lshr_b32 {sT[0]}, s2, 3")
            e(f"s_lshl_b32 {sT[0]}, {sT[0]}, 2")
            e(f"s_add_u32 {sT[0]}, {sT[0]}, {sW}")
        def touch_w():
            touch_prep()
            e(f"s_lshr_b32 {sT[1]}, {sX}, 1")
            e(f"s_lshl_b32 {sT[0]}, {sT[0]}, 2")
            e(f"s_add_u32 {sT[0]}, {sT[0]}, {sT[1]}")
            e(f"s_lshl_b32 {sT[0]}, {sT[0]}, 1")
            e(f"s_and_b32 {sT[1]}, {sX}, 1")
            e(f"s_add_u32 {sT[0]}, {sT[0]}, {sT[1]}")
            e(f"s_mul_i32 {sT[0]}, {sT[0]}, 1792")
            e.op(f"buffer_load_dword v1, v22, {SRD_WG}, {sT[0]} offen")
            e.op(f"buffer_load_dword v1, v22, {SRD_WU}, {sT[0]} offen")
        def touch_d():
            touch_prep()
            e(f"s_lshl_b32 {sT[0]}, {sT[0]}, 3")
            e(f"s_add_u32 {sT[0]}, {sT[0]}, {sX}")
            e(f"s_mul_i32 {sT[0]}, {sT[0]}, 1792")
            e.op(f"buffer_load_dword v1, v22, {SRD_WD}, {sT[0]} offen")
        def place(pos):
            for key, dflt, f in (("ps", 0, ld_s), ("px", 0, ld_x), ("pm", 0, touch_m), ("pt", 0, touch_s), ("pw", 7, touch_w), ("pd", 7, touch_d)):
                if o(key, dflt) == pos: f()
        place(6)
        self.stamp("ldiss")
        e(f"s_and_b32 {sT[1]}, {sW}, 1")
        e(f"s_lshr_b32 {sT[2]}, {sW}, 1")
        e(f"s_mul_i32 {sT[1]}, {sT[1]}, 3584")
        e(f"s_mul_i32 {sT[2]}, {sT[2]}, 28672")
        e(f"s_add_u32 {sT[1]}, {sT[1]}, {sT[2]}")
        e(f"s_sub_u32 {sT[1]}, {sT[1]}, {sLO}")
        e(f"v_mul_u32_u24 {v(vXo)}, 896, v2")
        e(f"v_add3_u32 {v(vXo)}, {v(vXo)}, {v(vKo)}, {sT[1]}")
        self.ln1_addr(vLn, LR)
        if o("pm", 5) != 9:
            e("v_bfe_u32 v22, v0, 2, 4")
            e(f"v_min_u32 v22, {o('pmn', 5)}, v22")
            e(f"v_lshl_add_u32 v22, v22, 3, {sX}")
            e("v_subrev_u32 v23, 21, v22")
            e("v_cmp_gt_u32 vcc, 7, v23")
            e("v_cndmask_b32 v25, 0, 14, vcc")
            e("v_cmp_gt_u32 vcc, 14, v23")
            e("v_cndmask_b32 v23, 0, -7, vcc")
            e("v_add3_u32 v22, v22, v23, v25")
            e("v_min_u32 v22, 41, v22")
            e("v_and_b32 v23, 3, v0")
            e(f"s_lshr_b32 {sT[0]}, s2, 3")
            e(f"s_lshl_b32 {sT[0]}, {sT[0]}, 2")
            e(f"s_add_u32 {sT[0]}, {sT[0]}, {sW}")
            e(f"s_mul_i32 {sT[0]}, {sT[0]}, {4*5376}")
            e("v_mul_u32_u24 v23, 5376, v23")
            e("v_lshl_add_u32 v22, v22, 7, v23")
            e(f"v_add_u32 v22, {sT[0]}, v22")
        G, G2, GS = 128, 144, 92
        for q in list(range(G, G+32, 4)) + [GS]: e(f"v_mov_b32 {v(q+3)}, -1")
        place(0)
        e(f"s_lshl_b32 {sT[1]}, {sW}, 12")
        e(f"v_add_u32 v9, {sT[1]}, v24")
        for i in range(4): e(f"v_mov_b32 v{12+i}, -1")
        e("v_bfe_u32 v2, v0, 2, 4")
        e("v_and_b32 v3, 3, v0")
        e(f"v_mul_u32_u24 {v(vGs)}, {2*PP}, v2")
        e(f"v_lshl_add_u32 {v(vGs)}, v3, 4, {v(vGs)}")
        e("v_mul_u32_u24 v10, 3584, v2")
        e("v_lshl_add_u32 v10, v3, 4, v10")
        e(f"v_mul_u32_u24 {v(vP1)}, 4256, v3")
        e("v_min_u32 v4, 4, v2")
        e(f"v_lshl_add_u32 {v(vP1)}, v4, 4, {v(vP1)}")
        e(f"v_add_u32 {v(vP1)}, {L_TK}, {v(vP1)}")
        e("v_lshlrev_b32 v2, 3, v2")
        for dst, g1 in ((vRk, "v_sub_u32 v4, 5, v3"), (vRh, "v_sub_u32 v4, 4, v3"), (vRx, "v_add_u32 v4, 10, v3")):
            e(g1)
            e("v_and_b32 v5, 1, v4")
            e("v_lshrrev_b32 v4, 1, v4")
            e("v_mul_u32_u24 v5, 576, v5")
            e("v_mul_u32_u24 v4, 1152, v4")
            e("v_xor_b32 v5, v5, v2")
            e(f"v_add3_u32 {v(dst)}, v4, v5, {sLO}")
        e(f"s_mul_i32 {sT[0]}, {sJR}, {32*PP}")
        e(f"s_lshl_b32 {sT[1]}, {sI}, 8")
        e(f"s_lshl_b32 {sT[2]}, {sW}, 6")
        e(f"s_add_u32 {sT[1]}, {sT[1]}, {sT[2]}")
        e(f"s_sub_u32 {sT[4]}, {sT[0]}, {sT[1]}")
        e(f"s_add_u32 {sT[4]}, {sT[4]}, {WS_KVG + 508*16}")
        e(f"s_lshr_b32 {sT[1]}, {sI}, 2")
        e(f"s_lshl_b32 {sT[1]}, {sT[1]}, 10")
        e(f"s_and_b32 {sT[2]}, {sI}, 3")
        e(f"s_lshl_b32 {sT[2]}, {sT[2]}, 6")
        e(f"s_lshl_b32 {sT[3]}, {sW}, 8")
        e(f"s_add_u32 {sT[1]}, {sT[1]}, {sT[2]}")
        e(f"s_add_u32 {sT[1]}, {sT[1]}, {sT[3]}")
        e(f"s_add_u32 {sT[8]}, {sT[0]}, {sT[1]}")
        e(f"s_add_u32 {sT[8]}, {sT[8]}, {WS_XG}")
        for c in range(1, 4):
            e(f"s_add_u32 {sT[4+c]}, {sT[4]}, {PP*(c>>1) + 8192*(c&1)}")
            e(f"s_add_u32 {sT[8+c]}, {sT[8]}, {PP*(c>>1) + 8192*(c&1)}")
        place(5)
        e(f"s_lshr_b32 {sRB}, {sX}, 1")
        e(f"s_lshl_b32 {sRB}, {sRB}, 2")
        e(f"s_add_u32 {sRB}, {sRB}, {sJQ}")
        e(f"s_and_b32 {sFS}, {sX}, 1")
        e(f"s_mul_i32 {sFS}, {sFS}, 7")
        e(f"s_add_u32 {sFS}, {sFS}, {sJR}")
        e(f"s_lshl_b32 {sT[0]}, {sFS}, 8")
        e(f"s_lshl_b32 {sT[1]}, {sW}, 6")
        e(f"s_add_u32 {sT[0]}, {sT[0]}, {sT[1]}")
        e(f"v_add_u32 v10, {sT[0]}, v10")
        self.unit_addr(19, 2, 896)
        e(f"s_lshr_b32 {sT[0]}, {sW}, 1")
        e(f"s_mul_i32 {sT[0]}, {sT[0]}, {896*896}")
        e(f"s_and_b32 {sT[1]}, {sW}, 1")
        e(f"s_mul_i32 {sT[1]}, {sT[1]}, {64*896}")
        e(f"s_add_u32 {sT[0]}, {sT[0]}, {sT[1]}")
        e(f"s_lshl_b32 {sT[1]}, {sJR}, 7")
        e(f"s_add_u32 {sT[0]}, {sT[0]}, {sT[1]}")
        e(f"v_add_u32 v19, {sT[0]}, v19")
        e(f"s_mul_i32 {sEXT}, {sW}, 10240")
        e(f"s_add_u32 {sEXT}, {sEXT}, {L_EXT}")
        for k in range(1, 4):
            e(f"s_mov_b32 {sKW[k]}, {56320*k}")
            e(f"s_mov_b32 {sKD[k]}, {6144*k}")
        self.tr_addr(11, 2, 8)
        e(f"v_add_u32 v16, {sLO}, v11")
        e(f"v_add_u32 v17, {L_HI}, v16")
        e("v_bfe_u32 v2, v0, 5, 1")
        e("v_lshlrev_b32 v2, 8, v2")
        e(f"v_add_u32 v18, {sEXT}, v11")
        e("v_sub_u32 v20, v17, v2")
        e("v_sub_u32 v21, v18, v2")
        e(f"s_lshr_b32 {sT[0]}, {sW}, 1")
        e(f"s_mul_i32 {sT[0]}, {sT[0]}, {8512 - 4096}")
        e(f"s_lshl_b32 {sT[1]}, {sW}, 11")
        e(f"s_add_u32 {sT[0]}, {sT[0]}, {sT[1]}")
        e(f"s_add_u32 {sT[0]}, {sT[0]}, {L_TK + 80}")
        e(f"v_add_u32 {v(vTw)}, {sT[0]}, v24")
        e("v_and_b32 v3, 1, v0")
        e(f"v_mul_u32_u24 {v(vP2)}, 4608, v3")
        e("v_bfe_u32 v2, v0, 1, 5")
        e(f"v_lshl_add_u32 {v(vP2)}, v2, 4, {v(vP2)}")
        e(f"v_add_u32 {v(vP2)}, {L_UR + 4096}, {v(vP2)}")
        for i in range(4): e(f"v_mov_b32 v{96+i}, 0")
        e("v_and_b32 v8, 3, v0")
        e("v_and_b32 v2, v2, v3")
        e("v_add_u32 v8, v8, v2")
        e("v_mul_u32_u24 v8, 1792, v8")
        e("v_mul_u32_u24 v3, 4256, v3")
        e("v_and_b32 v2, 7, v0")
        e("v_or_b32 v2, 1, v2")
        e("v_bfe_u32 v4, v0, 3, 1")
        e("v_lshl_add_u32 v2, v4, 5, v2")
        e("v_bfe_u32 v27, v0, 4, 2")
        e("v_lshl_add_u32 v2, v27, 3, v2")
        e("v_lshlrev_b32 v2, 1, v2")
        e("v_sub_u32 v2, v2, v3")
        sHW, sCH = sT[3], sT[2]
        e(f"s_and_b32 {sHW}, {sW}, 1")
        e(f"s_lshr_b32 {sCH}, {sW}, 1")
        e(f"s_mul_i32 {sT[0]}, {sCH}, 8512")
        e(f"s_lshl_b32 {sT[1]}, {sHW}, 8")
        e(f"s_add_u32 {sT[0]}, {sT[0]}, {sT[1]}")
        e(f"s_add_u32 {sT[0]}, {sT[0]}, {L_TK + 4256 + 2}")
        e(f"v_add_u32 v2, {sT[0]}, v2")
        e(f"s_mul_i32 {sT[0]}, {sCH}, 512")
        e(f"s_add_u32 {sT[0]}, {sT[0]}, {L_UR}")
        e("v_lshrrev_b32 v30, 1, v9")
        e(f"v_add_u32 v3, {sT[0]}, v30")
        e(f"v_add_u32 v30, {L_ST}, v30")
        e("v_and_b32 v5, 3, v0")
        e("v_bfe_u32 v6, v0, 2, 2")
        e("v_lshlrev_b32 v4, 4, v5")
        e("v_lshl_add_u32 v5, v6, 3, v5")
        e("v_lshl_add_u32 v4, v6, 8, v4")
        e("v_bfe_u32 v6, v0, 4, 1")
        e("v_bfe_u32 v28, v0, 5, 1")
        e("v_lshl_add_u32 v7, v5, 1, v6")
        e("v_lshl_add_u32 v7, v28, 3, v7")
        e("v_lshl_add_u32 v4, v6, 10, v4")
        e("v_lshl_add_u32 v4, v28, 7, v4")
        e("v_sub_u32 v5, v27, v5")
        e(f"s_mul_i32 {sT[1]}, {sCH}, 4608")
        e(f"s_lshl_b32 {sT[0]}, {sHW}, 8")
        e(f"s_add_u32 {sT[0]}, {sT[0]}, {sT[1]}")
        e(f"s_add_u32 {sT[0]}, {sT[0]}, {L_UR + 2*(2008-1792)}")
        e(f"v_lshl_add_u32 v5, v5, 4, {sT[0]}")
        e(f"s_lshl_b32 {sT[0]}, {sHW}, 11")
        e(f"s_sub_u32 {sT[0]}, {sT[1]}, {sT[0]}")
        e(f"s_add_u32 {sT[0]}, {sT[0]}, {L_UR + 2*(2044-768)}")
        e("v_lshlrev_b32 v6, 3, v7")
        e(f"v_sub_u32 v6, {sT[0]}, v6")
        e(f"s_lshl_b32 {sT[0]}, {sHW}, 12")
        e(f"s_add_u32 {sT[0]}, {sT[0]}, {L_ST}")
        e(f"v_lshl_add_u32 v7, v7, 4, {sT[0]}")
        e(f"v_add_u32 v28, {L_TK}, v9")
        e("v_xor_b32 v29, 0x1000, v9")
        e(f"v_add_u32 v29, {L_TK}, v29")

        self.stamp("setup")
        e("s_waitcnt lgkmcnt(0)")
        self.stamp("tag")
        e(f"s_lshl_b32 {sT[0]}, {sCH}, 4")
        e(f"s_lshr_b32 {sDV}, {sDV}, {sT[0]}")
        e(f"s_lshl_b32 {sDV}, {sDV}, 16")
        e(f"s_mul_i32 s76, s76, {sHW}")
        e(f"v_mov_b32 {v(SS+8)}, s76")
        e.op(f"ds_write_b128 {v(vP1)}, v[96:99]")
        e.op(f"ds_write_b128 {v(vP2)}, v[96:99]")
        self.make_tag()
        for q in list(range(G, G+32, 4)) + [GS]: e(f"v_mov_b32 {v(q+2)}, s46")
        place(1)
        WF, KF, AC, VF, PK = 96, 176, 112, 208, 224
        self.stamp("issued")
        e.wait(tK)
        self.stamp("kin")
        def go_publish():
            e(f"s_lshr_b32 {sT[0]}, s2, 3")
            e(f"s_add_u32 {sT[0]}, {sT[0]}, {sW}")
            e(f"s_cmp_lg_u32 {sT[0]}, 0")
            e("s_cbranch_scc1 L_nogo")
            e(f"s_lshl_b32 {sT[0]}, {sX}, 7")
            e("v_lshrrev_b32 v27, 2, v0")
            e("v_lshlrev_b32 v27, 25, v27")
            e("v_and_or_b32 v27, v24, 63, v27")
            e(f"buffer_store_dwordx4 {v(GS,4)}, v27, {SRD_WS}, {sT[0]} offen offset:{WS_GO} sc1")
            e.vm.pop()
            e("s_nop 0")
            e.label("L_nogo")
        def go_load(): e.op(f"buffer_load_dwordx4 {v(SH,4)}, v23, {SRD_WS}, 0 offen offset:{WS_GO} sc1")
        kt = [e.op(f"ds_read_b64 {v(K+2*r,2)}, {v(vRh)} offset:{128*(r+1)}") for r in range(3)]
        kt += [e.op(f"ds_read_b64 {v(K+6+2*r,2)}, {v(vRk)} offset:{128*r}") for r in range(4)]
        for c in range(4):
            for j in range(4): e(unpack(WF+4*j+c, SH+2*c+j//2, j & 1))
        for r in range(7):
            e.wait(kt[r])
            for c in range(4): e(unpack(KF+4*r+c, K+2*r+c//2, c & 1))
        for j in (3, 2, 1, 0):
            if j == 1:
                e.wait(tV)
                self.stamp("vin")
                if o("go", 1): go_publish()
                vt_ = [e.op(f"ds_read_b64 {v(V_+2*r,2)}, {v(vRk)} offset:{2304 + 128*r}") for r in range(4)]
            for r in range(4):
                for p in (0, 2):
                    d_, k_, w_ = v(AC+4*r+p, 2), v(KF+4*(r+3-j)+p, 2), v(WF+4*j+p, 2)
                    e(f"v_pk_mul_f32 {d_}, {k_}, {w_}" if j == 3 else f"v_pk_fma_f32 {d_}, {k_}, {w_}, {d_}")
        e.wait(vt_[3])
        def kvstore(c): tk["kst"] = e.op(f"buffer_store_dwordx4 {v(G+4*c,4)}, {v(vGs)}, {SRD_WS}, {sT[4+c]} offen sc1")
        for p in (0, 2):
            for r in range(4):
                for c in (p, p+1): e(unpack(VF+4*r+c, V_+2*r+c//2, c & 1))
                e(f"v_pk_mul_f32 {v(AC+4*r+p,2)}, {v(AC+4*r+p,2)}, {v(VF+4*r+p,2)}")
            for c in (p, p+1):
                e(f"v_cvt_pk_bf16_f32 {v(G+4*c)}, {v(AC+12+c)}, {v(AC+8+c)}")
                e(f"v_cvt_pk_bf16_f32 {v(G+4*c+1)}, {v(AC+4+c)}, {v(AC+c)}")
        self.stamp("kv")
        place(2)
        e.wait(tk["S"])
        self.stamp("sin")
        CB = 96
        e(f"v_readlane_b32 s76, {v(SS+3)}, 63")
        e.op(f"ds_write_b128 {v(vTw)}, {v(SS,4)}")
        e.op(f"ds_write_b128 {v(vTw)}, {v(SS+4,4)} offset:1024")
        e(f"v_mov_b32 {v(SS+9)}, s76")
        for h in range(2):
            for i in range(1, 4): e(f"v_alignbit_b32 {v(CB+4*h+i)}, {v(SS+4*h+i)}, {v(SS+4*h+i-1)}, 16")
            e(f"v_mov_b32_dpp {v(SS+8+h)}, {v(SS+4*h+3)} wave_shr:1 row_mask:0xf bank_mask:0xf")
            e(f"v_alignbit_b32 {v(CB+4*h)}, {v(SS+4*h)}, {v(SS+8+h)}, 16")
            e.op(f"ds_write_b128 {v(vTw)}, {v(CB+4*h,4)} offset:{4256 + 1024*h}")
        def xwork():
            e(f"s_mov_b32 {sT[0]}, 0x05040100")
            e(f"s_mov_b32 {sT[1]}, 0x07060302")
            e.wait(tk["X"])
            self.stamp("xin")
            if o("go", 1):
                e("v_and_b32 v23, 7, v0")
                e("v_lshlrev_b32 v23, 7, v23")
                e(f"s_cmp_lg_u32 {sW}, 0")
                e("s_cbranch_scc1 L_nogo1")
                go_load()
                e.label("L_nogo1")
            for r in range(4): t = e.op(f"ds_read_b64 {v(X+2*r,2)}, {v(vRx)} offset:{128*r}")
            e.wait(t)
            for c in range(4):
                e(f"v_perm_b32 {v(G2+4*c)}, {v(X+2+c//2)}, {v(X+c//2)}, {sT[c&1]}")
                e(f"v_perm_b32 {v(G2+4*c+1)}, {v(X+6+c//2)}, {v(X+4+c//2)}, {sT[c&1]}")
            return self.ln1_stats(LR, GS, 27)
        def xstore(c): tk["xst", c] = e.op(f"buffer_store_dwordx4 {v(G2+4*c,4)}, {v(vGs)}, {SRD_WS}, {sT[8+c]} offen sc1")
        sKVG, sXG, sHH, sMOD, sST1, sAS = sP[0], sP[1], sP[2], sP[3], sP[4], sP[5]
        e(f"s_mul_i32 {sT[0]}, {sD0}, {PP//2}")
        e(f"s_add_u32 {sKVG}, {sT[0]}, {WS_KVG}")
        e(f"s_add_u32 {sXG}, {sT[0]}, {WS_XG}")
        e(f"s_mov_b32 {sST1}, {WS_ST1}")
        e(f"s_lshr_b32 {sMOD}, {sD0}, 2")
        e(f"s_lshl_b32 {sMOD}, {sMOD}, 4")
        e(f"s_add_u32 {sMOD}, {sMOD}, {WS_MOD}")
        e(f"s_lshl_b32 {sT[0]}, {sW}, 11")
        e(f"s_add_u32 {sHH}, {sXG}, {sT[0]}")
        e(f"s_lshl_b32 {sT[0]}, {sCH}, 6")
        e(f"s_lshl_b32 {sT[1]}, {sHW}, 12")
        e(f"s_add_u32 {sT[0]}, {sT[0]}, {sT[1]}")
        e(f"s_add_u32 {sAS}, {sKVG}, {sT[0]}")
        e(f"s_add_u32 {sP[6]}, {sAS}, 8192")
        pub = xwork()
        e.waitall(lg=False)
        if o("go", 1):
            e(f"s_cmp_lg_u32 {sW}, 0")
            e("s_cbranch_scc1 L_nogo2")
            self.checked(go_load, lambda: self.tagcheck([SH]), 28, spin=12)
            e.label("L_nogo2")
        pub(lambda: (self.stamp("allin"), [kvstore(c) for c in range(4)]))
        xe = o("xe", 3)
        xord = (2, 3, 1, 0)
        for c in xord[:xe]: xstore(c)
        self.stamp("tkbar")
        ws = WStream(e)
        ws.pace, ws.lag = o("pace", 64), o("lag", 1300)
        ws.limit, ws.rlimit = 56, 56
        ws.skip = str(o("skip", ""))
        ws.burst(o("w0", 0))
        KG = 32
        def kvloads():
            for i in range(4): t = e.op(f"buffer_load_dwordx4 {v(KG+4*i,4)}, v9, {SRD_WS}, {sKVG} offen offset:{1024*i} sc1")
            return t
        def treg(rl, p, off=0, n=4):
            return v(160 + (rl*8+p)*4 + off, n) if rl < 3 else a_(224 + p*4 + off, n)
        tr = []
        for pp in range(4):
            for p in (2*pp, 2*pp+1):
                for rl in range(4):
                    def f(pp=pp, p=p, rl=rl):
                        of = rl*16 + (p & 1)*128
                        e.op(f"ds_read2_b32 {treg(rl,p,0,2)}, v2 offset0:{of} offset1:{of+1}")
                        e.op(f"ds_read2_b32 {treg(rl,p,2,2)}, v2 offset0:{of+2} offset1:{of+3}")
                        if (p & 1) and rl == 3 and pp < 3: e("v_add_u32 v2, 1024, v2")
                    tr.append(f)
        kvat = o("kvat", 16)
        for f in tr[:kvat]: f()
        e.wait(tk["kst"])
        self.stamp("clr")
        for c in xord[xe:]: xstore(c)
        kv2 = o("kv2", 32)
        for f in tr[kvat:kv2]: f()
        if o("xt", 4): e.wait(tk["xst", xord[o("xt", 4) - 1]])
        self.stamp("stc")
        tkv = kvloads()
        place(3)
        for f in tr[kv2:]: f()
        ws.burst(o("w1", 0))
        self.stamp("toep")
        e.wait(tkv)
        self.checked(kvloads, lambda: self.tagcheck([KG+4*i for i in range(4)]), 0)
        for i in range(4): e.op(f"ds_write_b64 v3, {v(KG+4*i,2)} offset:{512*i}")
        place(4)
        e.waitall(vm=False)
        e("s_barrier")
        self.stamp("kvin")
        if self.stop <= 1: return self.finish()

        BR, DA, NB = 64, 96, 6
        XQ, SQ, MQ, EE, GG, KVR, RS, MR = 128, 144, 88, 32, 48, 144, 152, 156
        cA, cB, cC, cD = 25, 26, 22, 23
        seq = [(rl, m) for rl in range(4) for m in range(8)]
        btok = {}
        def bread(n):
            rl, m = seq[n]
            btok[n] = e.op(f"ds_read_b128 {v(BR+4*(n%NB),4)}, v5 offset:{rl*64 + (7-m)*512}")
        mm = []
        for n, (rl, m) in enumerate(seq):
            for p in range(8 - m):
                def f(n=n, rl=rl, m=m, p=p):
                    if p == 0: e.wait(btok[n])
                    c_ = "0" if (rl == 0 and m == 0) else v(DA+4*(p+m), 4)
                    e(f"v_mfma_f32_16x16x32_bf16 {v(DA+4*(p+m),4)}, {treg(rl,p)}, {v(BR+4*(n%NB),4)}, {c_}")
                    if p == 0 and n + NB - 1 < 32: bread(n + NB - 1)
                mm.append(f)
        for n in range(NB - 1): bread(n)
        def sloads():
            for i in range(4): t = e.op(f"buffer_load_dwordx4 {v(SQ+4*i,4)}, v9, {SRD_WS}, {sST1} offen offset:{1024*i} sc1")
            return t
        def xloads():
            for i in range(4): e.op(f"buffer_load_dwordx4 {v(XQ+4*i,4)}, v9, {SRD_WS}, {sXG} offen offset:{1024*i} sc1")
            return e.op(f"buffer_load_dwordx4 {v(MQ,4)}, v8, {SRD_WS}, {sMOD} offen sc1")
        def hoff(T): return 8192*(T & 1) + (WS_HL - WS_XG)*(T >> 1)
        def clear_h(T):
            if o("noclrh", 0):
                tk["ch"] = None
                return
            with e.atomic():
                e(f"s_add_u32 {sT[0]}, {sHH}, {hoff(T)}")
                e.op(f"buffer_store_dwordx4 v[12:15], v24, {SRD_WS}, {sT[0]} offen sc1")
                tk["ch"] = e.op(f"buffer_store_dwordx4 v[12:15], v24, {SRD_WS}, {sT[0]} offen offset:1024 sc1")
        fill = []
        F_ = fill.append
        def I(txt): F_(lambda: e(txt))
        def f():
            e.wait(tk["s"])
            self.checked(sloads, lambda: self.tagcheck([SQ+4*i for i in range(4)]), 1)
        F_(f)
        for i in range(4):
            q = SQ + 4*i
            for r in range(2):
                I(f"v_and_b32 {v(q+2+r)}, {sMASK}, {v(q+r)}")
                I(f"v_rcp_f32 {v(q+2+r)}, {v(q+2+r)}")
                I(f"v_lshlrev_b32 {v(q+r)}, 16, {v(q+r)}")
                I(f"v_mul_f32 {v(q+r)}, -{v(q+r)}, {v(q+2+r)}")
            F_(lambda q=q, i=i: e.op(f"ds_write_b64 v30, {v(q+2,2)} offset:{512*i}"))
            def f(q=q, i=i): tk["w"] = e.op(f"ds_write_b64 v30, {v(q,2)} offset:{8192+512*i}")
            F_(f)
        def f():
            e.wait(tk["x"])
            self.checked(xloads, lambda: self.tagcheck([XQ+4*i for i in range(4)] + [MQ]), 2)
        F_(f)
        def f():
            e.wait(tk["w"])
            e("s_barrier")
            with e.atomic():
                e(f"s_lshl_b32 {sT[0]}, {sI}, 2")
                e(f"s_add_u32 {sT[0]}, {sT[0]}, {sW}")
                e(f"s_cmp_lg_u32 {sT[0]}, 0")
                e("s_cbranch_scc1 L_noflag")
                e(f"s_lshl_b32 {sT[0]}, {sJR}, 7")
                e("v_lshrrev_b32 v27, 2, v0")
                e("v_lshlrev_b32 v27, 25, v27")
                e("v_and_or_b32 v27, v24, 63, v27")
                e(f"buffer_store_dwordx4 {v(GS,4)}, v27, {SRD_WS}, {sT[0]} offen offset:{WS_GF} sc1")
                e.vm.pop()
                e.label("L_noflag")
        F_(f)
        def f():
            with e.atomic():
                e(f"s_bitcmp1_b32 {sD0}, 1")
                e("s_cselect_b64 vcc, -1, 0")
        F_(f)
        I(f"v_cndmask_b32 {v(MQ)}, {v(MQ)}, {v(MQ+1)}, vcc")
        I(f"s_lshl_b32 {sT[1]}, {sCH}, 4")
        I(f"v_lshrrev_b32 {v(MQ)}, {sT[1]}, {v(MQ)}")
        I(f"v_lshlrev_b32 {v(MQ)}, 16, {v(MQ)}")
        I(f"v_add_f32 {v(MQ+1)}, 1.0, {v(MQ)}")
        F_(lambda: self.bfround(MQ+1))
        I(f"v_mov_b32_dpp {v(cB)}, {v(MQ)} quad_perm:[0,0,0,0] row_mask:0xf bank_mask:0xf")
        I(f"v_mov_b32_dpp {v(cD)}, {v(MQ)} quad_perm:[2,2,2,2] row_mask:0xf bank_mask:0xf")
        I(f"v_mov_b32_dpp {v(cA)}, {v(MQ+1)} quad_perm:[1,1,1,1] row_mask:0xf bank_mask:0xf")
        I(f"v_mov_b32_dpp {v(cC)}, {v(MQ+1)} quad_perm:[3,3,3,3] row_mask:0xf bank_mask:0xf")
        I(f"v_mul_f32 {v(cA)}, {v(cA)}, {v(cD)}")
        I(f"v_mul_f32 {v(cB)}, {v(cB)}, {v(cD)}")
        for t in range(4):
            def f(t=t):
                e.op(f"ds_read_b64 {v(KVR+2*t,2)}, v6 offset:{512*(3-t)}")
                e.op(f"ds_read_b128 {v(RS,4)}, v7 offset:{1024*t}")
                tk["r"] = e.op(f"ds_read_b128 {v(MR,4)}, v7 offset:{8192+1024*t}")
            F_(f)
            for r in range(4): I(unpack(EE+4*t+r, XQ+4*t+r//2, r & 1))
            F_(lambda: e.wait(tk["r"]))
            for r in range(4):
                g_, x_ = v(GG+4*t+r), v(EE+4*t+r)
                I(f"v_fma_f32 {g_}, {x_}, {v(RS+r)}, {v(MR+r)}")
                I(unpack(RS+r, KVR+2*t+1-r//2, not (r & 1)))
                I(f"v_fma_f32 {g_}, {g_}, {v(cA)}, {v(cB)}")
                I(f"v_mul_f32 {v(RS+r)}, {sDV}, {v(RS+r)}")
                I(f"v_fmac_f32 {x_}, {g_}, {v(RS+r)}")
        c0, cs_, cx = o("cv0", 64), o("cvs", 4), o("cvx", 24)
        weave(mm[:cs_], [])
        tk["s"] = sloads()
        weave(mm[cs_:cx], [])
        tk["x"] = xloads()
        place(7)
        ws.arm(o("cvw", 3))
        weave(mm[cx:c0], [])
        weave(mm[c0:], fill)
        e.hook = None
        self.stamp("conv")
        Y = 64
        e(f"s_cmp_eq_u32 {sHW}, 0")
        e("s_cbranch_scc0 L_red1")
        save = (list(e.vm), list(e.lg))
        for hw in (0, 1):
            if hw:
                e.label("L_red1"); e("s_nop 7")
                e.vm, e.lg = list(save[0]), list(save[1])
            keep, send = DA + 16*hw, DA + 16*(1-hw)
            for t in range(4): e.op(f"ds_write_b128 v28, {v(send+4*t,4)} offset:{1024*t}")
            e.waitall(vm=False)
            e("s_barrier")
            rt = [e.op(f"ds_read_b128 {v(Y+4*t,4)}, v29 offset:{1024*t}") for t in range(4)]
            for t in range(4):
                e.wait(rt[t])
                for p in (0, 2): e(f"v_pk_add_f32 {v(Y+4*t+p,2)}, {v(Y+4*t+p,2)}, {v(keep+4*t+p,2)}")
            if not hw: e("s_branch L_red2")
        e.label("L_red2")
        PX, PA = 80, 88
        def pubq(q, so, off):
            e(f"v_permlane16_swap_b32 {v(q)}, {v(q+2)}")
            e(f"v_permlane16_swap_b32 {v(q+1)}, {v(q+3)}")
            e(f"v_min_u32 {v(q+3)}, -2, {v(q+3)}")
            tk["as"] = e.op(f"buffer_store_dwordx4 {v(q,4)}, v4, {SRD_WS}, {so} offen offset:{off} sc1")
        for pi in range(2):
            for t in (2*pi, 2*pi+1):
                for p in (0, 2):
                    y_ = v(Y+4*t+p, 2)
                    e(f"v_pk_fma_f32 {y_}, {v(GG+4*t+p,2)}, {y_}, {v(EE+4*t+p,2)}")
                    e(f"v_pk_mul_f32 {v(GG+4*t+p,2)}, {y_}, {v(cC,2)} op_sel_hi:[1,0]")
                    e(f"v_cvt_pk_bf16_f32 {v(PA+2*t+p//2)}, {v(GG+4*t+p)}, {v(GG+4*t+p+1)}")
                    e(f"v_cvt_pk_bf16_f32 {v(PX+2*t+p//2)}, {v(Y+4*t+p)}, {v(Y+4*t+p+1)}")
            pubq(PA+4*pi, sAS, 2048*pi)
        for pi in range(2): pubq(PX+4*pi, sP[6], 2048*pi)
        self.stamp("a1st")
        if self.stop <= 2: return self.finish()

        e("v_min_u32 v2, 96, v24")
        e("v_lshlrev_b32 v2, 3, v2")
        def fload(): tk["f"] = e.op(f"buffer_load_dwordx4 v[32:35], v2, {SRD_WS}, 0 offen offset:{WS_GF} sc1")
        fload()
        ws.drain_keep(o("keep2", 8))
        ws.burst(o("w2", 10))
        sST2, sHS, sMT, sOUT, sUT = sP[0], sP[1], sP[3], sP[4], sP[5]
        sA = [f"s{4+i}" for i in range(7)]
        e("v_bfe_u32 v25, v0, 3, 3")
        e(f"v_mul_u32_u24 v25, {PP}, v25")
        e("v_and_b32 v5, 7, v0")
        e("v_lshl_add_u32 v25, v5, 4, v25")
        e(f"s_mul_i32 {sT[0]}, {sW}, 7168")
        e(f"v_add_u32 v26, {sT[0]}, v24")
        e(f"s_mul_i32 {sT[0]}, {sW}, {56*PP}")
        e(f"s_lshl_b32 {sT[1]}, {sRB}, 9")
        e(f"s_add_u32 {sT[0]}, {sT[0]}, {sT[1]}")
        for i in range(7): e(f"s_add_u32 {sA[i]}, {sT[0]}, {WS_KVG + 8*PP*i}")
        e("v_and_b32 v30, 31, v0")
        e("v_mul_u32_u24 v8, 272, v30")
        e("v_lshlrev_b32 v30, 4, v30")
        e(f"s_lshl_b32 {sST2}, {sRB}, 11")
        e(f"s_add_u32 {sST2}, {sST2}, {WS_ST2}")
        e(f"s_and_b32 {sT[1]}, {sX}, 1")
        e(f"s_lshl_b32 {sMT}, {sRB}, 2")
        e(f"s_add_u32 {sMT}, {sMT}, {sT[1]}")
        e(f"s_lshl_b32 {sT[1]}, {sT[1]}, 1")
        e(f"s_add_u32 {sT[1]}, {sT[1]}, {sHW}")
        e(f"s_lshl_b32 {sT[1]}, {sT[1]}, 12")
        e(f"s_and_b32 {sT[0]}, {sX}, 6")
        e(f"s_add_u32 {sT[0]}, {sT[0]}, {sCH}")
        e(f"s_lshl_b32 {sT[0]}, {sT[0]}, 2")
        e(f"s_add_u32 {sT[0]}, {sT[0]}, {sJQ}")
        e(f"s_mul_i32 {sHS}, {sT[0]}, {PP}")
        e(f"s_add_u32 {sHS}, {sHS}, {sT[1]}")
        e(f"s_add_u32 {sHS}, {sHS}, {WS_XG}")
        e(f"s_lshl_b32 {sUT}, {sFS}, 2")
        e(f"s_add_u32 {sUT}, {sUT}, {sW}")
        e(f"s_lshl_b32 {sUT}, {sUT}, 9")
        e(f"s_add_u32 {sUT}, {sUT}, {WS_UT}")
        e(f"s_add_u32 {sP[6]}, {sUT}, 28672")
        e("v_lshlrev_b32 v3, 5, v5")
        e("v_lshrrev_b32 v6, 3, v0")
        e("v_lshlrev_b32 v9, 4, v6")
        e("v_bfe_u32 v7, v0, 5, 1")
        e(f"s_mul_i32 {sT[1]}, {sW}, 8704")
        e(f"v_lshl_add_u32 v7, v7, 4, {sT[1]}")
        e("v_add_u32 v8, v8, v7")
        e("v_mul_u32_u24 v28, 272, v6")
        e("v_add_u32 v28, v28, v3")
        e("v_lshlrev_b32 v29, 9, v5")
        e("v_lshl_add_u32 v29, v6, 1, v29")
        e(f"v_add_u32 v29, {L_X1}, v29")
        e("v_mul_u32_u24 v31, 896, v6")
        e("v_lshl_add_u32 v31, v5, 4, v31")
        e(f"s_mul_i32 {sOUT}, {sMT}, 28672")
        e(f"s_lshl_b32 {sT[1]}, {sJR}, 7")
        e(f"s_add_u32 {sOUT}, {sOUT}, {sT[1]}")
        e(f"s_lshl_b32 {sT[8]}, {sJR}, 8")
        e(f"s_add_u32 {sT[8]}, {sT[8]}, {WS_MOD + 560*16}")
        e(f"s_lshl_b32 {sT[9]}, {sMT}, 9")
        e(f"s_add_u32 {sT[9]}, {sT[9]}, {WS_ST2}")
        e(f"s_lshl_b32 {sT[0]}, {sJR}, 2")
        e(f"s_add_u32 {sT[0]}, {sT[0]}, {sW}")
        e(f"s_mul_i32 {sT[10]}, {sT[0]}, {8*PP}")
        e(f"s_lshl_b32 {sT[0]}, {sMT}, 7")
        e(f"s_add_u32 {sT[10]}, {sT[10]}, {sT[0]}")
        e(f"s_add_u32 {sT[10]}, {sT[10]}, {WS_KVG + 8192}")
        e(f"s_lshl_b32 {sT[11]}, {sW}, 10")
        BR, ACC, PH, XA, SG = 32, [64, 96], 48, [56, 156], [60, 4]
        AS = [128, 96, 128, 128]
        def aload1(T, i):
            tk["a", T] = e.op(f"buffer_load_dwordx4 {v(AS[T]+4*i,4)}, v25, {SRD_WS}, {sA[i]} offen offset:{128*T} sc1")
        def aloads(T):
            for i in range(7): aload1(T, i)
        def acheck(T):
            e.wait(tk["a", T])
            self.checked(lambda: aloads(T), lambda: self.sentcheck([AS[T]+4*i for i in range(7)], 27), 4 + T)
        def awrite(T, i):
            tk["aw"] = e.op(f"ds_write_b128 v26, {v(AS[T]+4*i,4)} offset:{28672*(T&1) + 1024*i}")
        e.wait(tk["f"])
        self.checked(fload, lambda: self.tagcheck([32]), 27)
        self.stamp("asd")
        aloads(0)
        aloads(1)
        ws.banned = {"lo"}
        ws.drain_keep(0)
        e.waitall(vm=False)
        e("s_barrier")
        ws.free += [("ext", i, None) for i in range(10)]
        ws.limit, ws.rlimit = 112, 88
        ws.burst(o("w3", 4))
        acheck(0)
        self.stamp("a0in")
        for i in range(7): awrite(0, i)
        e.wait(tk["aw"])
        e("s_barrier")
        self.stamp("g1go")

        bt = {}
        def bread1(n, h):
            T, ks = divmod(n, 28)
            bt[n] = e.op(f"ds_read_b64_tr_b16 {v(BR+4*(n%4)+2*h,2)}, v11 offset:{28672*(T & 1) + 1024*ks + 256*h}")
        def sgload(T):
            tk["sg", T] = e.op(f"buffer_load_dwordx4 {v(SG[T&1],4)}, v30, {SRD_WS}, {sST2} offen offset:{512*T} sc1")
        def utload(m):
            tk["ut"] = e.op(f"buffer_load_dwordx4 {v(XA[m],4)}, v30, {SRD_WS}, {(sUT, sP[6])[m]} offen sc1")
        def utcheck():
            e.wait(tk["ut"])
            self.checked(lambda: (utload(0), utload(1)), lambda: self.tagcheck(XA), 3)
        def utzero():
            e("s_mov_b32 exec_lo, 0")
            for q in XA:
                e(f"v_mov_b32 {v(q)}, 0")
                e(f"v_mov_b32 {v(q+1)}, 0")
            e("s_mov_b32 exec_lo, -1")
        def extra(T):
            A = ACC[T & 1]
            e.wait(tk["sg", T])
            self.checked(lambda: sgload(T), lambda: self.tagcheck([SG[T&1]]), 8 + T)
            for m in range(2):
                e(f"v_mfma_f32_32x32x8_bf16 {v(A+16*m,16)}, {v(XA[m],2)}, {v(SG[T&1],2)}, {v(A+16*m,16)}")
        nop = lambda: None
        def epi(T):
            ops = []
            A = ACC[T & 1]
            for r in range(16):
                ops.append(lambda r=r: e(f"v_max_f32 {v(A+r)}, 0, {v(A+r)}"))
                ops.append(lambda r=r: e(f"v_mul_f32 {v(A+r)}, {v(A+r)}, {v(A+16+r)}"))
                if r & 1: ops.append(lambda r=r: e(f"v_cvt_pk_bf16_f32 {v(PH+r//2)}, {v(A+r-1)}, {v(A+r)}"))
                if r == 3: ops.append(lambda: e(f"s_add_u32 {sT[6]}, {sHH}, {hoff(T)}"))
                if r % 8 == 7:
                    ph = r // 8
                    ops.append(lambda ph=ph: e(f"v_min_u32 {v(PH+4*ph+3)}, -2, {v(PH+4*ph+3)}"))
                    def g(ph=ph):
                        e.wait(tk["ch"])
                        tk["hs"] = e.op(f"buffer_store_dwordx4 {v(PH+4*ph,4)}, v24, {SRD_WS}, {sT[6]} offen offset:{1024*ph} sc1")
                    ops.append(g)
            return ops
        htok = {}
        def hload(stage, ks, so=sT[7]):
            with e.atomic():
                if ks % 4 == 0: e(f"s_add_u32 {so}, {sHS}, {(WS_HL - WS_XG)*stage + 32*PP*(ks//4)}")
                htok[stage, ks] = e.op(f"buffer_load_dwordx4 {a_(4*ks,4)}, v24, {SRD_WS}, {so} offen offset:{1024*(ks%4)} sc1")
        GB, XR, R2 = 128, 136, 152
        def gload(i):
            va, so, off = (("v3", sT[8], 0), ("v3", sT[8], 16), ("v9", sT[9], 0), ("v9", sT[9], 1024))[i]
            tk["g"] = e.op(f"buffer_load_dwordx4 {v(XR+4*i,4)}, {va}, {SRD_WS}, {so} offen offset:{off} sc1")
        gld = [vm(lambda i=i: gload(i)) for i in range(4)]
        def gcheck():
            e.wait(tk["g"])
            self.checked(lambda: [f() for f in gld], lambda: self.tagcheck([XR+4*i for i in range(4)]), 26)
        def x1load(st):
            e(f"s_add_u32 m0, {sT[11]}, {L_X1 + (4096 - 256)*st}")
            tk["x1"] = e.op(f"buffer_load_dwordx4 v25, {SRD_WS}, {sT[10]} offen offset:{256*st} sc1 lds")
            ws.grp = None
        gops = [lambda r=r: e(unpack(GB+r, XR + 4*(r//4) + (r//2) % 2, r & 1)) for r in range(8)]
        for st in range(2):
            gops += [lambda st=st: e(f"v_and_b32 {v(R2+st)}, {sMASK}, {v(XR+8+4*st)}"),
                     lambda st=st: e(f"v_mul_f32 {v(R2+st)}, {v(R2+st)}, {v(R2+st)}"),
                     lambda st=st: e(f"v_rcp_f32 {v(R2+st)}, {v(R2+st)}")]
        for n in range(3): bread1(n, 0); bread1(n, 1)
        ws.pace, ws.lagw = o("pace1", 80), o("lagw", 900)
        ws.hload = hload
        mm = []
        for n in range(112):
            for m in range(2):
                def f(n=n, m=m):
                    T, ks = divmod(n, 28)
                    A = ACC[T & 1]
                    if m == 0: e.wait(bt[n])
                    if T == 0: ws.need("gu"[m], ks)
                    c_ = "0" if ks == 0 else v(A+16*m, 16)
                    e(f"v_mfma_f32_32x32x16_bf16 {v(A+16*m,16)}, {a_(112*m+4*ks,4)}, {v(BR+4*(n%4),4)}, {c_}")
                    if T == 3: ws.hmax = ks + 1
                    if n + 3 < 112:
                        if ks == 25 and m == 0:
                            e.wait(tk["aw"], bt[n+2]); e("s_barrier")
                        bread1(n + 3, m)
                    if ks == 27 and m == 1: self.stamp(f"t{T}")
                mm.append(f)
        wr = lambda T2: [lambda: acheck(T2)] + [lambda i=i: awrite(T2, i) for i in range(7)]
        ld = lambda T2: [vm(lambda i=i: aload1(T2, i)) for i in range(7)]
        waw = [lambda: e.wait(tk["aw"])]
        def clr1(T, ph):
            if ph == 0: e(f"s_add_u32 {sT[5]}, {sHH}, {hoff(T)}")
            tk["ch"] = e.op(f"buffer_store_dwordx4 v[12:15], v24, {SRD_WS}, {sT[5]} offen offset:{1024*ph} sc1")
        slow = lambda ops, a, b: [(a + ((b - a) * k) // len(ops), d, f) for k, (_, d, f) in enumerate(span(ops, a + 2, b + 2))]
        s0 = o("s0", 58)
        ca = slow(wr(1), 16, 44) + slow(wr(2), 66, 82) + span(waw + ld(3), 86, 112) + slow(wr(3), 142, 157) + span(waw + gld, 162, 174)
        cb_ = span(ld(2), 6, 44) + slow([vm(lambda T=T, ph=ph: clr1(T, ph)) for T in (2, 3) for ph in (0, 1)], 36, 60)
        cs = (span([vm(lambda: utload(0)), vm(lambda: utload(1)), vm(lambda: sgload(0)), vm(lambda: sgload(1))], s0 - 6, s0 + 6)
              + slow([utcheck, utzero, lambda: extra(0), lambda: extra(1)], s0 + 28, s0 + 34) + span(epi(0), s0 + 38, 111)
              + span([vm(lambda: sgload(2)), vm(lambda: sgload(3))], 112, 120) + span(epi(1), 116, 150) + span([lambda: extra(2)], 158, 164)
              + span(epi(2), 172, 204) + slow([lambda: extra(3), gcheck, vm(lambda: x1load(0)), vm(lambda: x1load(1))], 204, 212) + span(gops, 212, 223))
        sched(e, ws, mm, [ca, cb_, cs], o("rsv", 8))
        if self.stop <= 3:
            for op in epi(3): op()
            return self.finish()

        def hreload(stage, g, last):
            for ks in range(4*g, last): hload(stage, ks, sT[4])
        def stage_mm(stage):
            A = ACC[stage]
            mm = []
            for ks in range(28):
                for nt in range(2):
                    def f(ks=ks, nt=nt):
                        if nt == 0 and ks % 4 == 0:
                            g = ks // 4
                            ws.hneed(28*stage + ks + 3)
                            last = min(ws.hnext - 28*stage, 28)
                            e.wait(htok[stage, ks+3])
                            self.checked(lambda: hreload(stage, g, last), lambda: self.sentcheck([16*g+4*i for i in range(4)], 12, acc=True), 12 + 7*stage + g)
                        if nt == 0 and stage == 0: ws.need("d", 2*ks + 1)
                        c_ = "0" if ks == 0 else v(A+16*nt, 16)
                        e(f"v_mfma_f32_32x32x16_bf16 {v(A+16*nt,16)}, {ws.dreg(ks,nt)}, {a_(4*ks,4)}, {c_}")
                        if stage == 0 and nt == 1 and 2*ks + 1 >= l0: ws.hmax = 28 + ks + 1
                    mm.append(f)
            return mm
        def stage_out(stage):
            A, sum_, tmp = ACC[stage], 32, 40
            ops = []
            O = ops.append
            for nt in range(2):
                for g in range(4):
                    O(lambda nt=nt, g=g: e.op(f"ds_write_b128 v8, {v(A+16*nt+4*g,4)} offset:{L_RED[stage] + 128*nt + 32*g}"))
            def f():
                e.wait(tk["x1"])
                e.waitall(vm=False)
                e("s_barrier")
            O(f)
            rt = {}
            for w_ in range(4):
                def f(w_=w_):
                    dst = sum_ if w_ == 0 else tmp + 8*(w_-1)
                    e.op(f"ds_read_b128 {v(dst,4)}, v28 offset:{L_RED[stage] + 8704*w_}")
                    rt[w_] = e.op(f"ds_read_b128 {v(dst+4,4)}, v28 offset:{L_RED[stage] + 8704*w_+16}")
                O(f)
            if stage == 0:
                for r in range(16):
                    def f(r=r): rt["x"] = e.op(f"ds_read_u16 {v(XR+r)}, v29 offset:{4096*(r//8) + 64*(r%8)}")
                    O(f)
            pk = stage == 1
            for w_ in range(1, 4):
                O(lambda w_=w_: e.wait(rt[w_]))
                for p in range(0, 8, 2 if pk else 1):
                    if pk: O(lambda w_=w_, p=p: e(f"v_pk_add_f32 {v(sum_+p,2)}, {v(sum_+p,2)}, {v(tmp+8*(w_-1)+p,2)}"))
                    else: O(lambda w_=w_, p=p: e(f"v_add_f32 {v(sum_+p)}, {v(sum_+p)}, {v(tmp+8*(w_-1)+p)}"))
            if stage == 0:
                O(lambda: e.wait(rt["x"]))
                for r in range(16): O(lambda r=r: e(f"v_lshlrev_b32 {v(XR+r)}, 16, {v(XR+r)}"))
            for p in range(0, 8, 2):
                if pk: O(lambda p=p: e(f"v_pk_fma_f32 {v(sum_+p,2)}, {v(sum_+p,2)}, {v(GB+p,2)}, {v(XR+8+p,2)}"))
                else:
                    for q in (p, p+1):
                        O(lambda q=q: e(f"v_mul_f32 {v(sum_+q)}, {v(sum_+q)}, {v(R2)}"))
                        O(lambda q=q: e(f"v_fma_f32 {v(sum_+q)}, {v(sum_+q)}, {v(GB+q)}, {v(XR+q)}"))
                        O(lambda q=q: e(f"v_mul_f32 {v(GB+q)}, {v(GB+q)}, {v(R2+1)}"))
                O(lambda p=p: e(f"v_cvt_pk_bf16_f32 {v(tmp+p//2)}, {v(sum_+p)}, {v(sum_+p+1)}"))
            def f():
                e(f"s_add_u32 {sT[0]}, {sOUT}, {57344*stage}")
                e.op(f"buffer_store_dwordx4 {v(tmp,4)}, v31, {SRD_OUT}, {sT[0]} offen {'sc1' if o('outsc1', 1) else ''}")
            O(f)
            return ops
        l0, age = o("l0", 24), o("age", 11)
        ws.rlimit = 112
        e.hook = None
        mm = stage_mm(0)
        def old(t): return t.done or e.nvm - t.seq >= age
        def pump():
            while ws.pend and old(ws.pend[0][3]): ws.read()
            return ws.step()
        def ready(stage, ks):
            h = htok.get((stage, ks | 3))
            return h is not None and old(h) and (stage == 1 or 56 + min(2*ks + 3, 55) in ws.rtok)
        def run(stage, mm, k0, k1, side=()):
            side = list(side)
            per = -(-len(side) // max(2*(k1 - k0), 1))
            for ks in range(k0, k1):
                while not ready(stage, ks) and pump(): pass
                for nt in range(2):
                    mm[2*ks + nt]()
                    for f in side[:per]: f()
                    side = side[per:]
                    if nt == 0: pump()
        run(0, mm, 0, 5, [nop]*10 + epi(3))
        self.stamp("g1end")
        run(0, mm, 5, 20)
        e("s_barrier")
        run(0, mm, 20, 28)
        self.stamp("g2m")
        so = stage_out(0)
        mm = stage_mm(1)
        n0 = o("so0", 0)
        for i, f in enumerate(so[:n0]):
            f()
            pump()
        self.stamp("g2e")
        run(1, mm, 0, 24, [nop]*6 + so[n0:])
        run(1, mm, 24, 28)
        self.stamp("g2l")
        for f in stage_out(1): f()
        e("s_cmp_lg_u32 s2, 0")
        e("s_cbranch_scc1 L_noepoch")
        e("v_mov_b32 v2, s46")
        e("v_lshlrev_b32 v4, 25, v0")
        e("v_lshrrev_b32 v5, 7, v0")
        e("v_lshl_or_b32 v4, v5, 25, v4")
        e.op(f"buffer_store_dword v2, v4, {SRD_WS}, 0 offen")
        e.label("L_noepoch")
        self.stamp("out")
        self.finish()

    def helper(self):
        e = self.e
        if self.opt.get("nohelp"):
            e("s_waitcnt lgkmcnt(0)")
            self.stamp("start")
            return self.finish()
        self.srd(SRD_C, 80, 896)
        self.srd(SRD_WM, 88, 2408448)
        e(f"s_lshr_b32 {sRB}, {sX}, 1")
        e(f"s_lshl_b32 {sRB}, {sRB}, 2")
        e(f"s_add_u32 {sRB}, {sRB}, {sJR}")
        e(f"s_cmp_ge_u32 {sRB}, 7")
        e(f"s_cselect_b32 {sP[6]}, 1, 0")
        e(f"s_cselect_b32 {sT[0]}, 64, 56")
        e(f"s_load_dwordx2 s[28:29], s[0:1], {sT[0]}")
        e("s_mov_b32 s30, 1605632")
        e("s_mov_b32 s31, 0x20000")
        e(f"s_and_b32 {sT[0]}, {sX}, 1")
        e(f"s_sub_u32 {sT[0]}, {sT[0]}, {sP[6]}")
        e(f"s_mul_i32 {sT[0]}, {sT[0]}, 7")
        e(f"s_add_u32 {sP[7]}, {sT[0]}, {sRB}")
        sH = sI
        e(f"s_lshl_b32 {sH}, {sJR}, 3")
        e(f"s_add_u32 {sH}, {sH}, {sX}")
        e(f"s_add_u32 {sT[0]}, {sH}, 7")
        e(f"s_sub_u32 {sT[1]}, {sH}, 7")
        e(f"s_cmp_lt_u32 {sH}, 28")
        e(f"s_cselect_b32 {sT[0]}, {sT[0]}, {sT[1]}")
        e(f"s_cmp_lt_u32 {sH}, 21")
        e(f"s_cselect_b32 {sP[0]}, {sH}, {sT[0]}")
        e(f"s_add_u32 {sT[0]}, {sH}, 25")
        e(f"s_add_u32 {sT[1]}, {sH}, 32")
        e(f"s_cmp_lt_u32 {sH}, 3")
        e(f"s_cselect_b32 {sP[1]}, {sT[0]}, {sT[1]}")
        self.unit_addr(10, 2, 5376)
        e(f"s_mul_i32 {sT[0]}, {sW}, {112*5376}")
        e(f"v_add_u32 v10, {sT[0]}, v10")
        e("v_lshlrev_b32 v3, 1, v0")
        e(f"s_mul_i32 {sP[2]}, {sW}, 14336")
        self.ln1_addr(6, 84)
        e("s_waitcnt lgkmcnt(0)")
        self.stamp(self.pts[0])
        e.op(f"buffer_load_ushort v32, v3, {SRD_C}, 0 offen")
        tc = e.op(f"buffer_load_ushort v33, v3, {SRD_C}, 0 offen offset:512")
        self.load_tag()
        LR, GS = 84, 160
        def mdma(task):
            e(f"s_lshl_b32 {sT[2]}, {sP[task]}, 7")
            for u in range(14):
                e(f"s_add_u32 m0, {sP[2]}, {57344*task + 1024*u}")
                e(f"s_add_u32 {sT[1]}, {sT[2]}, {43008*u}")
                t = e.op(f"buffer_load_dwordx4 v10, {SRD_WM}, {sT[1]} offen lds")
            return t
        tL = self.ln1_loads(6, LR)
        if self.opt.get("pt", 0) != 9: self.touch_small(23)
        tm0 = mdma(0)
        L_SC, L_PART = 114688, 116736
        e.wait(tc)
        for r in (32, 33):
            e(f"v_lshlrev_b32 v{r}, 16, v{r}")
            e(f"v_mul_f32 v34, 0xbfb8aa3b, v{r}")
            e("v_exp_f32 v34, v34")
            e("v_add_f32 v34, 1.0, v34")
            e("v_rcp_f32 v34, v34")
            e(f"v_mul_f32 v{r}, v{r}, v34")
            e(f"v_cvt_pk_bf16_f32 v{r}, v{r}, v{r}")
        e(f"v_add_u32 v3, {L_SC}, v3")
        e("s_waitcnt lgkmcnt(0)")
        e.op("ds_write_b16 v3, v32")
        e.op("ds_write_b16 v3, v33 offset:512")
        self.make_tag()
        for q in (GS, GS+4):
            e(f"v_mov_b32 {v(q+2)}, s46")
            e(f"v_mov_b32 {v(q+3)}, s47")
        self.tr_addr(4, 2, 4)
        e(f"v_add_u32 v4, {sP[2]}, v4")
        e("v_bfe_u32 v5, v0, 5, 1")
        e(f"s_mul_i32 {sT[0]}, {sW}, 224")
        e(f"s_add_u32 {sT[0]}, {sT[0]}, {L_SC}")
        e(f"v_lshl_add_u32 v5, v5, 3, {sT[0]}")
        e("v_lshlrev_b32 v7, 2, v0")
        e(f"v_add_u32 v7, {L_PART}, v7")
        e("v_and_b32 v8, 15, v0")
        e("v_lshlrev_b32 v8, 4, v8")
        e("v_lshrrev_b32 v9, 4, v0")
        e("v_lshl_or_b32 v9, v9, 25, v8")
        e(f"v_add_u32 v8, {L_PART}, v8")
        e.wait(tL)
        self.ln1_stats(LR, GS, 6)()
        SC, WB, AC = 32, 192, 128
        for ks in range(7):
            e.op(f"ds_read_b64 {v(SC+4*ks,2)}, v5 offset:{32*ks}")
            e.op(f"ds_read_b64 {v(SC+4*ks+2,2)}, v5 offset:{32*ks+16}")
        def gemv(task):
            for ks in range(7):
                for nt in range(2):
                    for half in range(2):
                        e.op(f"ds_read_b64_tr_b16 {v(WB+8*ks+4*nt+2*half,2)}, v4 offset:{1024*(2*ks+half) + 512*nt}")
            e.waitall(vm=False)
            for ks in range(7):
                for nt in range(2):
                    c_ = "0" if ks == 0 else v(AC+16*nt, 16)
                    e(f"v_mfma_f32_32x32x16_bf16 {v(AC+16*nt,16)}, {v(SC+4*ks,4)}, {v(WB+8*ks+4*nt,4)}, {c_}")
            e("v_and_b32 v2, 32, v0")
            e("v_cmp_eq_u32 vcc, 0, v2")
            e(f"v_cndmask_b32 v2, {v(AC+16)}, {v(AC)}, vcc")
            e.op(f"ds_write_b32 v7, v2 offset:{1024*task}")
            e.waitall(vm=False)
            e("s_barrier")
            for w_ in range(4): e.op(f"ds_read_b128 {v(WB+4*w_,4)}, v8 offset:{1024*task + 256*w_}")
            e.waitall(vm=False)
            for w_ in range(1, 4):
                for p in (0, 2): e(f"v_pk_add_f32 {v(WB+p,2)}, {v(WB+p,2)}, {v(WB+4*w_+p,2)}")
            e(f"v_cvt_pk_bf16_f32 {v(GS+4)}, {v(WB)}, {v(WB+1)}")
            e(f"v_cvt_pk_bf16_f32 {v(GS+5)}, {v(WB+2)}, {v(WB+3)}")
            e(f"s_lshl_b32 {sT[0]}, {sP[task]}, 8")
            e(f"s_add_u32 {sT[0]}, {sT[0]}, {WS_MOD}")
            e.op(f"buffer_store_dwordx4 {v(GS+4,4)}, v9, {SRD_WS}, {sT[0]} offen sc1")
        e.wait(tm0)
        gemv(0)
        self.stamp(self.pts[1])
        e(f"s_cmp_lt_u32 {sH}, 10")
        e("s_cbranch_scc0 L_h_two")
        mdma(1)
        e("v_add_u32 v4, 57344, v4")
        e.waitall(lg=False)
        gemv(1)
        e.label("L_h_two")
        self.stamp(self.pts[2])
        if self.stop <= 2: return self.finish()
        e("v_and_b32 v24, 63, v0")
        e("v_lshlrev_b32 v24, 4, v24")
        self.tr_addr(11, 2, 8)
        if self.opt.get("gate", 0):
            e(f"s_mul_i32 {sT[8]}, {sH}, {7*PP}")
            e(f"s_add_u32 {sT[8]}, {sT[8]}, {WS_XG}")
            e("v_and_b32 v2, 63, v24")
            self.poll(lambda: e.op(f"buffer_load_dwordx4 v[32:35], v2, {SRD_WS}, {sT[8]} offen sc1"), lambda: self.tagcheck([32]), nap=2, spin=8)
        self.stamp(self.pts[3])
        e(f"s_cmp_ge_u32 {sRB}, 14")
        e("s_cbranch_scc1 L_h_nout")
        e("v_bfe_u32 v10, v0, 2, 4")
        e("v_mul_u32_u24 v10, 3584, v10")
        e("v_and_b32 v2, 3, v0")
        e(f"s_lshl_b32 {sT[0]}, {sP[7]}, 2")
        e(f"s_add_u32 {sT[3]}, {sT[0]}, {sW}")
        e(f"s_lshl_b32 {sT[0]}, {sT[3]}, 6")
        e(f"v_lshl_add_u32 v2, v2, 4, {sT[0]}")
        e("v_add_u32 v10, v10, v2")
        e(f"s_mul_i32 {sT[2]}, {sW}, 28672")
        e(f"v_add_u32 v4, {sT[2]}, v11")
        for ks in range(28):
            e(f"s_add_u32 m0, {sT[2]}, {1024*ks}")
            e(f"s_mov_b32 {sT[1]}, {57344*ks}")
            e.op(f"buffer_load_dwordx4 v10, {SRD_WG}, {sT[1]} offen lds")
        VQ = 32
        e("v_min_u32 v2, 223, v0")
        e("v_lshlrev_b32 v3, 4, v2")
        e(f"s_mov_b32 {sT[8]}, {WS_MOD + 336*16}")
        self.poll(lambda: e.op(f"buffer_load_dwordx4 {v(VQ,4)}, v3, {SRD_WS}, {sT[8]} offen sc1"), lambda: self.tagcheck([VQ]), nap=4)
        for ks in range(28):
            e.op(f"ds_read_b64_tr_b16 {a_(4*ks,2)}, v4 offset:{1024*ks}")
            e.op(f"ds_read_b64_tr_b16 {a_(4*ks+2,2)}, v4 offset:{1024*ks+256}")
        e("v_cmp_le_u32 vcc, 112, v2")
        e("v_cndmask_b32 v5, 0, 1.0, vcc")
        for r in range(4):
            src = v(VQ + r//2)
            e(f"v_and_b32 {v(VQ+4+r)}, {sMASK}, {src}" if r & 1 else f"v_lshlrev_b32 {v(VQ+4+r)}, 16, {src}")
            e(f"v_add_f32 {v(VQ+4+r)}, v5, {v(VQ+4+r)}")
        e(f"v_cvt_pk_bf16_f32 {v(VQ)}, {v(VQ+4)}, {v(VQ+5)}")
        e(f"v_cvt_pk_bf16_f32 {v(VQ+1)}, {v(VQ+6)}, {v(VQ+7)}")
        e("v_lshlrev_b32 v2, 3, v2")
        e(f"v_add_u32 v2, {L_VEC}, v2")
        e.op(f"ds_write_b64 v2, {v(VQ,2)}")
        e("v_and_b32 v2, 1, v0")
        e("v_mul_u32_u24 v2, 896, v2")
        e("v_bfe_u32 v3, v0, 5, 1")
        e("v_lshlrev_b32 v5, 4, v3")
        e("v_sub_u32 v2, v5, v2")
        e(f"v_add_u32 v2, {L_VEC + 896}, v2")
        e("v_lshl_or_b32 v3, v3, 25, v24")
        e(f"s_lshl_b32 {sT[3]}, {sT[3]}, 9")
        e(f"s_mul_i32 {sT[0]}, {sP[6]}, 28672")
        e(f"s_add_u32 {sT[3]}, {sT[3]}, {sT[0]}")
        e(f"s_add_u32 {sT[3]}, {sT[3]}, {WS_UT}")
        e.waitall(vm=False)
        e("s_barrier")
        vt = [e.op(f"ds_read_b128 {a_(112+4*ks,4)}, v2 offset:{32*ks}") for ks in range(28)]
        for ks in range(28):
            e.wait(vt[ks])
            e(f"v_mfma_f32_32x32x16_bf16 {v(AC,16)}, {a_(112+4*ks,4)}, {a_(4*ks,4)}, {'0' if ks == 0 else v(AC,16)}")
        q = GS + 4
        e(f"v_cvt_pk_bf16_f32 {v(q)}, {v(AC)}, {v(AC+1)}")
        e(f"v_lshlrev_b32 v2, 16, {v(q)}")
        e(f"v_and_b32 v5, {sMASK}, {v(q)}")
        e(f"v_sub_f32 v2, {v(AC)}, v2")
        e(f"v_sub_f32 v5, {v(AC+1)}, v5")
        e(f"v_cvt_pk_bf16_f32 {v(q+1)}, v2, v5")
        e.op(f"buffer_store_dwordx4 {v(q,4)}, v3, {SRD_WS}, {sT[3]} offen sc1")
        e.label("L_h_nout")
        e("v_min_u32 v2, 96, v24")
        e("v_lshlrev_b32 v2, 3, v2")
        self.poll(lambda: e.op(f"buffer_load_dwordx4 v[32:35], v2, {SRD_WS}, 0 offen offset:{WS_GF} sc1"), lambda: self.tagcheck([32]), nap=6)
        e("s_barrier")
        self.stamp(self.pts[4])
        e(f"s_mul_i32 {sT[0]}, {sW}, 7168")
        e(f"v_add_u32 v26, {sT[0]}, v24")
        e(f"v_add_u32 v11, {sT[0]}, v11")
        e("v_bfe_u32 v25, v0, 3, 3")
        e(f"v_mul_u32_u24 v25, {PP}, v25")
        e("v_and_b32 v5, 7, v0")
        e("v_lshl_add_u32 v25, v5, 4, v25")
        e(f"s_lshl_b32 {sP[3]}, {sRB}, 2")
        e(f"s_and_b32 {sT[0]}, {sX}, 1")
        e(f"s_add_u32 {sP[3]}, {sP[3]}, {sT[0]}")
        e(f"s_mul_i32 {sT[0]}, {sW}, {56*PP}")
        e(f"s_lshl_b32 {sT[1]}, {sP[3]}, 7")
        e(f"s_add_u32 {sT[0]}, {sT[0]}, {sT[1]}")
        sA = [f"s{4+i}" for i in range(7)]
        for i in range(7): e(f"s_add_u32 {sA[i]}, {sT[0]}, {WS_KVG + 8192 + 8*PP*i}")
        e(f"s_lshl_b32 {sP[3]}, {sP[3]}, 9")
        e(f"s_add_u32 {sP[3]}, {sP[3]}, {WS_ST2}")
        e("v_and_b32 v8, 31, v0")
        e("v_lshrrev_b32 v9, 5, v0")
        e("v_lshlrev_b32 v2, 4, v8")
        e("v_lshl_or_b32 v9, v9, 25, v2")
        e("v_lshlrev_b32 v8, 2, v8")
        e(f"v_add_u32 v8, {L_PART}, v8")
        e(f"s_mov_b32 {sP[5]}, 0x3f803f80")
        XT, FR = 32, 64
        for job in range(2):
            def xl():
                for i in range(7):
                    e.op(f"buffer_load_dwordx4 {v(XT+4*i,4)}, v25, {SRD_WS}, {sA[i]} offen offset:{256*job} sc1")
            if job == 0:
                self.poll(lambda: e.op(f"buffer_load_dwordx4 {v(XT,4)}, v25, {SRD_WS}, {sA[0]} offen sc1"),
                          lambda: self.sentcheck([XT], 27), nap=self.opt.get('nap2', 3))
            self.poll(xl, lambda: self.sentcheck([XT+4*i for i in range(7)], 27))
            for i in range(7): e.op(f"ds_write_b128 v26, {v(XT+4*i,4)} offset:{1024*i}")
            rt = []
            for i in range(7):
                e.op(f"ds_read_b64_tr_b16 {v(FR+4*i,2)}, v11 offset:{1024*i}")
                rt.append(e.op(f"ds_read_b64_tr_b16 {v(FR+4*i+2,2)}, v11 offset:{1024*i+256}"))
            e("v_mov_b32 v2, 0")
            e("v_mov_b32 v3, 0")
            for i in range(7):
                e.wait(rt[i])
                for r in range(4):
                    e(f"v_dot2c_f32_bf16 v2, {sP[5]}, {v(FR+4*i+r)}")
                    e(f"v_dot2c_f32_bf16 v3, {v(FR+4*i+r)}, {v(FR+4*i+r)}")
            e("v_permlane32_swap_b32 v2, v3")
            e("v_add_f32 v2, v2, v3")
            e.op(f"ds_write_b32 v7, v2 offset:{1024*job}")
            e.waitall(vm=False)
            e("s_barrier")
            for w_ in range(4):
                o = 256*job + 64*w_
                e.op(f"ds_read_b32 {v(FR+2*w_)}, v8 offset:{4*o}")
                e.op(f"ds_read_b32 {v(FR+2*w_+1)}, v8 offset:{4*o+128}")
            e.waitall(vm=False)
            e(f"v_pk_add_f32 {v(FR,2)}, {v(FR,2)}, {v(FR+2,2)}")
            e(f"v_pk_add_f32 {v(FR+4,2)}, {v(FR+4,2)}, {v(FR+6,2)}")
            e(f"v_pk_add_f32 {v(GS,2)}, {v(FR,2)}, {v(FR+4,2)}")
            self.stats_finish(GS, GS+1, True)
            e(f"v_mov_b32 {v(GS+1)}, {v(GS)}")
            e.op(f"buffer_store_dwordx4 {v(GS,4)}, v9, {SRD_WS}, {sP[3]} offen offset:{1024*job} sc1")
            self.stamp(self.pts[5 + job])
        self.finish()


HEADER = "".join(l for l in open(f"cdna_kernels/{NAME}.s.ref").readlines()[:18] if "@launch" not in l) \
    if __import__("os").path.exists(f"cdna_kernels/{NAME}.s.ref") else ""


def generate(**kw):
    body = Gen(**kw).build()
    return f"""{HEADER}; @launch grid=(256,1,1) block=(256,1,1) lds={LDS_BYTES}
.amdgcn_target "amdgcn-amd-amdhsa--gfx950"
.text
.globl {NAME}_kernel
.p2align 8
.type {NAME}_kernel,@function
{NAME}_kernel:
{body}
.section .rodata,"a"
.p2align 6
.amdhsa_kernel {NAME}_kernel
  .amdhsa_next_free_vgpr 512
  .amdhsa_next_free_sgpr 102
  .amdhsa_accum_offset 256
  .amdhsa_group_segment_fixed_size 0
  .amdhsa_kernarg_size 120
  .amdhsa_user_sgpr_count 2
  .amdhsa_user_sgpr_kernarg_segment_ptr 1
  .amdhsa_system_sgpr_workgroup_id_x 1
  .amdhsa_float_denorm_mode_32 3
.end_amdhsa_kernel
"""


if __name__ == "__main__":
    out = sys.argv[1] if len(sys.argv) > 1 else f"cdna_kernels/{NAME}.s"
    kw = {}
    for a in sys.argv[2:]:
        k, val = a.split("=")
        kw[k] = int(val) if val.lstrip('-').isdigit() else val
    open(out, "w").write(generate(**kw))
```

```python
import sys
from emit import Emit, weave

NAME = "adaLN_cond__ssm_conv_h3__glu_gated_reglu__prompt"
S, D, F = 2048, 448, 1792

WS_EPOCH = 0
WS_GO = 0x800
WS_ST1 = 0x1000
WS_MOD = 0x5000
WS_ST2 = 0x8000
WS_UT = 0x10000
WS_F2 = 0x1e000
F2B = 0xc000
WS_F3 = 0x22000
PP = 16384 + 512
HP = 32768 + 512
WS_KVG = 0x40000
WS_HH = WS_KVG + 224 * PP
WS_STAMP = WS_HH + 224 * HP
WS_SIZE = WS_STAMP + 256 * 4 * 128

L_WST = 0
L_TK = 114688
L_UR = L_TK + 17024
L_ST = L_UR + 9216
L_VEC = L_ST + 16384
L_S1 = L_VEC + 2048
L_HI = 57344
L_EXT = 114688
L_X1 = L_EXT + 40960
L_RED = [0, 34816]
LDS_BYTES = 163840
BIG = 0x7fffff00
SPIN = 1 << 15

SRD_K, SRD_V, SRD_X, SRD_WS = "s[4:7]", "s[8:11]", "s[12:15]", "s[16:19]"
SRD_SH, SRD_SSM, SRD_WG, SRD_WU, SRD_WD, SRD_OUT = "s[20:23]", "s[24:27]", "s[28:31]", "s[32:35]", "s[36:39]", "s[40:43]"
SRD_C, SRD_WM = "s[4:7]", "s[8:11]"
TAG = "s[46:47]"
sW, sX, sJQ, sJR, sI, sD0, sRB, sFS = "s48", "s49", "s50", "s51", "s52", "s53", "s54", "s55"
sMASK, sSPIN, sDV, sLN = "s56", "s57", "s58", "s59"
sT = ["s%d" % i for i in range(60, 72)]
sC = ["s[72:73]", "s[74:75]", "s[76:77]", "s[78:79]"]
sLO, sEXT = "s80", "s81"
sKW = ["0", "s82", "s83", "s84"]
sKD = ["0", "s85", "s86", "s87"]
sP = ["s%d" % i for i in range(20, 28)]
STAMP0 = 90


def v(a, n=1): return f"v{a}" if n == 1 else f"v[{a}:{a+n-1}]"
def a_(a, n=1): return f"a{a}" if n == 1 else f"a[{a}:{a+n-1}]"


class WStream:
    def __init__(self, e):
        self.e = e
        self.units = [(k, 4*q + i) for q in range(7) for k in "gu" for i in range(4)] + [("d", i) for i in range(56)]
        self.next = 0; self.limit = 0; self.rlimit = 0
        self.free = [("hi", i, None) for i in range(14)] + [("lo", i, None) for i in range(14)]
        self.banned = set()
        self.pend = []
        self.pace = 96; self.lag = 12; self.tnext = 0; self.seen = 0
        self.grp = None
        self.cur = {"w": 0, "d": 0}
        self.rtok = {}
        self.skip = ''
        self.hload = None; self.hnext = 0; self.hmax = 0; self.lead = 4; self.lagw = 9999
    def dest(self, kind, i):
        if kind == "g": return [a_(4*i, 2), a_(4*i+2, 2)]
        if kind == "u": return [a_(112+4*i, 2), a_(112+4*i+2, 2)]
        ks, half = divmod(i, 2)
        return [self.dreg(ks, nt, 2*half, 2) for nt in range(2)]
    @staticmethod
    def dreg(ks, nt, off=0, n=4):
        if ks < 12: return v(160 + 8*ks + 4*nt + off, n)
        if ks < 16: return a_(224 + 8*(ks-12) + 4*nt + off, n)
        return a_(112 + 8*(ks-16) + 4*nt + off, n)
    def can_dma(self):
        return self.next < min(self.limit, len(self.units)) and any(s[0] not in self.banned for s in self.free)
    def dma(self):
        e = self.e
        kind, i = self.units[self.next]
        slot = next(s for s in self.free if s[0] not in self.banned)
        self.free.remove(slot)
        reg, idx, tok = slot
        e.wait(tok)
        g = self.grp
        k = i - g[1] if g and g[0] == kind else -1
        if not (0 < k < 4 and g[2] == reg and idx - g[3] == k and i // 8 == g[1] // 8):
            k = 0
            self.grp = (kind, i, reg, idx)
            key, vr = ("d", "v19") if kind == "d" else ("w", "v10")
            src = 7168 * (i + 8 * (i // 8)) if kind == "d" else 57344 * i
            if src != self.cur[key]:
                e(f"v_add_u32 {vr}, {(src - self.cur[key]) & 0xffffffff:#x}, {vr}")
                self.cur[key] = src
            base, off = {"lo": (sLO, 0), "hi": (sLO, L_HI), "ext": (sEXT, 0)}[reg]
            e(f"s_add_u32 m0, {base}, {off + 1024*idx}")
        vr, srd, cs = {"g": ("v10", SRD_WG, sKW), "u": ("v10", SRD_WU, sKW), "d": ("v19", SRD_WD, sKD)}[kind]
        if kind in self.skip: t = e.op("s_nop 0") or type("T", (), dict(done=True, kind="vm", seq=0))(); self.tnext = e.t + self.pace
        else: t = e.op(f"buffer_load_dwordx4 {vr}, {srd}, {cs[k]} offen offset:{1024*k} lds")
        self.pend.append((self.next, reg, idx, t))
        self.next += 1
    def read(self):
        e = self.e
        n, reg, idx, t = self.pend.pop(0)
        kind, i = self.units[n]
        e.wait(t)
        vb = {"hi": "v20", "ext": "v21"}[reg] if kind == "d" else {"lo": "v16", "hi": "v17", "ext": "v18"}[reg]
        step = 512 if kind == "d" else 256
        for j, d_ in enumerate(self.dest(kind, i)):
            tok = e.op(f"ds_read_b64_tr_b16 {d_}, {vb} offset:{1024*idx + step*j}")
        self.rtok[n] = tok
        self.free.append((reg, idx, tok))
    def hook(self):
        e = self.e
        if e.nvm > self.seen:
            self.tnext = max(self.tnext, e.t - self.pace) + self.pace * (e.nvm - self.seen)
            self.seen = e.nvm
        if e.t >= self.tnext and self.step():
            pass
        elif self.pend and self.pend[0][0] < self.rlimit and (self.pend[0][3].done or e.t - self.pend[0][3].t >= self.lag):
            self.read()
    def step(self):
        hs, hk = divmod(self.hnext, 28)
        h_ok = self.hload and self.hnext < self.hmax
        if self.can_dma() and not (h_ok and hs == 0 and hk <= (self.next - 56) // 2 - self.lead): self.dma()
        elif h_ok: self.hload(hs, hk); self.hnext += 1
        else: return False
        return True
    def aged(self):
        p = self.pend
        lag = self.lag if p and p[0][0] >= 56 else min(self.lag, self.lagw)
        return p and p[0][0] < self.rlimit and (p[0][3].done or self.e.t - p[0][3].t >= lag)
    def urgent(self): return False
    def hneed(self, n):
        with self.e.atomic():
            while self.hnext <= n:
                assert self.hnext < self.hmax
                self.hload(*divmod(self.hnext, 28)); self.hnext += 1
    def need(self, kind, i):
        n = self.units.index((kind, i))
        if n not in self.rtok: self.flush(n + 1)
        self.e.wait(self.rtok[n])
    def drain_done(self):
        with self.e.atomic():
            while self.pend and self.pend[0][0] < self.rlimit and self.pend[0][3].done: self.read()
    def drain_keep(self, k):
        with self.e.atomic():
            while len(self.pend) > k and self.pend[0][0] < self.rlimit: self.read()
    def arm(self, recent=0):
        self.seen = self.e.nvm - recent; self.tnext = self.e.t
        self.e.hook = self.hook
    def burst(self, n):
        with self.e.atomic():
            for _ in range(n):
                if self.can_dma(): self.dma()
    def flush(self, upto):
        with self.e.atomic():
            self.limit = max(self.limit, upto); self.rlimit = max(self.rlimit, upto)
            while self.next < upto or (self.pend and self.pend[0][0] < upto):
                if self.next < upto and self.can_dma(): self.dma()
                else: self.read()


def vm(f):
    f.vm = True
    return f


def span(ops, first, last):
    n = len(ops)
    return [(first, first + ((last - first) * (k + 1)) // n, f) for k, f in enumerate(ops)]


def sched(e, ws, mm, chains, reserve=8):
    chains = [list(c) for c in chains]
    tnext = e.t
    for i, m in enumerate(mm):
        m()
        nvm = e.nvm
        while True:
            heads = sorted((c for c in chains if c and c[0][0] <= i), key=lambda c: c[0][1])
            room = e.mfree - e.t - reserve
            forced = [c for c in heads if c[0][1] <= i]
            due = e.t >= tnext and e.nvm == nvm
            vmh = [c for c in heads if getattr(c[0][2], "vm", False)]
            oth = [c for c in heads if not getattr(c[0][2], "vm", False)]
            n0 = e.nvm
            if forced: forced[0].pop(0)[2]()
            elif room < 4: break
            elif due and vmh and not ws.urgent(): vmh[0].pop(0)[2]()
            elif due and ws.step(): pass
            elif room >= 8 and ws.aged(): ws.read()
            elif oth: oth[0].pop(0)[2]()
            else: break
            if e.nvm > n0: tnext = max(tnext, e.t - ws.pace) + ws.pace * (e.nvm - n0)
    assert not any(chains)


class Gen:
    def __init__(self, stop=99, diag=False, pts=None, **opt):
        self.e = Emit()
        self.opt = opt
        mid = (pts or "kv,kvin,a1st,g1go,g1end,g2l").split(",")
        self.pts = ["start"] + mid + [None] * (6 - len(mid))
        self.stop = stop
        self.diag = diag
        self.tail = []
        self.in_helper = False
        self.clk = "s_memtime" if opt.get("cyc") else "s_memrealtime"

    def stamp(self, name):
        if name is not None and name == self.opt.get("probe") and not self.in_helper: self.e("s_memrealtime s[92:93]")
        if self.diag and name is not None and name in self.pts:
            k = self.pts.index(name)
            r = 44 if k == 0 else STAMP0 + 2*(k-1)
            self.e(f"{self.clk} s[{r}:{r+1}]")

    def srd(self, srd, off, nbytes):
        e = self.e
        b = int(srd[2:srd.index(":")])
        e(f"s_load_dwordx2 s[{b}:{b+1}], s[0:1], {off}")
        e(f"s_mov_b32 s{b+2}, {nbytes}")
        e(f"s_mov_b32 s{b+3}, 0x20000")

    def finish(self):
        e = self.e
        e.hook = None
        if self.opt.get("probe") and not self.in_helper:
            e.waitall()
            if self.opt["probe"] == "end": e("s_memrealtime s[92:93]\ns_waitcnt lgkmcnt(0)")
            e("s_sub_u32 s92, s92, s90\ns_lshl_b32 s92, s92, 2\ns_add_u32 s92, s92, 4000")
            if self.opt.get("only") is not None:
                e(f"s_cmp_eq_u32 s2, {self.opt['only']}\ns_cselect_b32 s92, s92, 0")
            e.label("L_pad")
            e("s_memrealtime s[94:95]\ns_waitcnt lgkmcnt(0)\ns_sub_u32 s94, s94, s90\ns_cmp_lt_u32 s94, s92\ns_cbranch_scc1 L_pad")
        if self.diag:
            e.waitall()
            e(f"{self.clk} s[62:63]")
            e(f"s_lshl_b32 {sT[0]}, s2, 2")
            e(f"s_add_u32 {sT[0]}, {sT[0]}, {sW}")
            e(f"s_lshl_b32 {sT[0]}, {sT[0]}, 7")
            e(f"s_add_u32 {sT[0]}, {sT[0]}, {WS_STAMP}")
            e(f"v_mov_b32 v1, {sT[0]}")
            e("s_waitcnt lgkmcnt(0)")
            for k, r in enumerate([44] + [STAMP0 + 2*i for i in range(6)] + [62, 3]):
                e(f"v_mov_b32 v2, s{r}")
                e(f"buffer_store_dword v2, v1, {SRD_WS}, 0 offen offset:{4*k}")
        e("s_endpgm")

    def tagcheck(self, quads):
        e = self.e
        for n, q in enumerate(quads):
            dst = "vcc" if n == 0 else sC[(n - 1) % 4]
            e(f"v_cmp_ne_u64 {dst}, {TAG}, {v(q+2,2)}")
            if n >= 2: e(f"s_or_b64 vcc, vcc, {sC[(n-2)%4]}")
        if len(quads) > 1: e(f"s_or_b64 vcc, vcc, {sC[(len(quads)-2)%4]}")

    def flag(self, so, off=0):
        e = self.e
        skip = e.newlabel("noflag")
        with e.atomic():
            e(f"s_cmp_lg_u32 {sW}, 0")
            e(f"s_cbranch_scc1 {skip}")
            e(f"buffer_store_dwordx4 v[12:15], v27, {SRD_WS}, {so} offen offset:{off} sc1")
            e.vm.pop()
            e.label(skip)

    def poll(self, loads, check, nap=1, spin=SPIN):
        e = self.e
        top, out = e.newlabel("poll"), e.newlabel("pollend")
        e(f"s_mov_b32 {sSPIN}, {spin}")
        e.label(top)
        loads()
        e.waitall(lg=False)
        check()
        e(f"s_cbranch_vccz {out}")
        if nap: e(f"s_sleep {nap}")
        e(f"s_sub_u32 {sSPIN}, {sSPIN}, 1")
        e(f"s_cbranch_scc0 {top}")
        e.label(out)

    def checked(self, loads, check, cnt=None, spin=SPIN):
        e = self.e
        stub, back = e.newlabel("retry"), e.newlabel("back")
        with e.atomic():
            check()
            if not self.opt.get("nosync"): e(f"s_cbranch_vccnz {stub}")
            e.label(back)
        def emit_stub():
            e.forget()
            e.label(stub)
            e("s_nop 7")
            if self.diag and cnt is not None: e(f"s_bitset1_b32 s3, {cnt}")
            self.poll(loads, check, spin=spin)
            e(f"s_branch {back}")
        self.tail.append(emit_stub)

    def bfround(self, r):
        e = self.e
        e(f"v_cvt_pk_bf16_f32 {v(r)}, {v(r)}, {v(r)}")
        e(f"v_lshlrev_b32 {v(r)}, 16, {v(r)}")

    def stats_finish(self, rs, rq, neg):
        e = self.e
        e(f"v_mul_f32 {v(rs)}, 0x3b124925, {v(rs)}")
        e(f"v_mul_f32 {v(rq)}, 0x3b124925, {v(rq)}")
        e(f"v_fma_f32 {v(rq)}, -{v(rs)}, {v(rs)}, {v(rq)}")
        e(f"v_max_f32 {v(rq)}, 0, {v(rq)}")
        self.bfround(rq)
        e(f"v_add_f32 {v(rq)}, 0x3727c5ac, {v(rq)}")
        self.bfround(rq)
        e(f"v_sqrt_f32 {v(rq)}, {v(rq)}")
        e(f"v_cvt_pk_bf16_f32 {v(rs)}, {'-' if neg else ''}{v(rs)}, {v(rq)}")

    def ln1_addr(self, va, dst):
        e = self.e
        e(f"v_lshrrev_b32 {v(va)}, 5, v0")
        e(f"s_lshl_b32 {sT[0]}, {sLN}, 3")
        e(f"v_add_u32 {v(va)}, {sT[0]}, {v(va)}")
        e(f"v_mul_u32_u24 {v(va)}, 896, {v(va)}")
        e(f"v_and_b32 {v(dst)}, 31, v0")
        e(f"v_lshl_add_u32 {v(va)}, {v(dst)}, 4, {v(va)}")
        e(f"v_cmp_gt_u32 vcc, 28, {v(dst)}")
        e(f"v_mov_b32 {v(dst)}, {BIG}")
        e(f"v_cndmask_b32 {v(va)}, {v(dst)}, {v(va)}, vcc")

    def ln1_loads(self, va, dst):
        e = self.e
        e.op(f"buffer_load_dwordx4 {v(dst,4)}, {v(va)}, {SRD_X}, 0 offen")
        return e.op(f"buffer_load_dwordx4 {v(dst+4,4)}, {v(va)}, {SRD_X}, 0 offen offset:448")

    def ln1_stats(self, src, g):
        e = self.e
        s_, q_ = g, g + 1
        e(f"s_mov_b32 {sT[1]}, 0x3f803f80")
        e(f"v_mov_b32 {v(s_)}, 0")
        e(f"v_mov_b32 {v(q_)}, 0")
        for i in range(8):
            e(f"v_dot2c_f32_bf16 {v(s_)}, {sT[1]}, {v(src+i)}")
            e(f"v_dot2c_f32_bf16 {v(q_)}, {v(src+i)}, {v(src+i)}")
        for ctl in ("quad_perm:[1,0,3,2]", "quad_perm:[2,3,0,1]", "row_half_mirror", "row_mirror"):
            e(f"v_add_f32_dpp {v(s_)}, {v(s_)}, {v(s_)} {ctl} row_mask:0xf bank_mask:0xf")
            e(f"v_add_f32_dpp {v(q_)}, {v(q_)}, {v(q_)} {ctl} row_mask:0xf bank_mask:0xf")
        e(f"v_mov_b32 {v(src)}, {v(s_)}")
        e(f"v_mov_b32 {v(src+1)}, {v(q_)}")
        e(f"v_permlane16_swap_b32 {v(s_)}, {v(src)}")
        e(f"v_permlane16_swap_b32 {v(q_)}, {v(src+1)}")
        e(f"v_add_f32 {v(s_)}, {v(s_)}, {v(src)}")
        e(f"v_add_f32 {v(q_)}, {v(q_)}, {v(src+1)}")
        self.stats_finish(s_, q_, False)
        e(f"v_lshrrev_b32 {v(q_)}, 5, v0")
        e(f"v_lshlrev_b32 {v(q_)}, 2, {v(q_)}")
        e(f"v_add_u32 {v(q_)}, {L_S1}, {v(q_)}")
        tw = e.op(f"ds_write_b32 {v(q_)}, {v(s_)}")
        e(f"v_and_b32 {v(src)}, 3, v0")
        e(f"v_lshlrev_b32 {v(src)}, 3, {v(src)}")
        e(f"v_add_u32 {v(src)}, {L_S1}, {v(src)}")
        return lambda: e.op(f"ds_read_b64 v[12:13], {v(src)}")

    def flag_regs(self):
        e = self.e
        e("v_mov_b32 v14, s46")
        e("v_mov_b32 v15, s47")
        e("v_lshrrev_b32 v27, 2, v0")
        e("v_lshlrev_b32 v27, 25, v27")
        e("v_and_or_b32 v27, v24, 63, v27")
        e(f"s_lshl_b32 {sLN}, {sLN}, 6")
        e(f"s_add_u32 {sLN}, {sLN}, {WS_ST1}")

    def tr_addr(self, dst, tmp, hmul):
        e = self.e
        e(f"v_bfe_u32 {v(dst)}, v0, 2, 2")
        e(f"v_bfe_u32 {v(tmp)}, v0, 5, 1")
        e(f"v_mad_u32_u24 {v(dst)}, {v(tmp)}, {hmul}, {v(dst)}")
        e(f"v_lshlrev_b32 {v(dst)}, 6, {v(dst)}")
        e(f"v_bfe_u32 {v(tmp)}, v0, 4, 1")
        e(f"v_lshl_add_u32 {v(dst)}, {v(tmp)}, 5, {v(dst)}")
        e(f"v_and_b32 {v(tmp)}, 3, v0")
        e(f"v_lshl_add_u32 {v(dst)}, {v(tmp)}, 3, {v(dst)}")

    def unit_addr(self, dst, tmp, rowbytes):
        e = self.e
        e(f"v_bfe_u32 {v(dst)}, v0, 2, 3")
        e(f"v_mul_u32_u24 {v(dst)}, {rowbytes}, {v(dst)}")
        e(f"v_bfe_u32 {v(tmp)}, v0, 5, 1")
        e(f"v_lshl_add_u32 {v(dst)}, {v(tmp)}, 6, {v(dst)}")
        e(f"v_and_b32 {v(tmp)}, 3, v0")
        e(f"v_lshl_add_u32 {v(dst)}, {v(tmp)}, 4, {v(dst)}")

    def touch_small(self, va):
        e = self.e
        e(f"s_lshl_b32 {sT[0]}, s2, 2")
        e(f"s_add_u32 {sT[0]}, {sT[0]}, {sW}")
        e(f"s_lshl_b32 {sT[0]}, {sT[0]}, 8")
        e(f"v_and_b32 {v(va)}, 32, v0")
        e(f"v_lshl_add_u32 {v(va)}, {v(va)}, 2, {sT[0]}")
        e.op(f"buffer_load_dword v1, {v(va)}, {SRD_WS}, 0 offen")

    def load_tag(self):
        e = self.e
        e(f"s_load_dwordx2 {TAG}, s[16:17], {WS_EPOCH}")

    def make_tag(self):
        e = self.e
        e("s_add_u32 s46, s46, 0x7f4a7c15")
        e("s_addc_u32 s47, s47, 0x9e3779b9")

    def build(self):
        e = self.e
        e("s_cmp_ge_u32 s2, 256")
        e("s_cbranch_scc1 L_exit")
        self.stamp("entry")
        if self.opt.get("probe"): e("s_memrealtime s[90:91]")
        self.srd(SRD_X, 0, 1835008)
        self.srd(SRD_WS, 112, WS_SIZE)
        e("s_getpc_b64 s[44:45]")
        e(f"s_bfe_u32 {sT[0]}, s2, 0x30003")
        e(f"s_lshl_b32 {sT[0]}, {sT[0]}, 12")
        e(f"v_lshl_add_u32 v1, v0, 4, {sT[0]}")
        e("v_min_u32 v1, L_end - L_pc - 4, v1")
        e.label("L_pc")
        e.op("global_load_dword v1, v1, s[44:45]")
        e(f"s_and_b32 {sX}, s2, 7")
        e(f"s_lshr_b32 {sT[0]}, s2, 3")
        e(f"s_mul_i32 {sJQ}, {sT[0]}, 37")
        e(f"s_lshr_b32 {sJQ}, {sJQ}, 8")
        e(f"s_mul_i32 {sJR}, {sJQ}, 7")
        e(f"s_sub_u32 {sJR}, {sT[0]}, {sJR}")
        e(f"s_lshl_b32 {sLN}, {sX}, 5")
        e(f"s_add_u32 {sLN}, {sLN}, {sT[0]}")
        e("v_lshrrev_b32 v2, 6, v0")
        e(f"s_mov_b32 {sMASK}, 0xffff0000")
        e(f"v_readfirstlane_b32 {sW}, v2")
        if self.diag:
            for k in range(2 if "entry" in self.pts else 0, 12): e(f"s_mov_b32 s{STAMP0+k}, 0")
            e("s_mov_b32 s3, 0")
        e(f"s_cmp_ge_u32 {sT[0]}, 28")
        e("s_cbranch_scc1 L_helper")
        vm0 = list(e.vm)
        self.main()
        e.forget(); e.vm = list(vm0)
        for t in vm0: t.done = False
        e.label("L_helper")
        self.in_helper = True
        self.helper()
        for t in self.tail: t()
        e.label("L_exit")
        e("s_endpgm")
        e.label("L_end")
        return e.text()

    def main(self):
        e = self.e
        o = self.opt.get
        def unpack(dst, src, hi):
            return f"v_and_b32 {v(dst)}, {sMASK}, {v(src)}" if hi else f"v_lshlrev_b32 {v(dst)}, 16, {v(src)}"
        self.srd(SRD_K, 8, 1835008)
        self.srd(SRD_V, 16, 1835008)
        self.srd(SRD_SH, 24, 3584)
        e(f"s_lshl_b32 {sI}, {sX}, 2")
        e(f"s_add_u32 {sI}, {sI}, {sJQ}")
        e(f"s_lshl_b32 {sD0}, {sJR}, 5")
        e(f"s_add_u32 {sD0}, {sD0}, {sI}")
        e(f"s_lshl_b32 {sD0}, {sD0}, 1")
        e(f"s_mul_i32 {sT[0]}, {sI}, 57344")
        e(f"s_lshl_b32 {sT[1]}, {sJR}, 7")
        e(f"s_add_u32 {sT[0]}, {sT[0]}, {sT[1]}")
        vKo, vKh, vSh, vLn, vSs, vRk, vRh, vTw, vP1, vP2 = range(232, 242)
        vGs = 31
        e(f"s_mul_i32 {sLO}, {sW}, 14336")
        e(f"s_add_u32 {sT[0]}, {sT[0]}, {sLO}")
        e(f"v_bfe_u32 {v(vKo)}, v0, 3, 3")
        e(f"v_and_b32 v2, 4, {v(vKo)}")
        e(f"v_cmp_lt_u32 vcc, 4, {v(vKo)}")
        e(f"v_mul_u32_u24 {v(vKo)}, 896, {v(vKo)}")
        e("v_and_b32 v3, 7, v0")
        e("v_xor_b32 v3, v3, v2")
        e(f"v_lshl_add_u32 v3, v3, 4, {sT[0]}")
        e(f"v_add_u32 {v(vKo)}, {v(vKo)}, v3")
        e(f"v_subrev_u32 {v(vKh)}, 7168, {v(vKo)}")
        e(f"v_mov_b32 v3, {BIG}")
        e(f"v_cndmask_b32 {v(vKh)}, v3, {v(vKh)}, vcc")
        e(f"v_bfe_u32 {v(vSh)}, v0, 2, 4")
        e(f"s_lshl_b32 {sT[1]}, {sJR}, 9")
        e(f"v_lshl_add_u32 {v(vSh)}, {v(vSh)}, 5, {sT[1]}")
        self.srd(SRD_SSM, 32, 1835008)
        e("s_load_dwordx2 s[88:89], s[0:1], 40")
        self.srd(SRD_WG, 56, 1605632)
        self.srd(SRD_WU, 64, 1605632)
        self.srd(SRD_WD, 72, 1605632)
        self.srd(SRD_OUT, 96, 1835008)
        self.srd("s[72:75]", 88, 2408448)
        K, V_, SH, X, SS, LR = 32, 46, 56, 64, 72, 84
        e("v_and_b32 v24, 63, v0")
        e("v_lshlrev_b32 v24, 4, v24")
        e(f"s_lshl_b32 {sT[1]}, {sD0}, 1")
        e(f"s_add_u32 {sT[2]}, {sT[1]}, {sW}")
        e(f"s_lshl_b32 {sT[2]}, {sT[2]}, 11")
        e(f"v_add_u32 {v(vSs)}, {sT[2]}, v24")
        e(f"s_and_b32 {sT[3]}, {sW}, 1")
        e(f"s_lshl_b32 {sT[3]}, {sT[3]}, 2")
        e(f"s_sub_u32 {sT[2]}, {sT[2]}, {sT[3]}")
        e(f"s_movk_i32 {sT[3]}, 7168")
        e(f"s_add_u32 m0, {sLO}, 1152")
        self.stamp("pre")
        e("s_waitcnt lgkmcnt(0)")
        self.stamp("start")
        e.op(f"buffer_load_dwordx4 {v(vKo)}, {SRD_K}, 0 offen lds")
        e(f"s_add_u32 m0, {sLO}, 2304")
        self.load_tag()
        e.op(f"buffer_load_dwordx4 {v(vKo)}, {SRD_K}, {sT[3]} offen lds")
        e(f"s_mov_b32 m0, {sLO}")
        e(f"s_load_dword {sDV}, s[88:89], {sT[1]}")
        e.op(f"buffer_load_dwordx4 {v(vKh)}, {SRD_K}, 0 offen lds")
        e(f"s_add_u32 m0, {sLO}, 3456")
        e.op(f"buffer_load_dwordx4 {v(SH,4)}, {v(vSh)}, {SRD_SH}, 0 offen")
        tK = e.op(f"buffer_load_dwordx4 {v(SH+4,4)}, {v(vSh)}, {SRD_SH}, 0 offen offset:16")
        e.op(f"buffer_load_dwordx4 {v(vKo)}, {SRD_V}, 0 offen lds")
        e(f"s_add_u32 m0, {sLO}, 4608")
        e(f"s_load_dword s76, s[24:25], {sT[2]}")
        tV = e.op(f"buffer_load_dwordx4 {v(vKo)}, {SRD_V}, {sT[3]} offen lds")
        tk = {}
        def ld_x():
            e(f"s_add_u32 m0, {sLO}, 5760")
            e(f"s_movk_i32 {sT[0]}, 7168")
            e.op(f"buffer_load_dwordx4 {v(vKo)}, {SRD_X}, 0 offen lds")
            e(f"s_add_u32 m0, {sLO}, 6912")
            e.op(f"buffer_load_dwordx4 {v(vKo)}, {SRD_X}, {sT[0]} offen lds")
            tk["X"] = self.ln1_loads(vLn, LR)
        def ld_s():
            e.op(f"buffer_load_dwordx4 {v(SS,4)}, {v(vSs)}, {SRD_SSM}, 0 offen")
            tk["S"] = e.op(f"buffer_load_dwordx4 {v(SS+4,4)}, {v(vSs)}, {SRD_SSM}, 0 offen offset:1024")
        def touch_m(): e.op(f"buffer_load_dword v1, v22, s[72:75], 0 offen")
        def touch_s(): self.touch_small(23)
        def touch_prep():
            e("v_and_b32 v22, 63, v0")
            e("v_min_u32 v22, 13, v22")
            e("v_lshlrev_b32 v22, 7, v22")
            e(f"s_lshr_b32 {sT[0]}, s2, 3")
            e(f"s_lshl_b32 {sT[0]}, {sT[0]}, 2")
            e(f"s_add_u32 {sT[0]}, {sT[0]}, {sW}")
        def touch_w():
            touch_prep()
            e(f"s_lshr_b32 {sT[1]}, {sX}, 1")
            e(f"s_lshl_b32 {sT[0]}, {sT[0]}, 2")
            e(f"s_add_u32 {sT[0]}, {sT[0]}, {sT[1]}")
            e(f"s_lshl_b32 {sT[0]}, {sT[0]}, 1")
            e(f"s_and_b32 {sT[1]}, {sX}, 1")
            e(f"s_add_u32 {sT[0]}, {sT[0]}, {sT[1]}")
            e(f"s_mul_i32 {sT[0]}, {sT[0]}, 1792")
            e.op(f"buffer_load_dword v1, v22, {SRD_WG}, {sT[0]} offen")
            e.op(f"buffer_load_dword v1, v22, {SRD_WU}, {sT[0]} offen")
        def touch_d():
            touch_prep()
            e(f"s_lshl_b32 {sT[0]}, {sT[0]}, 3")
            e(f"s_add_u32 {sT[0]}, {sT[0]}, {sX}")
            e(f"s_mul_i32 {sT[0]}, {sT[0]}, 1792")
            e.op(f"buffer_load_dword v1, v22, {SRD_WD}, {sT[0]} offen")
        def place(pos):
            for key, dflt, f in (("ps", 0, ld_s), ("px", 1, ld_x), ("pm", 1, touch_m), ("pt", 0, touch_s), ("pw", 3, touch_w), ("pd", 3, touch_d)):
                if o(key, dflt) == pos: f()
        place(6)
        self.stamp("ldiss")
        self.ln1_addr(vLn, LR)
        if o("pm", 5) != 9:
            e("v_bfe_u32 v22, v0, 2, 4")
            e(f"v_min_u32 v22, {o('pmn', 5)}, v22")
            e(f"v_lshl_add_u32 v22, v22, 3, {sX}")
            e("v_subrev_u32 v23, 21, v22")
            e("v_cmp_gt_u32 vcc, 7, v23")
            e("v_cndmask_b32 v25, 0, 14, vcc")
            e("v_cmp_gt_u32 vcc, 14, v23")
            e("v_cndmask_b32 v23, 0, -7, vcc")
            e("v_add3_u32 v22, v22, v23, v25")
            e("v_min_u32 v22, 41, v22")
            e("v_and_b32 v23, 3, v0")
            e(f"s_lshr_b32 {sT[0]}, s2, 3")
            e(f"s_lshl_b32 {sT[0]}, {sT[0]}, 2")
            e(f"s_add_u32 {sT[0]}, {sT[0]}, {sW}")
            e(f"s_mul_i32 {sT[0]}, {sT[0]}, {4*5376}")
            e("v_mul_u32_u24 v23, 5376, v23")
            e("v_lshl_add_u32 v22, v22, 7, v23")
            e(f"v_add_u32 v22, {sT[0]}, v22")
        G, GS = 128, 92
        place(0)
        e(f"s_lshl_b32 {sT[1]}, {sW}, 12")
        e(f"v_add_u32 v9, {sT[1]}, v24")
        e("v_bfe_u32 v2, v0, 2, 4")
        e("v_and_b32 v3, 3, v0")
        e(f"v_mul_u32_u24 {v(vGs)}, {2*PP}, v2")
        e(f"v_lshl_add_u32 {v(vGs)}, v3, 4, {v(vGs)}")
        e("v_mul_u32_u24 v10, 3584, v2")
        e("v_lshl_add_u32 v10, v3, 4, v10")
        e(f"v_mul_u32_u24 {v(vP1)}, 4256, v3")
        e("v_min_u32 v4, 4, v2")
        e(f"v_lshl_add_u32 {v(vP1)}, v4, 4, {v(vP1)}")
        e(f"v_add_u32 {v(vP1)}, {L_TK}, {v(vP1)}")
        e("v_lshlrev_b32 v2, 3, v2")
        for dst, g1 in ((vRk, "v_add_u32 v4, 2, v3"), (vRh, "v_add_u32 v4, 1, v3")):
            e(g1)
            e("v_and_b32 v5, 1, v4")
            e("v_lshrrev_b32 v4, 1, v4")
            e("v_mul_u32_u24 v5, 576, v5")
            e("v_mul_u32_u24 v4, 1152, v4")
            e("v_xor_b32 v5, v5, v2")
            e(f"v_add3_u32 {v(dst)}, v4, v5, {sLO}")
        e(f"s_mul_i32 {sT[0]}, {sJR}, {32*PP}")
        e(f"s_lshl_b32 {sT[1]}, {sI}, 8")
        e(f"s_lshl_b32 {sT[2]}, {sW}, 6")
        e(f"s_add_u32 {sT[1]}, {sT[1]}, {sT[2]}")
        e(f"s_add_u32 {sT[0]}, {sT[0]}, {sT[1]}")
        for c in range(4): e(f"s_add_u32 {sT[4+c]}, {sT[0]}, {WS_KVG + PP*(c>>1) + 8192*(c&1)}")
        place(5)
        e(f"s_lshr_b32 {sRB}, {sX}, 1")
        e(f"s_lshl_b32 {sRB}, {sRB}, 2")
        e(f"s_add_u32 {sRB}, {sRB}, {sJQ}")
        e(f"s_and_b32 {sFS}, {sX}, 1")
        e(f"s_mul_i32 {sFS}, {sFS}, 7")
        e(f"s_add_u32 {sFS}, {sFS}, {sJR}")
        e(f"s_lshl_b32 {sT[0]}, {sFS}, 8")
        e(f"s_lshl_b32 {sT[1]}, {sW}, 6")
        e(f"s_add_u32 {sT[0]}, {sT[0]}, {sT[1]}")
        e(f"v_add_u32 v10, {sT[0]}, v10")
        self.unit_addr(19, 2, 896)
        e(f"s_lshr_b32 {sT[0]}, {sW}, 1")
        e(f"s_mul_i32 {sT[0]}, {sT[0]}, {896*896}")
        e(f"s_and_b32 {sT[1]}, {sW}, 1")
        e(f"s_mul_i32 {sT[1]}, {sT[1]}, {64*896}")
        e(f"s_add_u32 {sT[0]}, {sT[0]}, {sT[1]}")
        e(f"s_lshl_b32 {sT[1]}, {sJR}, 7")
        e(f"s_add_u32 {sT[0]}, {sT[0]}, {sT[1]}")
        e(f"v_add_u32 v19, {sT[0]}, v19")
        e(f"s_mul_i32 {sEXT}, {sW}, 10240")
        e(f"s_add_u32 {sEXT}, {sEXT}, {L_EXT}")
        for k in range(1, 4):
            e(f"s_mov_b32 {sKW[k]}, {56320*k}")
            e(f"s_mov_b32 {sKD[k]}, {6144*k}")
        self.tr_addr(11, 2, 8)
        e(f"v_add_u32 v16, {sLO}, v11")
        e(f"v_add_u32 v17, {L_HI}, v16")
        e("v_bfe_u32 v2, v0, 5, 1")
        e("v_lshlrev_b32 v2, 8, v2")
        e(f"v_add_u32 v18, {sEXT}, v11")
        e("v_sub_u32 v20, v17, v2")
        e("v_sub_u32 v21, v18, v2")
        e(f"s_lshr_b32 {sT[0]}, {sW}, 1")
        e(f"s_mul_i32 {sT[0]}, {sT[0]}, {8512 - 4096}")
        e(f"s_lshl_b32 {sT[1]}, {sW}, 11")
        e(f"s_add_u32 {sT[0]}, {sT[0]}, {sT[1]}")
        e(f"s_add_u32 {sT[0]}, {sT[0]}, {L_TK + 80}")
        e(f"v_add_u32 {v(vTw)}, {sT[0]}, v24")
        e("v_and_b32 v3, 1, v0")
        e(f"v_mul_u32_u24 {v(vP2)}, 4608, v3")
        e("v_bfe_u32 v2, v0, 1, 5")
        e(f"v_lshl_add_u32 {v(vP2)}, v2, 4, {v(vP2)}")
        e(f"v_add_u32 {v(vP2)}, {L_UR + 4096}, {v(vP2)}")
        for i in range(4): e(f"v_mov_b32 v{96+i}, 0")
        e("v_and_b32 v8, 3, v0")
        e("v_and_b32 v2, v2, v3")
        e("v_add_u32 v8, v8, v2")
        e("v_mul_u32_u24 v8, 1792, v8")
        e("v_mul_u32_u24 v3, 4256, v3")
        e("v_and_b32 v2, 7, v0")
        e("v_or_b32 v2, 1, v2")
        e("v_bfe_u32 v4, v0, 3, 1")
        e("v_lshl_add_u32 v2, v4, 5, v2")
        e("v_bfe_u32 v25, v0, 4, 2")
        e("v_lshl_add_u32 v2, v25, 3, v2")
        e("v_lshlrev_b32 v2, 1, v2")
        e("v_sub_u32 v2, v2, v3")
        sHW, sCH = sT[3], sT[2]
        e(f"s_and_b32 {sHW}, {sW}, 1")
        e(f"s_lshr_b32 {sCH}, {sW}, 1")
        e(f"s_mul_i32 {sT[0]}, {sCH}, 8512")
        e(f"s_lshl_b32 {sT[1]}, {sHW}, 8")
        e(f"s_add_u32 {sT[0]}, {sT[0]}, {sT[1]}")
        e(f"s_add_u32 {sT[0]}, {sT[0]}, {L_TK + 4256 + 2}")
        e(f"v_add_u32 v2, {sT[0]}, v2")
        e("v_lshrrev_b32 v30, 1, v9")
        e(f"v_add_u32 v30, {L_ST}, v30")
        e("v_and_b32 v5, 3, v0")
        e("v_bfe_u32 v6, v0, 2, 2")
        e("v_lshlrev_b32 v4, 4, v5")
        e("v_lshl_add_u32 v5, v6, 3, v5")
        e("v_lshl_add_u32 v4, v6, 10, v4")
        e("v_bfe_u32 v6, v0, 4, 1")
        e("v_bfe_u32 v28, v0, 5, 1")
        e("v_lshl_add_u32 v7, v5, 1, v6")
        e("v_lshl_add_u32 v7, v28, 3, v7")
        e("v_lshl_add_u32 v4, v6, 12, v4")
        e("v_lshl_add_u32 v4, v28, 9, v4")
        e("v_sub_u32 v5, v25, v5")
        e(f"s_mul_i32 {sT[1]}, {sCH}, 4608")
        e(f"s_lshl_b32 {sT[0]}, {sHW}, 8")
        e(f"s_add_u32 {sT[0]}, {sT[0]}, {sT[1]}")
        e(f"s_add_u32 {sT[0]}, {sT[0]}, {L_UR + 2*(2008-1792)}")
        e(f"v_lshl_add_u32 v5, v5, 4, {sT[0]}")
        e(f"s_lshl_b32 {sT[0]}, {sHW}, 10")
        e(f"s_sub_u32 {sT[0]}, {sT[1]}, {sT[0]}")
        e(f"s_add_u32 {sT[0]}, {sT[0]}, {L_UR + 2*(2044-1280)}")
        e("v_lshlrev_b32 v6, 3, v7")
        e(f"v_sub_u32 v6, {sT[0]}, v6")
        e(f"s_lshl_b32 {sT[1]}, {sHW}, 11")
        e(f"s_add_u32 {sT[0]}, {sT[1]}, {L_ST}")
        e(f"v_lshl_add_u32 v7, v7, 4, {sT[0]}")
        e(f"v_add_u32 v28, {L_TK}, v9")
        e(f"v_subrev_u32 v29, {sT[1]}, v28")
        self.stamp("setup")
        e("s_waitcnt lgkmcnt(0)")
        self.stamp("tag")
        e(f"s_lshl_b32 {sT[0]}, {sCH}, 4")
        e(f"s_lshr_b32 {sDV}, {sDV}, {sT[0]}")
        e(f"s_lshl_b32 {sDV}, {sDV}, 16")
        e(f"s_mul_i32 s76, s76, {sHW}")
        e(f"v_mov_b32 {v(SS+8)}, s76")
        e.op(f"ds_write_b128 {v(vP1)}, v[96:99]")
        e.op(f"ds_write_b128 {v(vP2)}, v[96:99]")
        self.make_tag()
        self.flag_regs()
        def go_load(): e.op(f"buffer_load_dwordx4 {v(SH,4)}, v23, {SRD_WS}, 0 offen offset:{WS_GO} sc1")
        if o("go", 1):
            e(f"s_lshl_b32 {sT[0]}, {sX}, 7")
            e("s_cmp_ge_u32 s2, 8")
            e("s_cbranch_scc1 L_nogo")
            self.flag(sT[0], WS_GO)
            e.label("L_nogo")
        place(1)
        WF, KF, AC, VF, PK = 96, 176, 112, 208, 224
        self.stamp("issued")
        e.wait(tK)
        self.stamp("kin")
        kt = [e.op(f"ds_read_b64 {v(K+2*r,2)}, {v(vRh)} offset:{128*(r+1)}") for r in range(3)]
        kt += [e.op(f"ds_read_b64 {v(K+6+2*r,2)}, {v(vRk)} offset:{128*r}") for r in range(4)]
        for c in range(4):
            for j in range(4): e(unpack(WF+4*j+c, SH+2*c+j//2, j & 1))
        for r in range(7):
            e.wait(kt[r])
            for c in range(4): e(unpack(KF+4*r+c, K+2*r+c//2, c & 1))
        for j in (3, 2, 1, 0):
            if j == 1:
                e.wait(tV)
                self.stamp("vin")
                vt_ = [e.op(f"ds_read_b64 {v(V_+2*r,2)}, {v(vRk)} offset:{2304 + 128*r}") for r in range(4)]
            for r in range(4):
                for p in (0, 2):
                    d_, k_, w_ = v(AC+4*r+p, 2), v(KF+4*(r+3-j)+p, 2), v(WF+4*j+p, 2)
                    e(f"v_pk_mul_f32 {d_}, {k_}, {w_}" if j == 3 else f"v_pk_fma_f32 {d_}, {k_}, {w_}, {d_}")
        e.wait(vt_[3])
        def kvstore(c): tk["kst"] = e.op(f"buffer_store_dwordx4 {v(G+4*c,4)}, {v(vGs)}, {SRD_WS}, {sT[4+c]} offen sc1")
        for p in (0, 2):
            for r in range(4):
                for c in (p, p+1): e(unpack(VF+4*r+c, V_+2*r+c//2, c & 1))
                e(f"v_pk_mul_f32 {v(AC+4*r+p,2)}, {v(AC+4*r+p,2)}, {v(VF+4*r+p,2)}")
            for c in (p, p+1):
                e(f"v_cvt_pk_bf16_f32 {v(G+4*c)}, {v(AC+12+c)}, {v(AC+8+c)}")
                e(f"v_cvt_pk_bf16_f32 {v(G+4*c+1)}, {v(AC+4+c)}, {v(AC+c)}")
        self.stamp("kv")
        place(2)
        e.wait(tk["S"])
        self.stamp("sin")
        CB = 96
        e(f"v_readlane_b32 s76, {v(SS+3)}, 63")
        e.op(f"ds_write_b128 {v(vTw)}, {v(SS,4)}")
        e.op(f"ds_write_b128 {v(vTw)}, {v(SS+4,4)} offset:1024")
        e(f"v_mov_b32 {v(SS+9)}, s76")
        for h in range(2):
            for i in range(1, 4): e(f"v_alignbit_b32 {v(CB+4*h+i)}, {v(SS+4*h+i)}, {v(SS+4*h+i-1)}, 16")
            e(f"v_mov_b32_dpp {v(SS+8+h)}, {v(SS+4*h+3)} wave_shr:1 row_mask:0xf bank_mask:0xf")
            e(f"v_alignbit_b32 {v(CB+4*h)}, {v(SS+4*h)}, {v(SS+8+h)}, 16")
            e.op(f"ds_write_b128 {v(vTw)}, {v(CB+4*h,4)} offset:{4256 + 1024*h}")
        sKVG, sFL, sHH, sMOD, sST1, sAS = sP[0], sP[1], sP[2], sP[3], sP[4], sP[5]
        e(f"s_mul_i32 {sT[0]}, {sD0}, {PP//2}")
        e(f"s_lshl_b32 {sT[1]}, {sCH}, 13")
        e(f"s_add_u32 {sKVG}, {sT[0]}, {sT[1]}")
        e(f"s_add_u32 {sKVG}, {sKVG}, {WS_KVG - L_ST}")
        e(f"s_lshl_b32 {sT[1]}, {sCH}, 6")
        e(f"s_add_u32 {sT[0]}, {sT[0]}, {sT[1]}")
        e(f"s_lshl_b32 {sT[1]}, {sHW}, 7")
        e(f"s_add_u32 {sT[0]}, {sT[0]}, {sT[1]}")
        e(f"s_add_u32 {sAS}, {sT[0]}, {WS_KVG}")
        e(f"s_add_u32 {sT[8]}, {sKVG}, 4096")
        e(f"s_add_u32 {sP[6]}, {sAS}, 8192")
        e(f"s_mov_b32 {sST1}, {WS_ST1}")
        e(f"s_lshr_b32 {sMOD}, {sD0}, 2")
        e(f"s_lshl_b32 {sMOD}, {sMOD}, 4")
        e(f"s_add_u32 {sMOD}, {sMOD}, {WS_MOD}")
        e(f"s_mul_i32 {sHH}, {sD0}, {HP//2}")
        e(f"s_lshl_b32 {sT[0]}, {sW}, 11")
        e(f"s_add_u32 {sHH}, {sHH}, {sT[0]}")
        e(f"s_add_u32 {sHH}, {sHH}, {WS_HH}")
        e(f"s_lshl_b32 {sFL}, {sD0}, 5")
        e(f"s_add_u32 {sFL}, {sFL}, {WS_F2}")
        e(f"s_lshl_b32 {sP[7]}, {sD0}, 6")
        e(f"s_add_u32 {sP[7]}, {sP[7]}, {WS_F3}")
        e(f"s_mov_b32 {sT[0]}, 0x05040100")
        e(f"s_mov_b32 {sT[1]}, 0x07060302")
        e("v_and_b32 v23, 7, v0")
        e("v_lshlrev_b32 v23, 7, v23")
        e.wait(tk["X"])
        self.stamp("xin")
        if o("go", 1):
            e(f"s_cmp_lg_u32 {sW}, 0")
            e("s_cbranch_scc1 L_nogo1")
            go_load()
            e.label("L_nogo1")
        for r in range(4): t = e.op(f"ds_read_b64 {v(X+2*r,2)}, {v(vRk)} offset:{4608 + 128*r}")
        e.wait(t)
        for c in range(4):
            e(f"v_perm_b32 {v(G+4*c+2)}, {v(X+2+c//2)}, {v(X+c//2)}, {sT[c&1]}")
            e(f"v_perm_b32 {v(G+4*c+3)}, {v(X+6+c//2)}, {v(X+4+c//2)}, {sT[c&1]}")
        gather = self.ln1_stats(LR, GS)
        e.waitall()
        if o("go", 1):
            e(f"s_cmp_lg_u32 {sW}, 0")
            e("s_cbranch_scc1 L_nogo2")
            self.checked(go_load, lambda: self.tagcheck([SH]), 28, spin=12)
            e.label("L_nogo2")
        e("s_barrier")
        self.stamp("allin")
        for c in range(4): kvstore(c)
        tg = gather()
        ws = WStream(e)
        ws.pace, ws.lag = o("pace", 64), o("lag", 1300)
        ws.limit, ws.rlimit = 56, 56
        ws.skip = str(o("skip", ""))
        def treg(rl, p, off=0, n=4):
            return v(160 + (rl*8+p)*4 + off, n) if rl < 3 else a_(224 + p*4 + off, n)
        tr = []
        for pp in range(4):
            for p in (2*pp, 2*pp+1):
                for rl in range(4):
                    def f(pp=pp, p=p, rl=rl):
                        of = rl*16 + (p & 1)*128
                        e.op(f"ds_read2_b32 {treg(rl,p,0,2)}, v2 offset0:{of} offset1:{of+1}")
                        e.op(f"ds_read2_b32 {treg(rl,p,2,2)}, v2 offset0:{of+2} offset1:{of+3}")
                        if (p & 1) and rl == 3 and pp < 3: e("v_add_u32 v2, 1024, v2")
                    tr.append(f)
        BR, DA, NB = 64, 96, 6
        XQ, SQ, MQ, EE, GG, RS, MR = 128, 144, 88, 32, 48, 144, 148
        cA, cB, cC, cD = 25, 26, 22, 23
        def sloads():
            for i in range(4): tk["s"] = e.op(f"buffer_load_dwordx4 {v(SQ+4*i,4)}, v9, {SRD_WS}, {sST1} offen offset:{1024*i} sc1")
        def mload(): tk["m"] = e.op(f"buffer_load_dwordx4 {v(MQ,4)}, v8, {SRD_WS}, {sMOD} offen sc1")
        kvat = o("kvat", 32)
        for f in tr[:kvat]: f()
        e.wait(tk["kst"], tg)
        e("s_barrier")
        self.stamp("clr")
        self.flag(sLN)
        place(3)
        for f in tr[kvat:]: f()
        if o("pw", 3) == 3: e.waitall(lg=False)
        self.stamp("stc")
        sloads()
        mload()
        place(7)
        ws.burst(o("w0", 4))
        e.wait(tk["s"])
        self.checked(sloads, lambda: self.tagcheck([SQ+4*i for i in range(4)]), 0)
        e("s_barrier")
        self.stamp("toep")
        xt = [e.op(f"buffer_load_dwordx4 {v(XQ+4*t,4)}, v7, {SRD_WS}, {(sKVG, sT[8])[t >> 1]} offen offset:{1024*(t & 1)} sc1") for t in range(4)]
        nrel = [0, 1, 4, 5]
        place(8)
        ws.burst(o("w1", 4))
        for i in range(4):
            q = SQ + 4*i
            for r in range(2):
                e(f"v_and_b32 {v(q+2+r)}, {sMASK}, {v(q+r)}")
                e(f"v_rcp_f32 {v(q+2+r)}, {v(q+2+r)}")
                e(f"v_lshlrev_b32 {v(q+r)}, 16, {v(q+r)}")
                e(f"v_mul_f32 {v(q+r)}, -{v(q+r)}, {v(q+2+r)}")
            e.op(f"ds_write_b64 v30, {v(q+2,2)} offset:{512*i}")
            e.op(f"ds_write_b64 v30, {v(q,2)} offset:{8192+512*i}")
        e.wait(tk["m"])
        self.checked(mload, lambda: self.tagcheck([MQ]), 1)
        e(f"s_bitcmp1_b32 {sD0}, 1")
        e("s_cselect_b64 vcc, -1, 0")
        e(f"v_cndmask_b32 {v(MQ)}, {v(MQ)}, {v(MQ+1)}, vcc")
        e(f"s_lshl_b32 {sT[1]}, {sCH}, 4")
        e(f"v_lshrrev_b32 {v(MQ)}, {sT[1]}, {v(MQ)}")
        e(f"v_lshlrev_b32 {v(MQ)}, 16, {v(MQ)}")
        e(f"v_add_f32 {v(MQ+1)}, 1.0, {v(MQ)}")
        self.bfround(MQ+1)
        e(f"v_mov_b32_dpp {v(cB)}, {v(MQ)} quad_perm:[0,0,0,0] row_mask:0xf bank_mask:0xf")
        e(f"v_mov_b32_dpp {v(cD)}, {v(MQ)} quad_perm:[2,2,2,2] row_mask:0xf bank_mask:0xf")
        e(f"v_mov_b32_dpp {v(cA)}, {v(MQ+1)} quad_perm:[1,1,1,1] row_mask:0xf bank_mask:0xf")
        e(f"v_mov_b32_dpp {v(cC)}, {v(MQ+1)} quad_perm:[3,3,3,3] row_mask:0xf bank_mask:0xf")
        e(f"v_mul_f32 {v(cA)}, {v(cA)}, {v(cD)}")
        e(f"v_mul_f32 {v(cB)}, {v(cB)}, {v(cD)}")
        sA = [f"s{4+i}" for i in range(7)]
        e("v_bfe_u32 v3, v0, 3, 3")
        e(f"v_mul_u32_u24 v3, {PP}, v3")
        e("v_and_b32 v2, 7, v0")
        e("v_lshl_add_u32 v3, v2, 4, v3")
        e(f"s_mul_i32 {sT[5]}, {sW}, 7168")
        e("v_min_u32 v2, 880, v24")
        e(f"s_mul_i32 {sT[0]}, {sW}, 3584")
        e(f"s_add_u32 {sT[0]}, {sT[0]}, {WS_F2}")
        e(f"v_lshl_add_u32 v2, v2, 2, {sT[0]}")
        e(f"s_lshl_b32 {sT[1]}, {sRB}, 9")
        e(f"s_add_u32 {sT[1]}, {sT[1]}, {WS_KVG}")
        e(f"s_mul_i32 {sA[1]}, {sW}, {56*PP}")
        e(f"s_add_u32 {sA[1]}, {sA[1]}, {sT[1]}")
        e(f"s_mul_i32 {sT[0]}, {sCH}, {112*PP - 128}")
        e(f"s_sub_u32 {sA[0]}, {sA[1]}, {sT[0]}")
        e(f"s_mov_b32 s88, {F2B}")
        e(f"s_add_u32 s89, {sFL}, {F2B}")
        for t in range(4):
            e.wait(xt[t])
            e.op(f"ds_write_b64 v6, {v(XQ+4*t,2)} offset:{512*(5-nrel[t])}")
        e.waitall(vm=False)
        e("s_barrier")
        self.stamp("kvin")
        if self.stop <= 1: return self.finish()

        seq = [(rl, m, range(4 - m)) for rl in range(4) for m in range(4)]
        seq += [(rl, m, range(max(4 - m, 0), 8 - m)) for rl in range(4) for m in range(8)]
        btok = {}
        def bread(n):
            rl, m, _ = seq[n]
            btok[n] = e.op(f"ds_read_b128 {v(BR+4*(n%NB),4)}, v5 offset:{rl*64 + (7-m)*512}")
        mm = []
        for n, (rl, m, ps) in enumerate(seq):
            for p in ps:
                def f(n=n, rl=rl, m=m, p=p, first=(p == ps[0])):
                    if first: e.wait(btok[n])
                    c_ = "0" if (rl == 0 and m == 0) else v(DA+4*(p+m), 4)
                    e(f"v_mfma_f32_16x16x32_bf16 {v(DA+4*(p+m),4)}, {treg(rl,p)}, {v(BR+4*(n%NB),4)}, {c_}")
                    if first and n + NB - 1 < len(seq): bread(n + NB - 1)
                mm.append(f)
        for n in range(NB - 1): bread(n)
        T_ = lambda txt: (lambda: e(txt))
        def eg(t):
            rs, mr = RS + 8*(t & 1), MR + 8*(t & 1)
            def rd():
                e.op(f"ds_read_b128 {v(rs,4)}, v7 offset:{1024*nrel[t]}")
                tk["r"] = e.op(f"ds_read_b128 {v(mr,4)}, v7 offset:{8192+1024*nrel[t]}")
            ops = [rd] + [T_(unpack(EE+4*t+r, XQ+4*t+2+r//2, r & 1)) for r in range(4)] + [lambda: e.wait(tk["r"])]
            for r in range(4):
                g_, x_ = v(GG+4*t+r), v(EE+4*t+r)
                ops += [T_(f"v_fma_f32 {g_}, {x_}, {v(rs+r)}, {v(mr+r)}"), T_(unpack(rs+r, XQ+4*t+1-r//2, not (r & 1))),
                        T_(f"v_fma_f32 {g_}, {g_}, {v(cA)}, {v(cB)}"), T_(f"v_mul_f32 {v(rs+r)}, {sDV}, {v(rs+r)}"),
                        T_(f"v_fmac_f32 {x_}, {g_}, {v(rs+r)}")]
            return ops
        PA, PX = 88, 92
        def red(pi, pk):
            Y = DA + 16*pi
            ops = []
            for t in range(4):
                def f(t=t): tk["rw"] = e.op(f"ds_write_b128 v28, {v(Y+4*t,4)} offset:{1024*t}")
                ops.append(f)
            ops.append(lambda: (e.wait(tk["rw"]), e("s_barrier")))
            for i in range(2):
                def f(i=i):
                    e.op(f"ds_read_b128 {v(Y+8*i,4)}, v29 offset:{1024*i}")
                    tk["rr", i] = e.op(f"ds_read_b128 {v(Y+8*i+4,4)}, v29 offset:{4096 + 1024*i}")
                ops.append(f)
            for i in range(2):
                ops.append(lambda i=i: e.wait(tk["rr", i]))
                y, g, x = Y + 8*i, GG + 8*pi + 4*i, EE + 8*pi + 4*i
                for p in (0, 2):
                    if pk:
                        ops += [T_(f"v_pk_add_f32 {v(y+p,2)}, {v(y+p,2)}, {v(y+4+p,2)}"),
                                T_(f"v_pk_fma_f32 {v(y+p,2)}, {v(g+p,2)}, {v(y+p,2)}, {v(x+p,2)}"),
                                T_(f"v_pk_mul_f32 {v(g+p,2)}, {v(y+p,2)}, {v(cC,2)} op_sel_hi:[1,0]")]
                    else:
                        for q in (p, p+1):
                            ops += [T_(f"v_add_f32 {v(y+q)}, {v(y+q)}, {v(y+4+q)}"),
                                    T_(f"v_fma_f32 {v(y+q)}, {v(g+q)}, {v(y+q)}, {v(x+q)}"),
                                    T_(f"v_mul_f32 {v(g+q)}, {v(y+q)}, {v(cC)}")]
                    ops += [T_(f"v_cvt_pk_bf16_f32 {v(PA+2*i+p//2)}, {v(g+p)}, {v(g+p+1)}"),
                            T_(f"v_cvt_pk_bf16_f32 {v(PX+2*i+p//2)}, {v(y+p)}, {v(y+p+1)}")]
            for q in (PA, PX):
                ops += [T_(f"v_permlane16_swap_b32 {v(q)}, {v(q+2)}"), T_(f"v_permlane16_swap_b32 {v(q+1)}, {v(q+3)}")]
            return ops
        def astore(pi, k):
            tk["as"] = e.op(f"buffer_store_dwordx4 {v((PA, PX)[k],4)}, v4, {SRD_WS}, {(sAS, sP[6])[k]} offen offset:{256*pi} sc1")
        FQ2 = 96
        def fload(h): tk["f"] = e.op(f"buffer_load_dwordx4 {v((FQ2, 52)[h],4)}, v2, {SRD_WS}, {('0', 's88')[h]} offen sc1")
        def fcheck(h):
            e.wait(tk["f"])
            self.checked(lambda: fload(h), lambda: self.tagcheck([(FQ2, 52)[h]]), 2 + 2*h)
        def ban(): ws.banned = {"lo"}
        def flag_a():
            while any(p[1] == "lo" for p in ws.pend): ws.read()
            e.wait(tk["as"], *[t for _, _, t in ws.free])
            e("s_barrier")
            self.flag(sFL)
            self.stamp("fla")
        def hold(): ws.limit = ws.next
        def free_(): ws.limit = 56
        r0, fl0, p0 = o("r0", 66), o("fl0", 96), o("p0", 150)
        c1 = (span(eg(0) + eg(1), 0, 38) + span(red(0, False), 42, r0) + span([lambda: astore(0, 0), lambda: astore(0, 1)], r0, r0 + 1)
              + span(eg(2) + eg(3), r0 + 2, 138))
        c2 = (span([ban], o("ban", 50), o("ban", 50)) + span([hold], fl0 - o("hold", 20), fl0 - o("hold", 20))
              + span([flag_a, free_], fl0, fl0) + span([hold], o("h2", 140), o("h2", 140)) + (span([lambda: fload(0)], p0, p0) if p0 < 144 else []))
        sched(e, ws, mm, [c1, c2], 0)
        free_()
        self.stamp("conv")
        def aload1(b, i):
            e(f"s_add_u32 m0, {sT[5]}, {28672*(b & 1) + 1024*i}")
            e(f"s_add_u32 {sT[0]}, {sA[b >> 1]}, {8*PP*i + (0, 112*PP, 256, 384)[b]}")
            tk["a", b] = e.op(f"buffer_load_dwordx4 v3, {SRD_WS}, {sT[0]} offen sc1 lds")
            ws.grp = None
        for i, f in enumerate(red(1, True)):
            if i == p0 - 144: fload(0)
            f()
        if o("bst", 0) == 0 or self.stop <= 2: astore(1, 0); astore(1, 1)
        self.stamp("a1st")
        if self.stop <= 2: return self.finish()

        if p0 > 200: fload(0)
        ws.burst(o("w1b", 0))
        fcheck(0)
        e("s_barrier")
        self.stamp("a0in")
        for i in range(7): aload1(0, i)
        if o("bst", 0) == 1: astore(1, 0); astore(1, 1)
        ws.drain_done()
        ws.burst(o("w2", 6))
        sST2, sHS, sMT, sOUT, sUT, sF3 = sP[0], "s11", sP[3], sP[4], sP[5], sT[4]
        e("v_and_b32 v5, 7, v0")
        e("v_min_u32 v26, 96, v24")
        e("v_lshlrev_b32 v26, 8, v26")
        e("v_and_b32 v30, 31, v0")
        e("v_mul_u32_u24 v8, 272, v30")
        e("v_lshlrev_b32 v30, 4, v30")
        e(f"s_lshl_b32 {sST2}, {sRB}, 11")
        e(f"s_add_u32 {sST2}, {sST2}, {WS_ST2}")
        e(f"s_and_b32 {sT[1]}, {sX}, 1")
        e(f"s_lshl_b32 {sMT}, {sRB}, 2")
        e(f"s_add_u32 {sMT}, {sMT}, {sT[1]}")
        e(f"s_lshl_b32 {sT[1]}, {sT[1]}, 1")
        e(f"s_add_u32 {sT[1]}, {sT[1]}, {sHW}")
        e(f"s_lshl_b32 {sT[1]}, {sT[1]}, 12")
        e(f"s_and_b32 {sT[0]}, {sX}, 6")
        e(f"s_add_u32 {sT[0]}, {sT[0]}, {sCH}")
        e(f"s_lshl_b32 {sT[0]}, {sT[0]}, 2")
        e(f"s_add_u32 {sT[0]}, {sT[0]}, {sJQ}")
        e(f"s_mul_i32 {sHS}, {sT[0]}, {HP}")
        e(f"s_add_u32 {sHS}, {sHS}, {sT[1]}")
        e(f"s_add_u32 {sHS}, {sHS}, {WS_HH}")
        e(f"s_lshl_b32 {sF3}, {sT[0]}, 7")
        e(f"s_add_u32 {sF3}, {sF3}, {WS_F3}")
        e(f"s_lshl_b32 {sUT}, {sFS}, 2")
        e(f"s_add_u32 {sUT}, {sUT}, {sW}")
        e(f"s_lshl_b32 {sUT}, {sUT}, 9")
        e(f"s_add_u32 {sUT}, {sUT}, {WS_UT}")
        e(f"s_add_u32 {sP[6]}, {sUT}, 28672")
        e("v_lshlrev_b32 v25, 5, v5")
        e("v_lshrrev_b32 v6, 3, v0")
        e("v_lshlrev_b32 v9, 4, v6")
        e("v_bfe_u32 v7, v0, 5, 1")
        e(f"s_mul_i32 {sT[1]}, {sW}, 8704")
        e(f"v_lshl_add_u32 v7, v7, 4, {sT[1]}")
        e("v_add_u32 v8, v8, v7")
        e("v_mul_u32_u24 v28, 272, v6")
        e("v_add_u32 v28, v28, v25")
        e("v_lshlrev_b32 v29, 9, v5")
        e("v_lshl_add_u32 v29, v6, 1, v29")
        e(f"v_add_u32 v29, {L_X1}, v29")
        e("v_mul_u32_u24 v31, 896, v6")
        e("v_lshl_add_u32 v31, v5, 4, v31")
        e(f"s_and_b32 {sT[1]}, {sX}, 1")
        e(f"s_lshl_b32 {sT[1]}, {sT[1]}, 4")
        e(f"s_add_u32 {sT[1]}, {sT[1]}, {sRB}")
        e(f"s_mul_i32 {sOUT}, {sT[1]}, 28672")
        e(f"s_lshl_b32 {sT[1]}, {sJR}, 7")
        e(f"s_add_u32 {sOUT}, {sOUT}, {sT[1]}")
        e(f"s_lshl_b32 {sT[8]}, {sJR}, 8")
        e(f"s_add_u32 {sT[8]}, {sT[8]}, {WS_MOD + 560*16}")
        e(f"s_lshl_b32 {sT[9]}, {sMT}, 9")
        e(f"s_add_u32 {sT[9]}, {sT[9]}, {WS_ST2}")
        e(f"s_lshl_b32 {sT[0]}, {sJR}, 2")
        e(f"s_add_u32 {sT[0]}, {sT[0]}, {sW}")
        e(f"s_mul_i32 {sT[10]}, {sT[0]}, {8*PP}")
        e(f"s_lshl_b32 {sT[0]}, {sMT}, 7")
        e(f"s_add_u32 {sT[10]}, {sT[10]}, {sT[0]}")
        e(f"s_add_u32 {sT[10]}, {sT[10]}, {WS_KVG + 8192}")
        e(f"s_lshl_b32 {sT[11]}, {sW}, 10")
        BR, ACC, PH, XA, XL, SG = 32, [64, 96, 128, 64], 48, [56, 58], [56, 48], [60, 4]
        e.wait(tk["a", 0])
        e("s_barrier")
        if o("bst", 0) == 0: self.flag("s89")
        ws.free += [("ext", i, None) for i in range(10)]
        ws.limit, ws.rlimit = 112, 88
        self.stamp("g1go")

        bt = {}
        def bread1(n, h):
            b, j = divmod(n, 28)
            if b < 2: j = 14*(j & 1) + (j >> 1)
            bt[n] = e.op(f"ds_read_b64_tr_b16 {v(BR+4*(n%4)+2*h,2)}, v11 offset:{28672*(b & 1) + 1024*j + 256*h}")
        def sgload(T):
            tk["sg", T] = e.op(f"buffer_load_dwordx4 {v(SG[T&1],4)}, v30, {SRD_WS}, {sST2} offen offset:{512*T} sc1")
        def utload(m):
            tk["ut"] = e.op(f"buffer_load_dwordx4 {v(XL[m],4)}, v30, {SRD_WS}, {(sUT, sP[6])[m]} offen sc1")
        def utcheck():
            e.wait(tk["ut"])
            self.checked(lambda: (utload(0), utload(1)), lambda: self.tagcheck(XL), 3)
        def utzero():
            e(f"v_mov_b32 {v(XA[1])}, {v(XL[1])}")
            e(f"v_mov_b32 {v(XA[1]+1)}, {v(XL[1]+1)}")
            e("s_mov_b32 exec_lo, 0")
            for r in range(4): e(f"v_mov_b32 {v(XA[0]+r)}, 0")
            e("s_mov_b32 exec_lo, -1")
        def extra(T):
            A = ACC[T]
            e.wait(tk["sg", T])
            self.checked(lambda: sgload(T), lambda: self.tagcheck([SG[T&1]]), 8 + T)
            for m in range(2):
                e(f"v_mfma_f32_32x32x8_bf16 {v(A+16*m,16)}, {v(XA[m],2)}, {v(SG[T&1],2)}, {v(A+16*m,16)}")
        nop = lambda: None
        def epi(T):
            ops = []
            A = ACC[T]
            for r in range(16):
                ops.append(lambda r=r: e(f"v_max_f32 {v(A+r)}, 0, {v(A+r)}"))
                ops.append(lambda r=r: e(f"v_mul_f32 {v(A+r)}, {v(A+r)}, {v(A+16+r)}"))
                if r & 1: ops.append(lambda r=r: e(f"v_cvt_pk_bf16_f32 {v(PH+r//2)}, {v(A+r-1)}, {v(A+r)}"))
                if r == 3: ops.append(lambda: e(f"s_add_u32 {sT[6]}, {sHH}, {8192*T}"))
                if r % 8 == 7:
                    ph = r // 8
                    def g(ph=ph):
                        tk["hs"] = e.op(f"buffer_store_dwordx4 {v(PH+4*ph,4)}, v24, {SRD_WS}, {sT[6]} offen offset:{1024*ph} sc1")
                    ops.append(g)
            return ops
        htok = {}
        def hload(stage, ks, so=sT[7]):
            with e.atomic():
                if ks % 4 == 0: e(f"s_add_u32 {so}, {sHS}, {16384*stage + 32*HP*(ks//4)}")
                htok[stage, ks] = e.op(f"buffer_load_dwordx4 {a_(4*ks,4)}, v24, {SRD_WS}, {so} offen offset:{1024*(ks%4)} sc1")
        GB, XR, R2 = 96, 104, 120
        def gload(i):
            va, so, off = (("v25", sT[8], 0), ("v25", sT[8], 16), ("v9", sT[9], 0), ("v9", sT[9], 1024))[i]
            tk["g"] = e.op(f"buffer_load_dwordx4 {v(XR+4*i,4)}, {va}, {SRD_WS}, {so} offen offset:{off} sc1")
        gld = [vm(lambda i=i: gload(i)) for i in range(4)]
        def gcheck():
            e.wait(tk["g"])
            self.checked(lambda: [f() for f in gld], lambda: self.tagcheck([XR+4*i for i in range(4)]), 26)
        def x1load(st):
            e(f"s_add_u32 m0, {sT[11]}, {L_X1 + (4096 - 256)*st}")
            tk["x1"] = e.op(f"buffer_load_dwordx4 v3, {SRD_WS}, {sT[10]} offen offset:{256*st} sc1 lds")
            ws.grp = None
        gops = [lambda r=r: e(unpack(GB+r, XR + 4*(r//4) + (r//2) % 2, r & 1)) for r in range(8)]
        for st in range(2):
            gops += [lambda st=st: e(f"v_and_b32 {v(R2+st)}, {sMASK}, {v(XR+8+4*st)}"),
                     lambda st=st: e(f"v_mul_f32 {v(R2+st)}, {v(R2+st)}, {v(R2+st)}"),
                     lambda st=st: e(f"v_rcp_f32 {v(R2+st)}, {v(R2+st)}")]
        for n in range(3): bread1(n, 0); bread1(n, 1)
        ws.pace, ws.lagw = o("pacea", 68), o("lagw", 900)
        ws.hload = hload
        mm = []
        for n in range(112):
            for m in range(2):
                def f(n=n, m=m):
                    b, j = divmod(n, 28)
                    T, ks = (n & 1, n >> 1) if b < 2 else (b, j)
                    A = ACC[T]
                    if m == 0: e.wait(bt[n])
                    if T == 0: ws.need("gu"[m], ks)
                    c_ = "0" if ks == 0 else v(A+16*m, 16)
                    e(f"v_mfma_f32_32x32x16_bf16 {v(A+16*m,16)}, {a_(112*m+4*ks,4)}, {v(BR+4*(n%4),4)}, {c_}")
                    if T == 3 and tk.get("eok"): ws.hmax = ks + 1
                    if n + 3 < 112:
                        if j == 25 and m == 0:
                            e.wait(tk["a", b+1], bt[n+2], tk["hs"] if b == 2 else None); e("s_barrier")
                            if b == 2: self.flag(sP[7])
                        bread1(n + 3, m)
                    if j == 27 and m == 1: self.stamp(f"t{b}")
                mm.append(f)
        ld = lambda T2: [vm(lambda i=i: aload1(T2, i)) for i in range(7)]
        FQ = 124
        def hfload(st): tk["hf"] = e.op(f"buffer_load_dwordx4 {v(FQ if st == 0 else 44,4)}, v26, {SRD_WS}, {sF3} offen offset:{64*st} sc1")
        def hfcheck(st):
            e.wait(tk["hf"])
            self.checked(lambda: hfload(st), lambda: self.tagcheck([FQ if st == 0 else 44]), 12 + st)
            tk["eok"] = True
        slow = lambda ops, a, b: [(a + ((b - a) * k) // len(ops), d, f) for k, (_, d, f) in enumerate(span(ops, a + 2, b + 2))]
        s0, e0 = o("s0", 66), o("e0", 190)
        def flag_b():
            if o("bst", 0) == 1:
                e.wait(tk["as"]); e("s_barrier"); self.flag("s89")
        fb, pb = o("fb2", 10), o("pb2", 34)
        cf = span([flag_b], fb, fb) + span([vm(lambda: fload(1))], pb, pb + 1) + span([lambda: fcheck(1)], pb + 22, pb + 22)
        ca = (span(ld(1), 0, o("a1d", 22)) + span(ld(2), pb + 23, pb + 42) + span(ld(3), 107, 128) + span(gld, 150, 170)
              + span([vm(lambda: hfload(0))], e0, e0 + 2) + span([lambda: hfcheck(0)], e0 + 24, e0 + 26) + span(gops[:8], 212, 223))
        cs = (span([vm(lambda: utload(0)), vm(lambda: utload(1)), vm(lambda: sgload(0)), vm(lambda: sgload(1))], s0 - 10, s0 + 4)
              + slow([utcheck, utzero, lambda: extra(0), lambda: extra(1)], s0 + 30, s0 + 38) + span(epi(0) + epi(1), 114, o("ep1", 144))
              + span([lambda: extra(2)], 160, 166)
              + span(epi(2), 172, 198) + slow([lambda: extra(3), gcheck, vm(lambda: x1load(0)), vm(lambda: x1load(1))], 198, 208) + span(gops[8:], 212, 223))
        def slower(): ws.pace = o("pace1", 72)
        cf += span([slower], 100, 100)
        cf += span([vm(lambda: sgload(2)), vm(lambda: sgload(3))], 126, 134)
        ws.lead = o("lead", 4)
        sched(e, ws, mm, [ca, cs, cf], o("rsv", 8))
        if self.stop <= 3:
            for op in epi(3): op()
            return self.finish()

        def stage_mm(stage):
            A = ACC[2 + stage]
            mm = []
            for ks in range(28):
                for nt in range(2):
                    def f(ks=ks, nt=nt):
                        if nt == 0:
                            ws.hneed(28*stage + ks)
                            e.wait(htok[stage, ks])
                        if nt == 0 and stage == 0: ws.need("d", 2*ks + 1)
                        c_ = "0" if ks == 0 else v(A+16*nt, 16)
                        e(f"v_mfma_f32_32x32x16_bf16 {v(A+16*nt,16)}, {ws.dreg(ks,nt)}, {a_(4*ks,4)}, {c_}")
                        if stage == 0 and nt == 1 and tk.get("lok"): ws.hmax = 28 + ks + 1
                    mm.append(f)
            return mm
        def stage_out(stage):
            A, sum_, tmp = ACC[2 + stage], 32, 40
            ops = []
            O = ops.append
            for nt in range(2):
                for g in range(4):
                    O(lambda nt=nt, g=g: e.op(f"ds_write_b128 v8, {v(A+16*nt+4*g,4)} offset:{L_RED[stage] + 128*nt + 32*g}"))
            def f():
                e.waitall(vm=False)
                e("s_barrier")
            O(f)
            rt = {}
            for w_ in range(4):
                def f(w_=w_):
                    dst = sum_ if w_ == 0 else tmp + 8*(w_-1)
                    e.op(f"ds_read_b128 {v(dst,4)}, v28 offset:{L_RED[stage] + 8704*w_}")
                    rt[w_] = e.op(f"ds_read_b128 {v(dst+4,4)}, v28 offset:{L_RED[stage] + 8704*w_+16}")
                O(f)
            pk = stage == 1
            for w_ in range(1, 4):
                O(lambda w_=w_: e.wait(rt[w_]))
                for p in range(0, 8, 2 if pk else 1):
                    if pk: O(lambda w_=w_, p=p: e(f"v_pk_add_f32 {v(sum_+p,2)}, {v(sum_+p,2)}, {v(tmp+8*(w_-1)+p,2)}"))
                    else: O(lambda w_=w_, p=p: e(f"v_add_f32 {v(sum_+p)}, {v(sum_+p)}, {v(tmp+8*(w_-1)+p)}"))
            for p in range(0, 8, 2):
                if pk: O(lambda p=p: e(f"v_pk_fma_f32 {v(sum_+p,2)}, {v(sum_+p,2)}, {v(GB+p,2)}, {v(XR+8+p,2)}"))
                else:
                    for q in (p, p+1):
                        O(lambda q=q: e(f"v_mul_f32 {v(sum_+q)}, {v(sum_+q)}, {v(R2)}"))
                        O(lambda q=q: e(f"v_fma_f32 {v(sum_+q)}, {v(sum_+q)}, {v(GB+q)}, {v(XR+q)}"))
                        O(lambda q=q: e(f"v_mul_f32 {v(GB+q)}, {v(GB+q)}, {v(R2+1)}"))
                O(lambda p=p: e(f"v_cvt_pk_bf16_f32 {v(tmp+p//2)}, {v(sum_+p)}, {v(sum_+p+1)}"))
            def f():
                e(f"s_add_u32 {sT[0]}, {sOUT}, {32*28672*stage}")
                e.op(f"buffer_store_dwordx4 {v(tmp,4)}, v31, {SRD_OUT}, {sT[0]} offen {'sc1' if o('outsc1', 1) else ''}")
            O(f)
            return ops
        age = o("age", 11)
        ws.rlimit = 112
        e.hook = None
        mm = stage_mm(0)
        def old(t): return t.done or e.nvm - t.seq >= age
        def pump():
            while ws.pend and old(ws.pend[0][3]): ws.read()
            return ws.step()
        def ready(stage, ks):
            h = htok.get((stage, ks))
            return h is not None and old(h) and (stage == 1 or 56 + min(2*ks + 3, 55) in ws.rtok)
        def run(stage, mm, k0, k1, side=()):
            side = list(side)
            per = -(-len(side) // max(2*(k1 - k0), 1))
            for ks in range(k0, k1):
                while not ready(stage, ks) and pump(): pass
                for nt in range(2):
                    mm[2*ks + nt]()
                    for f in side[:per]: f()
                    side = side[per:]
                    if nt == 0: pump()
        for i, f in enumerate(epi(3)):
            if i == 0: pump()
            f()
        self.stamp("g1end")
        k = 0
        def advance(until):
            nonlocal k
            while not until() and k < 28:
                if ready(0, k) or not pump():
                    run(0, mm, k, k + 1); k += 1
        n0_ = e.nvm
        advance(lambda: e.nvm - n0_ >= o("fa", 11))
        e.wait(tk["hs"], tk["x1"])
        e("s_barrier")
        self.flag(sP[7], 64)
        xr = [e.op(f"ds_read_u16 {v(XR+r)}, v29 offset:{4096*(r//8) + 64*(r%8)}") for r in range(16)]
        n0_, k0 = e.nvm, k
        advance(lambda: e.nvm - n0_ >= o("fb", 9) or k - k0 >= o("fbk", 12))
        hfload(1)
        e.wait(xr[-1])
        for r in range(16): e(f"v_lshlrev_b32 {v(XR+r)}, 16, {v(XR+r)}")
        n0_, k0 = e.nvm, k
        advance(lambda: e.nvm - n0_ >= o("fc", 10) or k - k0 >= o("fck", 10))
        hfcheck(1)
        self.stamp("lok")
        tk["lok"] = True
        ws.hmax = 28 + k
        for _ in range(o("fd", 6)): pump()
        run(0, mm, k, 28)
        self.stamp("g2m")
        so = stage_out(0)
        mm = stage_mm(1)
        n0 = o("so0", 0)
        for i, f in enumerate(so[:n0]):
            f()
            pump()
        self.stamp("g2e")
        run(1, mm, 0, 24, [nop]*6 + so[n0:])
        run(1, mm, 24, 28)
        self.stamp("g2l")
        for f in stage_out(1): f()
        e("s_cmp_lg_u32 s2, 0")
        e("s_cbranch_scc1 L_noepoch")
        e("v_lshlrev_b32 v4, 25, v0")
        e("v_lshrrev_b32 v5, 7, v0")
        e("v_lshl_or_b32 v4, v5, 25, v4")
        e.op(f"buffer_store_dwordx2 v[14:15], v4, {SRD_WS}, 0 offen")
        e.label("L_noepoch")
        self.stamp("out")
        self.finish()

    def helper(self):
        e = self.e
        if self.opt.get("nohelp"):
            e("s_waitcnt lgkmcnt(0)")
            self.stamp("start")
            return self.finish()
        self.srd(SRD_C, 80, 896)
        self.srd(SRD_WM, 88, 2408448)
        e(f"s_lshr_b32 {sRB}, {sX}, 1")
        e(f"s_lshl_b32 {sRB}, {sRB}, 2")
        e(f"s_add_u32 {sRB}, {sRB}, {sJR}")
        e(f"s_cmp_ge_u32 {sRB}, 7")
        e(f"s_cselect_b32 {sP[6]}, 1, 0")
        e(f"s_cselect_b32 {sT[0]}, 64, 56")
        e(f"s_load_dwordx2 s[28:29], s[0:1], {sT[0]}")
        e("s_mov_b32 s30, 1605632")
        e("s_mov_b32 s31, 0x20000")
        e(f"s_and_b32 {sT[0]}, {sX}, 1")
        e(f"s_sub_u32 {sT[0]}, {sT[0]}, {sP[6]}")
        e(f"s_mul_i32 {sT[0]}, {sT[0]}, 7")
        e(f"s_add_u32 {sP[7]}, {sT[0]}, {sRB}")
        sH = sI
        e(f"s_lshl_b32 {sH}, {sJR}, 3")
        e(f"s_add_u32 {sH}, {sH}, {sX}")
        e(f"s_add_u32 {sT[0]}, {sH}, 7")
        e(f"s_sub_u32 {sT[1]}, {sH}, 7")
        e(f"s_cmp_lt_u32 {sH}, 28")
        e(f"s_cselect_b32 {sT[0]}, {sT[0]}, {sT[1]}")
        e(f"s_cmp_lt_u32 {sH}, 21")
        e(f"s_cselect_b32 {sP[0]}, {sH}, {sT[0]}")
        e(f"s_add_u32 {sT[0]}, {sH}, 25")
        e(f"s_add_u32 {sT[1]}, {sH}, 32")
        e(f"s_cmp_lt_u32 {sH}, 3")
        e(f"s_cselect_b32 {sP[1]}, {sT[0]}, {sT[1]}")
        self.unit_addr(10, 2, 5376)
        e(f"s_mul_i32 {sT[0]}, {sW}, {112*5376}")
        e(f"v_add_u32 v10, {sT[0]}, v10")
        e("v_lshlrev_b32 v3, 1, v0")
        e(f"s_mul_i32 {sP[2]}, {sW}, 14336")
        self.ln1_addr(6, 84)
        e("v_and_b32 v24, 63, v0")
        e("v_lshlrev_b32 v24, 4, v24")
        e("s_waitcnt lgkmcnt(0)")
        self.stamp(self.pts[0])
        e.op(f"buffer_load_ushort v32, v3, {SRD_C}, 0 offen")
        tc = e.op(f"buffer_load_ushort v33, v3, {SRD_C}, 0 offen offset:512")
        self.load_tag()
        LR, GS = 84, 160
        def mdma(task):
            e(f"s_lshl_b32 {sT[2]}, {sP[task]}, 7")
            for u in range(14):
                e(f"s_add_u32 m0, {sP[2]}, {57344*task + 1024*u}")
                e(f"s_add_u32 {sT[1]}, {sT[2]}, {43008*u}")
                t = e.op(f"buffer_load_dwordx4 v10, {SRD_WM}, {sT[1]} offen lds")
            return t
        tL = self.ln1_loads(6, LR)
        if self.opt.get("pt", 0) != 9: self.touch_small(23)
        tm0 = mdma(0)
        L_SC, L_PART = 114688, 116736
        e.wait(tc)
        for r in (32, 33):
            e(f"v_lshlrev_b32 v{r}, 16, v{r}")
            e(f"v_mul_f32 v34, 0xbfb8aa3b, v{r}")
            e("v_exp_f32 v34, v34")
            e("v_add_f32 v34, 1.0, v34")
            e("v_rcp_f32 v34, v34")
            e(f"v_mul_f32 v{r}, v{r}, v34")
            e(f"v_cvt_pk_bf16_f32 v{r}, v{r}, v{r}")
        e(f"v_add_u32 v3, {L_SC}, v3")
        e("s_waitcnt lgkmcnt(0)")
        e.op("ds_write_b16 v3, v32")
        e.op("ds_write_b16 v3, v33 offset:512")
        self.make_tag()
        self.flag_regs()
        for q in (GS, GS+4):
            e(f"v_mov_b32 {v(q+2)}, s46")
            e(f"v_mov_b32 {v(q+3)}, s47")
        self.tr_addr(4, 2, 4)
        e(f"v_add_u32 v4, {sP[2]}, v4")
        e("v_bfe_u32 v5, v0, 5, 1")
        e(f"s_mul_i32 {sT[0]}, {sW}, 224")
        e(f"s_add_u32 {sT[0]}, {sT[0]}, {L_SC}")
        e(f"v_lshl_add_u32 v5, v5, 3, {sT[0]}")
        e("v_lshlrev_b32 v7, 2, v0")
        e(f"v_add_u32 v7, {L_PART}, v7")
        e("v_and_b32 v8, 15, v0")
        e("v_lshlrev_b32 v8, 4, v8")
        e("v_lshrrev_b32 v9, 4, v0")
        e("v_lshl_or_b32 v9, v9, 25, v8")
        e(f"v_add_u32 v8, {L_PART}, v8")
        e.wait(tL)
        gather = self.ln1_stats(LR, GS)
        e.waitall(vm=False)
        e("s_barrier")
        e.wait(gather())
        self.flag(sLN)
        SC, WB, AC = 32, 192, 128
        for ks in range(7):
            e.op(f"ds_read_b64 {v(SC+4*ks,2)}, v5 offset:{32*ks}")
            e.op(f"ds_read_b64 {v(SC+4*ks+2,2)}, v5 offset:{32*ks+16}")
        def gemv(task):
            for ks in range(7):
                for nt in range(2):
                    for half in range(2):
                        e.op(f"ds_read_b64_tr_b16 {v(WB+8*ks+4*nt+2*half,2)}, v4 offset:{1024*(2*ks+half) + 512*nt}")
            e.waitall(vm=False)
            for ks in range(7):
                for nt in range(2):
                    c_ = "0" if ks == 0 else v(AC+16*nt, 16)
                    e(f"v_mfma_f32_32x32x16_bf16 {v(AC+16*nt,16)}, {v(SC+4*ks,4)}, {v(WB+8*ks+4*nt,4)}, {c_}")
            e("v_and_b32 v2, 32, v0")
            e("v_cmp_eq_u32 vcc, 0, v2")
            e(f"v_cndmask_b32 v2, {v(AC+16)}, {v(AC)}, vcc")
            e.op(f"ds_write_b32 v7, v2 offset:{1024*task}")
            e.waitall(vm=False)
            e("s_barrier")
            for w_ in range(4): e.op(f"ds_read_b128 {v(WB+4*w_,4)}, v8 offset:{1024*task + 256*w_}")
            e.waitall(vm=False)
            for w_ in range(1, 4):
                for p in (0, 2): e(f"v_pk_add_f32 {v(WB+p,2)}, {v(WB+p,2)}, {v(WB+4*w_+p,2)}")
            e(f"v_cvt_pk_bf16_f32 {v(GS+4)}, {v(WB)}, {v(WB+1)}")
            e(f"v_cvt_pk_bf16_f32 {v(GS+5)}, {v(WB+2)}, {v(WB+3)}")
            e(f"s_lshl_b32 {sT[0]}, {sP[task]}, 8")
            e(f"s_add_u32 {sT[0]}, {sT[0]}, {WS_MOD}")
            e.op(f"buffer_store_dwordx4 {v(GS+4,4)}, v9, {SRD_WS}, {sT[0]} offen sc1")
        e.wait(tm0)
        gemv(0)
        self.stamp(self.pts[1])
        e(f"s_cmp_lt_u32 {sH}, 10")
        e("s_cbranch_scc0 L_h_two")
        mdma(1)
        e("v_add_u32 v4, 57344, v4")
        e.waitall(lg=False)
        gemv(1)
        e.label("L_h_two")
        self.stamp(self.pts[2])
        if self.stop <= 2: return self.finish()
        self.tr_addr(11, 2, 8)
        self.stamp(self.pts[3])
        e(f"s_cmp_ge_u32 {sRB}, 14")
        e("s_cbranch_scc1 L_h_nout")
        e("v_bfe_u32 v10, v0, 2, 4")
        e("v_mul_u32_u24 v10, 3584, v10")
        e("v_and_b32 v2, 3, v0")
        e(f"s_lshl_b32 {sT[0]}, {sP[7]}, 2")
        e(f"s_add_u32 {sT[3]}, {sT[0]}, {sW}")
        e(f"s_lshl_b32 {sT[0]}, {sT[3]}, 6")
        e(f"v_lshl_add_u32 v2, v2, 4, {sT[0]}")
        e("v_add_u32 v10, v10, v2")
        e(f"s_mul_i32 {sT[2]}, {sW}, 28672")
        e(f"v_add_u32 v4, {sT[2]}, v11")
        for ks in range(28):
            e(f"s_add_u32 m0, {sT[2]}, {1024*ks}")
            e(f"s_mov_b32 {sT[1]}, {57344*ks}")
            e.op(f"buffer_load_dwordx4 v10, {SRD_WG}, {sT[1]} offen lds")
        VQ = 32
        e("v_min_u32 v2, 223, v0")
        e("v_lshlrev_b32 v3, 4, v2")
        e(f"s_mov_b32 {sT[8]}, {WS_MOD + 336*16}")
        self.poll(lambda: e.op(f"buffer_load_dwordx4 {v(VQ,4)}, v3, {SRD_WS}, {sT[8]} offen sc1"), lambda: self.tagcheck([VQ]), nap=4)
        for ks in range(28):
            e.op(f"ds_read_b64_tr_b16 {a_(4*ks,2)}, v4 offset:{1024*ks}")
            e.op(f"ds_read_b64_tr_b16 {a_(4*ks+2,2)}, v4 offset:{1024*ks+256}")
        e("v_cmp_le_u32 vcc, 112, v2")
        e("v_cndmask_b32 v5, 0, 1.0, vcc")
        for r in range(4):
            src = v(VQ + r//2)
            e(f"v_and_b32 {v(VQ+4+r)}, {sMASK}, {src}" if r & 1 else f"v_lshlrev_b32 {v(VQ+4+r)}, 16, {src}")
            e(f"v_add_f32 {v(VQ+4+r)}, v5, {v(VQ+4+r)}")
        e(f"v_cvt_pk_bf16_f32 {v(VQ)}, {v(VQ+4)}, {v(VQ+5)}")
        e(f"v_cvt_pk_bf16_f32 {v(VQ+1)}, {v(VQ+6)}, {v(VQ+7)}")
        e("v_lshlrev_b32 v2, 3, v2")
        e(f"v_add_u32 v2, {L_VEC}, v2")
        e.op(f"ds_write_b64 v2, {v(VQ,2)}")
        e("v_and_b32 v2, 1, v0")
        e("v_mul_u32_u24 v2, 896, v2")
        e("v_bfe_u32 v3, v0, 5, 1")
        e("v_lshlrev_b32 v5, 4, v3")
        e("v_sub_u32 v2, v5, v2")
        e(f"v_add_u32 v2, {L_VEC + 896}, v2")
        e("v_lshl_or_b32 v3, v3, 25, v24")
        e(f"s_lshl_b32 {sT[3]}, {sT[3]}, 9")
        e(f"s_mul_i32 {sT[0]}, {sP[6]}, 28672")
        e(f"s_add_u32 {sT[3]}, {sT[3]}, {sT[0]}")
        e(f"s_add_u32 {sT[3]}, {sT[3]}, {WS_UT}")
        e.waitall(vm=False)
        e("s_barrier")
        vt = [e.op(f"ds_read_b128 {a_(112+4*ks,4)}, v2 offset:{32*ks}") for ks in range(28)]
        for ks in range(28):
            e.wait(vt[ks])
            e(f"v_mfma_f32_32x32x16_bf16 {v(AC,16)}, {a_(112+4*ks,4)}, {a_(4*ks,4)}, {'0' if ks == 0 else v(AC,16)}")
        q = GS + 4
        e(f"v_cvt_pk_bf16_f32 {v(q)}, {v(AC)}, {v(AC+1)}")
        e(f"v_lshlrev_b32 v2, 16, {v(q)}")
        e(f"v_and_b32 v5, {sMASK}, {v(q)}")
        e(f"v_sub_f32 v2, {v(AC)}, v2")
        e(f"v_sub_f32 v5, {v(AC+1)}, v5")
        e(f"v_cvt_pk_bf16_f32 {v(q+1)}, v2, v5")
        e.op(f"buffer_store_dwordx4 {v(q,4)}, v3, {SRD_WS}, {sT[3]} offen sc1")
        e.label("L_h_nout")
        e("s_barrier")
        self.stamp(self.pts[4])
        e(f"s_mul_i32 {sT[5]}, {sW}, 7168")
        e(f"v_add_u32 v11, {sT[5]}, v11")
        e("v_bfe_u32 v25, v0, 3, 3")
        e(f"v_mul_u32_u24 v25, {PP}, v25")
        e("v_and_b32 v5, 7, v0")
        e("v_lshl_add_u32 v25, v5, 4, v25")
        e(f"s_lshl_b32 {sP[3]}, {sRB}, 2")
        e(f"s_and_b32 {sT[0]}, {sX}, 1")
        e(f"s_add_u32 {sP[3]}, {sP[3]}, {sT[0]}")
        e(f"s_mul_i32 {sT[0]}, {sW}, {56*PP}")
        e(f"s_lshl_b32 {sT[1]}, {sP[3]}, 7")
        e(f"s_add_u32 {sT[0]}, {sT[0]}, {sT[1]}")
        sA = [f"s{4+i}" for i in range(7)]
        for i in range(7): e(f"s_add_u32 {sA[i]}, {sT[0]}, {WS_KVG + 8192 + 8*PP*i}")
        e(f"s_lshl_b32 {sP[3]}, {sP[3]}, 9")
        e(f"s_add_u32 {sP[3]}, {sP[3]}, {WS_ST2}")
        e("v_and_b32 v8, 31, v0")
        e("v_lshrrev_b32 v9, 5, v0")
        e("v_lshlrev_b32 v2, 4, v8")
        e("v_lshl_or_b32 v9, v9, 25, v2")
        e("v_lshlrev_b32 v8, 2, v8")
        e(f"v_add_u32 v8, {L_PART}, v8")
        e(f"s_mov_b32 {sP[5]}, 0x3f803f80")
        FR = 64
        e("v_min_u32 v2, 880, v24")
        e(f"s_mul_i32 {sT[0]}, {sW}, 3584")
        e(f"s_add_u32 {sT[0]}, {sT[0]}, {WS_F2}")
        e(f"v_lshl_add_u32 v2, v2, 2, {sT[0]}")
        e(f"s_lshl_b32 {sT[1]}, {sH}, 6")
        e(f"s_add_u32 {sT[0]}, {sT[0]}, {sT[1]}")
        e(f"v_mov_b32 v3, {sT[0]}")
        e("v_mov_b32 v22, v2")
        e("v_mov_b32 v23, v3")
        e(f"s_mov_b32 s88, {F2B}")
        for job in range(2):
            for va, nap in (("v23", self.opt.get("nap2", 6)), ("v22", 2)):
                self.poll(lambda: e.op(f"buffer_load_dwordx4 v[32:35], {va}, {SRD_WS}, {('0', 's88')[job]} offen sc1"), lambda: self.tagcheck([32]), nap=nap)
            for i in range(7):
                e(f"s_add_u32 m0, {sT[5]}, {(28672 - 256)*job + 1024*i}")
                e.op(f"buffer_load_dwordx4 v25, {SRD_WS}, {sA[i]} offen offset:{256*job} sc1 lds")
            e.waitall(lg=False)
            rt = []
            for i in range(7):
                e.op(f"ds_read_b64_tr_b16 {v(FR+4*i,2)}, v11 offset:{28672*job + 1024*i}")
                rt.append(e.op(f"ds_read_b64_tr_b16 {v(FR+4*i+2,2)}, v11 offset:{28672*job + 1024*i+256}"))
            e("v_mov_b32 v2, 0")
            e("v_mov_b32 v3, 0")
            for i in range(7):
                e.wait(rt[i])
                for r in range(4):
                    e(f"v_dot2c_f32_bf16 v2, {sP[5]}, {v(FR+4*i+r)}")
                    e(f"v_dot2c_f32_bf16 v3, {v(FR+4*i+r)}, {v(FR+4*i+r)}")
            e("v_permlane32_swap_b32 v2, v3")
            e("v_add_f32 v2, v2, v3")
            e.op(f"ds_write_b32 v7, v2 offset:{1024*job}")
            e.waitall(vm=False)
            e("s_barrier")
            for w_ in range(4):
                o = 256*job + 64*w_
                e.op(f"ds_read_b32 {v(FR+2*w_)}, v8 offset:{4*o}")
                e.op(f"ds_read_b32 {v(FR+2*w_+1)}, v8 offset:{4*o+128}")
            e.waitall(vm=False)
            e(f"v_pk_add_f32 {v(FR,2)}, {v(FR,2)}, {v(FR+2,2)}")
            e(f"v_pk_add_f32 {v(FR+4,2)}, {v(FR+4,2)}, {v(FR+6,2)}")
            e(f"v_pk_add_f32 {v(GS,2)}, {v(FR,2)}, {v(FR+4,2)}")
            self.stats_finish(GS, GS+1, True)
            e(f"v_mov_b32 {v(GS+1)}, {v(GS)}")
            e.op(f"buffer_store_dwordx4 {v(GS,4)}, v9, {SRD_WS}, {sP[3]} offen offset:{1024*job} sc1")
            self.stamp(self.pts[5 + job])
        self.finish()


HEADER = "".join(l for l in open(f"cdna_kernels/{NAME}.s.ref").readlines()[:18] if "@launch" not in l) \
    if __import__("os").path.exists(f"cdna_kernels/{NAME}.s.ref") else ""


def generate(**kw):
    body = Gen(**kw).build()
    return f"""{HEADER}; @launch grid=(256,1,1) block=(256,1,1) lds={LDS_BYTES}
.amdgcn_target "amdgcn-amd-amdhsa--gfx950"
.text
.globl {NAME}_kernel
.p2align 8
.type {NAME}_kernel,@function
{NAME}_kernel:
{body}
.section .rodata,"a"
.p2align 6
.amdhsa_kernel {NAME}_kernel
  .amdhsa_next_free_vgpr 512
  .amdhsa_next_free_sgpr 102
  .amdhsa_accum_offset 256
  .amdhsa_group_segment_fixed_size 0
  .amdhsa_kernarg_size 120
  .amdhsa_user_sgpr_count 2
  .amdhsa_user_sgpr_kernarg_segment_ptr 1
  .amdhsa_system_sgpr_workgroup_id_x 1
  .amdhsa_float_denorm_mode_32 3
.end_amdhsa_kernel
"""


if __name__ == "__main__":
    out = sys.argv[1] if len(sys.argv) > 1 else f"cdna_kernels/{NAME}.s"
    kw = {}
    for a in sys.argv[2:]:
        k, val = a.split("=")
        kw[k] = int(val) if val.lstrip('-').isdigit() else val
    open(out, "w").write(generate(**kw))
```

```python
import re

TRANS = ("v_exp_f32", "v_log_f32", "v_rcp_f32", "v_rsq_f32", "v_sqrt_f32", "v_sin_f32", "v_cos_f32")
_reg_re = re.compile(r"\b([vas])(?:(\d+)\b|\[(\d+):(\d+)\])")

def regs_of(tok):
    out = set()
    for m in _reg_re.finditer(tok):
        k = m.group(1)
        if m.group(2) is not None:
            out.add((k, int(m.group(2))))
        else:
            out.update((k, i) for i in range(int(m.group(3)), int(m.group(4)) + 1))
    if re.search(r"\bvcc\b", tok): out.update({("s", 106), ("s", 107)})
    if re.search(r"\bm0\b", tok): out.add(("s", 124))
    if re.search(r"\bexec\b", tok): out.update({("s", 126), ("s", 127)})
    return out

class Ins:
    def __init__(self, text):
        self.text = text
        t = text.split(";")[0].strip()
        self.is_label = t.endswith(":")
        self.is_dir = t.startswith(".")
        parts = t.split(None, 1)
        self.op = parts[0] if parts else ""
        ops = [o.strip() for o in parts[1].split(",")] if len(parts) > 1 else []
        if ops:
            last = ops[-1].split()
            ops[-1] = last[0] if last else ""
        for n, o in enumerate(ops):
            if " " in o:
                ops = ops[:n] + [o.split()[0]]
                break
        self.ops = ops
        op = self.op
        self.mfma = op.startswith("v_mfma")
        self.valu = op.startswith("v_") and not self.mfma
        self.salu = op.startswith("s_")
        self.ds = op.startswith("ds_")
        self.vmem = op.startswith("buffer_") or op.startswith("global_")
        self.dpp = "_dpp" in op
        self.perml = op.startswith("v_permlane")
        self.rdlane = op.startswith("v_readlane") or op.startswith("v_readfirstlane")
        self.trans = op.replace("_e32", "").replace("_e64", "") in TRANS
        self.dot = op.startswith("v_dot")
        self.dma = self.vmem and re.search(r"\blds\b", t) is not None
        self.store = self.vmem and ("store" in op or "atomic" in op)
        self.widest = self.store and ("x4" in op or "x3" in op)
        R = [regs_of(o) for o in ops]
        w, r = set(), set()
        if self.is_label or self.is_dir or not R:
            pass
        elif self.mfma:
            w = R[0]; r = R[1] | R[2] | R[3]
            self.a, self.b, self.c = R[1], R[2], R[3]
            self.passes = 8 if "32x32" in op else 4
        elif self.perml:
            w = R[0] | R[1]; r = R[0] | R[1]
        elif self.valu:
            w = R[0]; r = set().union(*R[1:]) if len(R) > 1 else set()
            if "fmac" in op or "dot2c" in op or self.dpp: r |= R[0]
            if "_co_" in op: w |= R[1]
        elif self.ds:
            if "write" in op: r = set().union(*R)
            else:
                w = R[0]; r = set().union(*R[1:])
                if "d16" in op: r |= R[0]
        elif self.vmem:
            if self.store or self.dma: r = set().union(*R)
            else: w = R[0]; r = set().union(*R[1:])
            if self.dma: r.add(("s", 124))
            if self.store:
                self.data = R[0] if op.startswith("buffer_") else R[1]
        elif self.salu:
            if op.startswith("s_cmp") or op.startswith("s_cbranch") or op in ("s_waitcnt", "s_nop", "s_barrier", "s_branch", "s_setprio", "s_endpgm", "s_sleep"):
                r = set().union(*R)
            else:
                w = R[0]; r = set().union(*R[1:]) if len(R) > 1 else set()
                if "saveexec" in op: w = w | {("s", 126), ("s", 127)}
        self.w, self.r = w, r
    def states(self):
        if self.is_label or self.is_dir: return 0
        if self.op == "s_nop": return int(self.ops[0]) + 1
        return 1

def need(p, c):
    n = 0
    pv = {x for x in p.w if x[0] != "s"}
    ps = {x for x in p.w if x[0] == "s"}
    if p.valu:
        if c.mfma and pv & c.r: n = max(n, 2)
        if (c.dpp or c.perml) and pv & c.r: n = max(n, 2)
        if c.rdlane and pv & c.r: n = max(n, 1)
        if p.trans and c.valu and not c.trans and pv & c.r: n = max(n, 1)
        if p.dot and (c.valu or c.mfma or c.vmem or c.ds) and pv & (c.r | c.w):
            if not (c.op == p.op and pv == c.w): n = max(n, 3)
        if ps & c.r:
            if c.vmem: n = max(n, 5)
            elif c.rdlane: n = max(n, 4)
            elif c.valu: n = max(n, 2)
            elif c.salu: n = max(n, 1)
    if p.mfma:
        big = 12 if p.passes == 8 else 8
        if c.mfma:
            if p.w & (c.a | c.b): n = max(n, big)
            if p.w & c.c and not (p.w == c.c and p.passes == c.passes): n = max(n, big - 2)
            if p.w & c.w and not (p.w == c.c): n = max(n, big - 2)
        elif p.w & (c.r | c.w): n = max(n, big)
        if c.valu and p.c & c.w: n = max(n, 7 if p.passes == 8 else 3)
    if p.widest and p.data & c.w: n = max(n, 2)
    if p.salu and ("s", 124) in p.w and c.dma: n = max(n, 1)
    return n

class Tok:
    def __init__(self, kind): self.kind = kind; self.done = False

class Emit:
    def __init__(self):
        self.t = 0
        self.mfree = 0
        self.hook = None
        self.lock = 0
        self.nvm = 0
        self.log = []; self.nmf = 0
        self.count = 0; self.at = []; self.trace = []; self.atop = "s_memtime"
        self.ins = []
        self.vm = []
        self.lg = []
        self.nlab = 0
    def __call__(self, text):
        for ln in text.split("\n"):
            ln = ln.strip()
            if ln: self._one(ln)
    def _one(self, text):
        self.count += 1
        if self.count in self.at:
            r = 90 + 2 * self.at.index(self.count)
            self.ins.append(Ins(f"{self.atop} s[{r}:{r+1}]"))
        self.trace.append((self.count, self.nmf, self.t, text))
        c = Ins(text)
        if not (c.is_label or c.is_dir):
            dist = 0; pad = 0
            for p in reversed(self.ins):
                if dist >= 20: break
                if not (p.is_label or p.is_dir):
                    pad = max(pad, need(p, c) - dist)
                dist += p.states()
            if pad > 0:
                self.ins.append(Ins(f"s_nop {pad-1}")); self.t += 4 + pad
        self.ins.append(c)
        if c.mfma:
            self.nmf += 1
            self.t = max(self.t, self.mfree); self.mfree = self.t + 4 * c.passes; self.t += 8
        elif not (c.is_label or c.is_dir):
            self.t += 8 if c.trans else 4
        tok = None
        if c.vmem:
            tok = Tok("vm"); self.vm.append(tok); self.nvm += 1; tok.seq = self.nvm; tok.t = self.t; tok.text = text
        elif c.ds:
            tok = Tok("lg"); self.lg.append(tok)
        if self.hook and not self.lock:
            self.lock += 1; self.hook(); self.lock -= 1
        self.last = tok
        return tok
    def atomic(self):
        em = self
        class L:
            def __enter__(s_): em.lock += 1
            def __exit__(s_, *a): em.lock -= 1
        return L()
    def op(self, text):
        return self._one(text)
    def wait(self, *toks):
        parts = []
        for kind, q, cap, name in (("vm", self.vm, 63, "vmcnt"), ("lg", self.lg, 15, "lgkmcnt")):
            idx = [q.index(t) for t in toks if t is not None and t.kind == kind and not t.done]
            if not idx: continue
            n = min(len(q) - 1 - max(idx), cap)
            k = len(q) - n
            if kind == "vm": self.log.append((self.nmf, self.t, self.t - q[k-1].t, n, q[k-1].text))
            for t in q[:k]: t.done = True
            del q[:k]
            parts.append(f"{name}({n})")
        if parts: self._one("s_waitcnt " + " ".join(parts))
    def waitall(self, vm=True, lg=True):
        parts = []
        if vm:
            for t in self.vm: t.done = True
            self.vm = []; parts.append("vmcnt(0)")
        if lg:
            for t in self.lg: t.done = True
            self.lg = []; parts.append("lgkmcnt(0)")
        self._one("s_waitcnt " + " ".join(parts))
    def forget(self):
        self.vm = []; self.lg = []
    def label(self, name): self._one(name + ":")
    def newlabel(self, p="L"):
        self.nlab += 1
        return f"{p}_{self.nlab}"
    def text(self):
        return "\n".join(("" if i.is_label else "    ") + i.text for i in self.ins)

def weave(main, fill, start=0, end=None):
    end = len(main) if end is None else end
    n = max(end - start, 1)
    done = 0
    for i, m in enumerate(main):
        m()
        if start <= i < end:
            upto = (len(fill) * (i - start + 1) + n - 1) // n
            while done < upto:
                fill[done](); done += 1
    while done < len(fill):
        fill[done](); done += 1
```

```python
import sys
from emit import Emit, weave

NAME = "adaLN_cond__ssm_conv_h3__glu_gated_reglu__prompt"
S, D, F = 2048, 448, 1792

WS_EPOCH = 0
WS_GO = 0x800
WS_ST1 = 0x1000
WS_MOD = 0x5000
WS_ST2 = 0x8000
WS_UT = 0x10000
WS_F2 = 0x1e000
F2B = 0xc000
WS_F3 = 0x30000
PP = 16384 + 512
HP = 32768 + 512
WS_KVG = 0x60000
WS_HH = WS_KVG + 224 * PP
WS_STAMP = WS_HH + 224 * HP
WS_SIZE = WS_STAMP + 256 * 4 * 128

L_WST = 0
L_UR = 114688
L_ST = L_UR + 9216
L_TK = L_ST + 16384
L_VEC = L_TK + 17024
L_S1 = L_VEC + 2048
L_HI = 57344
L_EXT = 114688
L_X1 = L_EXT + 40960
L_RED = 17408
LDS_BYTES = 163840
BIG = 0x7fffff00
SPIN = 1 << 15

SRD_K, SRD_V, SRD_X, SRD_WS = "s[4:7]", "s[8:11]", "s[12:15]", "s[16:19]"
SRD_SH, SRD_SSM, SRD_WG, SRD_WU, SRD_WD, SRD_OUT = "s[20:23]", "s[24:27]", "s[28:31]", "s[32:35]", "s[36:39]", "s[40:43]"
SRD_C, SRD_WM = "s[4:7]", "s[8:11]"
TAG = "s[46:47]"
sW, sX, sJQ, sJR, sI, sD0, sRB, sFS = "s48", "s49", "s50", "s51", "s52", "s53", "s54", "s55"
sMASK, sSPIN, sDV, sLN = "s56", "s57", "s58", "s59"
sT = ["s%d" % i for i in range(60, 72)]
sC = ["s[72:73]", "s[74:75]", "s[76:77]", "s[78:79]"]
sLO, sEXT = "s80", "s81"
sROT, sWT = "s78", "s79"
sKW = ["0", "s82", "s83", "s84"]
sKD = ["0", "s85", "s86", "s87"]
sP = ["s%d" % i for i in range(20, 28)]
STAMP0 = 90


def v(a, n=1): return f"v{a}" if n == 1 else f"v[{a}:{a+n-1}]"
def a_(a, n=1): return f"a{a}" if n == 1 else f"a[{a}:{a+n-1}]"


TUNED = dict(pacea=76, pace1=64, ep0=108, fa=4, fbk=12, e1=190, ep2=194, fe0=128, lag=1000, wsp=4, fd=4, fck=10, rsv=4, e0=158, lead=12, ep1=140,
             rw=2, w0=6, pd=8, w2=6, pt=1)


class WStream:
    def __init__(self, e):
        self.e = e
        self.units = [(k, 4*q + i) for q in range(7) for k in "gu" for i in range(4)] + [("d", i) for i in range(56)]
        self.next = 0; self.limit = 0; self.rlimit = 0
        self.free = [("hi", i, None) for i in range(14)] + [("lo", i, None) for i in range(14)]
        self.banned = set()
        self.pend = []
        self.pace = 96; self.lag = 12; self.tnext = 0; self.seen = 0
        self.grp = None
        self.cur = {"w": 0, "d": 0}
        self.rtok = {}
        self.skip = ''
        self.hload = None; self.hn = [0]*4; self.hok = set(); self.hfree = set(); self.rank = {}; self.lead = 4; self.lagw = 9999; self.rot = 0
    def dest(self, kind, i):
        if kind == "g": return [a_(4*i, 2), a_(4*i+2, 2)]
        if kind == "u": return [a_(112+4*i, 2), a_(112+4*i+2, 2)]
        return [self.dreg(i >> 2, 2*(i & 1) + j, i & 2, 2) for j in range(2)]
    @staticmethod
    def dreg(kk, nt, off=0, n=4):
        if kk < 6: return v(160 + 16*kk + 4*nt + off, n)
        if kk < 8: return a_(224 + 16*(kk-6) + 4*nt + off, n)
        return a_(112 + 16*(kk-8) + 4*nt + off, n)
    def pick(self):
        kind, i = self.units[self.next]
        ok = [s for s in self.free if s[0] not in self.banned]
        if kind == "d":
            if i & 1: return next(s for s in ok if (s[0], s[1] - 1) == self.pend[-1][1:3])
            have = {s[:2] for s in ok}
            ok = [s for s in ok if s[1] % 2 == 0 and (s[0], s[1] + 1) in have]
        return ok[0] if ok else None
    def can_dma(self):
        return self.next < min(self.limit, len(self.units)) and self.pick() is not None
    def head(self):
        p = self.pend
        if not p or p[0][0] >= self.rlimit: return None
        if p[0][0] >= 56 and p[0][0] % 2 == 0: return p[1][3] if len(p) > 1 else None
        return p[0][3]
    def dma(self):
        e = self.e
        kind, i = self.units[self.next]
        slot = self.pick()
        self.free.remove(slot)
        reg, idx, tok = slot
        e.wait(tok)
        g = self.grp
        k = i - g[1] if g and g[0] == kind else -1
        kmax = 4 if (kind != "d" or k < 0) else (4, 1, 2, 1)[g[1] & 3]
        if not (0 < k < kmax and g[2] == reg and idx - g[3] == k):
            k = 0
            self.grp = (kind, i, reg, idx)
            key, vr = ("d", "v19") if kind == "d" else ("w", "v10")
            src = 896 * (128*(i >> 3) + 32*((i >> 2) & 1) + 4*(i & 2) + 16*(i & 1)) if kind == "d" else 57344 * i
            if src != self.cur[key]:
                e(f"v_add_u32 {vr}, {(src - self.cur[key]) & 0xffffffff:#x}, {vr}")
                self.cur[key] = src
            base, off = {"lo": (sLO, 0), "hi": (sLO, L_HI), "ext": (sEXT, 0)}[reg]
            e(f"s_add_u32 m0, {base}, {off + 1024*idx}")
        vr, srd, cs = {"g": ("v10", SRD_WG, sKW), "u": ("v10", SRD_WU, sKW), "d": ("v19", SRD_WD, sKD)}[kind]
        if kind in self.skip: t = e.op("s_nop 0") or type("T", (), dict(done=True, kind="vm", seq=0))(); self.tnext = e.t + self.pace
        else: t = e.op(f"buffer_load_dwordx4 {vr}, {srd}, {cs[k]} offen offset:{1024*k} lds")
        self.pend.append((self.next, reg, idx, t))
        self.next += 1
    def read(self):
        e = self.e
        e.wait(self.head())
        n, reg, idx, t = self.pend.pop(0)
        kind, i = self.units[n]
        vb = {"hi": "v20", "ext": "v21"}[reg] if kind == "d" else {"lo": "v16", "hi": "v17", "ext": "v18"}[reg]
        for j, d_ in enumerate(self.dest(kind, i)):
            off = 1024*(idx & ~1) + 512*(i & 1) + 32*j if kind == "d" else 1024*idx + 256*j
            tok = e.op(f"ds_read_b64_tr_b16 {d_}, {vb} offset:{off}")
        self.rtok[n] = tok
        if kind != "d": self.free.append((reg, idx, tok))
        elif i & 1: self.free += [(reg, idx - 1, tok), (reg, idx, tok)]
    def step(self):
        cand = [(self.rank[T, k], T) for T, k in enumerate(self.hn) if k < 14 and T in self.hok and (14*T + k) % 28 in self.hfree
                and (T < 2 or self.hn[T-2] > k)]
        if self.can_dma(): cand.append((self.rank.get((0, (self.next - 56) >> 2), -1) - self.lead, -1))
        if not cand: return False
        T = min(cand)[1]
        if T < 0: self.dma()
        else: self.hissue(T)
        return True
    def hissue(self, T):
        self.hfree.remove((14*T + self.hn[T]) % 28)
        self.hload(T, self.hn[T]); self.hn[T] += 1
    def aged(self):
        h = self.head()
        if h is None: return False
        lag = self.lag if self.pend[0][0] >= 56 else min(self.lag, self.lagw)
        return h.done or self.e.t - h.t >= lag
    def urgent(self): return False
    def hneed(self, T, k):
        assert T in self.hok
        while self.hn[T] <= k: self.hissue(T)
    def need(self, kind, i):
        n = self.units.index((kind, i))
        if n not in self.rtok: self.flush(n + 1)
        self.e.wait(self.rtok[n])
    def drain_done(self):
        with self.e.atomic():
            while self.head() and self.head().done: self.read()
    def drain_keep(self, k):
        with self.e.atomic():
            while len(self.pend) > k and self.head(): self.read()
    def burst(self, n):
        with self.e.atomic():
            for _ in range(n):
                if self.can_dma(): self.dma()
    def flush(self, upto):
        with self.e.atomic():
            self.limit = max(self.limit, upto); self.rlimit = max(self.rlimit, upto)
            while self.next < upto or (self.pend and self.pend[0][0] < upto):
                if self.next < upto and self.can_dma(): self.dma()
                else: self.read()


def vm(f):
    f.vm = True
    return f


def span(ops, first, last):
    n = len(ops)
    return [(first, first + ((last - first) * (k + 1)) // n, f) for k, f in enumerate(ops)]


def sched(e, ws, mm, chains, reserve=8):
    chains = [list(c) for c in chains]
    tnext = e.t
    for i, m in enumerate(mm):
        m()
        nvm = e.nvm
        while True:
            heads = sorted((c for c in chains if c and c[0][0] <= i), key=lambda c: c[0][1])
            room = e.mfree - e.t - reserve
            forced = [c for c in heads if c[0][1] <= i]
            due = e.t >= tnext and e.nvm == nvm
            vmh = [c for c in heads if getattr(c[0][2], "vm", False)]
            oth = [c for c in heads if not getattr(c[0][2], "vm", False)]
            n0 = e.nvm
            if forced: forced[0].pop(0)[2]()
            elif room < 4: break
            elif due and vmh and not ws.urgent(): vmh[0].pop(0)[2]()
            elif due and ws.step(): pass
            elif room >= 8 and ws.aged(): ws.read()
            elif oth: oth[0].pop(0)[2]()
            else: break
            if e.nvm > n0: tnext = max(tnext, e.t - ws.pace) + ws.pace * (e.nvm - n0)
    assert not any(chains)


class Gen:
    def __init__(self, stop=99, diag=False, pts=None, **opt):
        self.e = Emit()
        self.opt = opt = {**TUNED, **opt}
        self.e.at = list(opt.get("at", []))
        if opt.get("rt"): self.e.atop = "s_memrealtime"
        mid = (pts or "kv,kvin,a1st,g1go,g1end,g2l").split(",")
        self.pts = ["start"] + mid + [None] * (6 - len(mid))
        self.stop = stop
        self.diag = diag
        self.tail = []
        self.in_helper = False
        self.clk = "s_memtime" if opt.get("cyc") else "s_memrealtime"

    def stamp(self, name):
        if name is not None and name == self.opt.get("probe") and not self.in_helper: self.e("s_memrealtime s[92:93]")
        if self.diag and name is not None and name in self.pts:
            k = self.pts.index(name)
            r = 44 if k == 0 else STAMP0 + 2*(k-1)
            self.e(f"{self.clk} s[{r}:{r+1}]")

    def srd(self, srd, off, nbytes):
        e = self.e
        b = int(srd[2:srd.index(":")])
        e(f"s_load_dwordx2 s[{b}:{b+1}], s[0:1], {off}")
        e(f"s_mov_b32 s{b+2}, {nbytes}")
        e(f"s_mov_b32 s{b+3}, 0x20000")

    def finish(self):
        e = self.e
        e.hook = None
        if self.opt.get("probe") and not self.in_helper:
            e.waitall()
            if self.opt["probe"] == "end": e("s_memrealtime s[92:93]\ns_waitcnt lgkmcnt(0)")
            e("s_sub_u32 s92, s92, s90\ns_lshl_b32 s92, s92, 2\ns_add_u32 s92, s92, 4000")
            if self.opt.get("only") is not None:
                e(f"s_cmp_eq_u32 s2, {self.opt['only']}\ns_cselect_b32 s92, s92, 0")
            e.label("L_pad")
            e("s_memrealtime s[94:95]\ns_waitcnt lgkmcnt(0)\ns_sub_u32 s94, s94, s90\ns_cmp_lt_u32 s94, s92\ns_cbranch_scc1 L_pad")
        if self.diag:
            e.waitall()
            e(f"{self.clk} s[62:63]")
            e(f"s_lshl_b32 {sT[0]}, s2, 2")
            e(f"s_add_u32 {sT[0]}, {sT[0]}, {sW}")
            e(f"s_lshl_b32 {sT[0]}, {sT[0]}, 7")
            e(f"s_add_u32 {sT[0]}, {sT[0]}, {WS_STAMP}")
            e(f"v_mov_b32 v1, {sT[0]}")
            e("s_waitcnt lgkmcnt(0)")
            for k, r in enumerate([44] + [STAMP0 + 2*i for i in range(6)] + [62, 3]):
                e(f"v_mov_b32 v2, s{r}")
                e(f"buffer_store_dword v2, v1, {SRD_WS}, 0 offen offset:{4*k}")
        e("s_endpgm")

    def tagcheck(self, quads):
        e = self.e
        for n, q in enumerate(quads):
            dst = "vcc" if n == 0 else sC[(n - 1) % 4]
            e(f"v_cmp_ne_u64 {dst}, {TAG}, {v(q+2,2)}")
            if n >= 2: e(f"s_or_b64 vcc, vcc, {sC[(n-2)%4]}")
        if len(quads) > 1: e(f"s_or_b64 vcc, vcc, {sC[(len(quads)-2)%4]}")

    def flag(self, so, off=0):
        e = self.e
        skip = e.newlabel("noflag")
        with e.atomic():
            e(f"s_cmp_lg_u32 {sW}, 0")
            e(f"s_cbranch_scc1 {skip}")
            e(f"buffer_store_dwordx4 v[12:15], v27, {SRD_WS}, {so} offen offset:{off} sc1")
            e.vm.pop()
            e.label(skip)

    def poll(self, loads, check, nap=1, spin=SPIN):
        e = self.e
        top, out = e.newlabel("poll"), e.newlabel("pollend")
        e(f"s_mov_b32 {sSPIN}, {spin}")
        e.label(top)
        loads()
        e.waitall(lg=False)
        check()
        e(f"s_cbranch_vccz {out}")
        if nap: e(f"s_sleep {nap}")
        e(f"s_sub_u32 {sSPIN}, {sSPIN}, 1")
        e(f"s_cbranch_scc0 {top}")
        e.label(out)

    def checked(self, loads, check, cnt=None, spin=SPIN):
        e = self.e
        stub, back = e.newlabel("retry"), e.newlabel("back")
        with e.atomic():
            check()
            if not self.opt.get("nosync"): e(f"s_cbranch_vccnz {stub}")
            e.label(back)
        def emit_stub():
            e.forget()
            e.label(stub)
            e("s_nop 7")
            if self.diag and cnt is not None: e(f"s_bitset1_b32 s3, {cnt}")
            self.poll(loads, check, spin=spin)
            e(f"s_branch {back}")
        self.tail.append(emit_stub)

    def bfround(self, r):
        e = self.e
        e(f"v_cvt_pk_bf16_f32 {v(r)}, {v(r)}, {v(r)}")
        e(f"v_lshlrev_b32 {v(r)}, 16, {v(r)}")

    def stats_finish(self, rs, rq, neg):
        e = self.e
        e(f"v_mul_f32 {v(rs)}, 0x3b124925, {v(rs)}")
        e(f"v_mul_f32 {v(rq)}, 0x3b124925, {v(rq)}")
        e(f"v_fma_f32 {v(rq)}, -{v(rs)}, {v(rs)}, {v(rq)}")
        e(f"v_max_f32 {v(rq)}, 0, {v(rq)}")
        self.bfround(rq)
        e(f"v_add_f32 {v(rq)}, 0x3727c5ac, {v(rq)}")
        self.bfround(rq)
        e(f"v_sqrt_f32 {v(rq)}, {v(rq)}")
        e(f"v_cvt_pk_bf16_f32 {v(rs)}, {'-' if neg else ''}{v(rs)}, {v(rq)}")

    def ln1_addr(self, va, dst):
        e = self.e
        e(f"v_lshrrev_b32 {v(va)}, 5, v0")
        e(f"s_lshl_b32 {sT[0]}, {sLN}, 3")
        e(f"v_add_u32 {v(va)}, {sT[0]}, {v(va)}")
        e(f"v_mul_u32_u24 {v(va)}, 896, {v(va)}")
        e(f"v_and_b32 {v(dst)}, 31, v0")
        e(f"v_lshl_add_u32 {v(va)}, {v(dst)}, 4, {v(va)}")
        e(f"v_cmp_gt_u32 vcc, 28, {v(dst)}")
        e(f"v_mov_b32 {v(dst)}, {BIG}")
        e(f"v_cndmask_b32 {v(va)}, {v(dst)}, {v(va)}, vcc")

    def ln1_loads(self, va, dst):
        e = self.e
        e.op(f"buffer_load_dwordx4 {v(dst,4)}, {v(va)}, {SRD_X}, 0 offen")
        return e.op(f"buffer_load_dwordx4 {v(dst+4,4)}, {v(va)}, {SRD_X}, 0 offen offset:448")

    def ln1_stats(self, src, g):
        e = self.e
        s_, q_ = g, g + 1
        e(f"s_mov_b32 {sT[1]}, 0x3f803f80")
        e(f"v_mov_b32 {v(s_)}, 0")
        e(f"v_mov_b32 {v(q_)}, 0")
        for i in range(8):
            e(f"v_dot2c_f32_bf16 {v(s_)}, {sT[1]}, {v(src+i)}")
            e(f"v_dot2c_f32_bf16 {v(q_)}, {v(src+i)}, {v(src+i)}")
        for ctl in ("quad_perm:[1,0,3,2]", "quad_perm:[2,3,0,1]", "row_half_mirror", "row_mirror"):
            e(f"v_add_f32_dpp {v(s_)}, {v(s_)}, {v(s_)} {ctl} row_mask:0xf bank_mask:0xf")
            e(f"v_add_f32_dpp {v(q_)}, {v(q_)}, {v(q_)} {ctl} row_mask:0xf bank_mask:0xf")
        e(f"v_mov_b32 {v(src)}, {v(s_)}")
        e(f"v_mov_b32 {v(src+1)}, {v(q_)}")
        e(f"v_permlane16_swap_b32 {v(s_)}, {v(src)}")
        e(f"v_permlane16_swap_b32 {v(q_)}, {v(src+1)}")
        e(f"v_add_f32 {v(s_)}, {v(s_)}, {v(src)}")
        e(f"v_add_f32 {v(q_)}, {v(q_)}, {v(src+1)}")
        self.stats_finish(s_, q_, False)
        e(f"v_lshrrev_b32 {v(q_)}, 5, v0")
        e(f"v_lshlrev_b32 {v(q_)}, 2, {v(q_)}")
        e(f"v_add_u32 {v(q_)}, {L_S1}, {v(q_)}")
        tw = e.op(f"ds_write_b32 {v(q_)}, {v(s_)}")
        e(f"v_and_b32 {v(src)}, 3, v0")
        e(f"v_lshlrev_b32 {v(src)}, 3, {v(src)}")
        e(f"v_add_u32 {v(src)}, {L_S1}, {v(src)}")
        return lambda: e.op(f"ds_read_b64 v[12:13], {v(src)}")

    def flag_regs(self):
        e = self.e
        e("v_mov_b32 v14, s46")
        e("v_mov_b32 v15, s47")
        e("v_lshrrev_b32 v27, 2, v0")
        e("v_lshlrev_b32 v27, 25, v27")
        e("v_and_or_b32 v27, v24, 63, v27")
        e(f"s_lshl_b32 {sLN}, {sLN}, 6")
        e(f"s_add_u32 {sLN}, {sLN}, {WS_ST1}")

    def tr_addr(self, dst, tmp, hmul):
        e = self.e
        e(f"v_bfe_u32 {v(dst)}, v0, 2, 2")
        e(f"v_bfe_u32 {v(tmp)}, v0, 5, 1")
        e(f"v_mad_u32_u24 {v(dst)}, {v(tmp)}, {hmul}, {v(dst)}")
        e(f"v_lshlrev_b32 {v(dst)}, 6, {v(dst)}")
        e(f"v_bfe_u32 {v(tmp)}, v0, 4, 1")
        e(f"v_lshl_add_u32 {v(dst)}, {v(tmp)}, 5, {v(dst)}")
        e(f"v_and_b32 {v(tmp)}, 3, v0")
        e(f"v_lshl_add_u32 {v(dst)}, {v(tmp)}, 3, {v(dst)}")

    def unit_addr(self, dst, tmp, rowbytes):
        e = self.e
        e(f"v_bfe_u32 {v(dst)}, v0, 2, 3")
        e(f"v_mul_u32_u24 {v(dst)}, {rowbytes}, {v(dst)}")
        e(f"v_bfe_u32 {v(tmp)}, v0, 5, 1")
        e(f"v_lshl_add_u32 {v(dst)}, {v(tmp)}, 6, {v(dst)}")
        e(f"v_and_b32 {v(tmp)}, 3, v0")
        e(f"v_lshl_add_u32 {v(dst)}, {v(tmp)}, 4, {v(dst)}")

    def touch_small(self, va):
        e = self.e
        e(f"s_lshl_b32 {sT[0]}, s2, 2")
        e(f"s_add_u32 {sT[0]}, {sT[0]}, {sW}")
        e(f"s_mul_i32 {sT[0]}, {sT[0]}, 384")
        e(f"v_bfe_u32 {v(va)}, v0, 4, 2")
        e(f"v_min_u32 {v(va)}, 2, {v(va)}")
        e(f"v_lshl_add_u32 {v(va)}, {v(va)}, 7, {sT[0]}")
        e.op(f"buffer_load_dword v1, {v(va)}, {SRD_WS}, 0 offen")

    def load_tag(self):
        e = self.e
        e(f"s_load_dwordx2 {TAG}, s[16:17], {WS_EPOCH}")

    def make_tag(self):
        e = self.e
        e("s_add_u32 s46, s46, 0x7f4a7c15")
        e("s_addc_u32 s47, s47, 0x9e3779b9")

    def build(self):
        e = self.e
        e("s_cmp_ge_u32 s2, 256")
        e("s_cbranch_scc1 L_exit")
        self.stamp("entry")
        if self.opt.get("probe"): e("s_memrealtime s[90:91]")
        self.srd(SRD_X, 0, 1835008)
        self.srd(SRD_WS, 112, WS_SIZE)
        e("s_getpc_b64 s[44:45]")
        e(f"s_bfe_u32 {sT[0]}, s2, 0x30003")
        e(f"s_lshl_b32 {sT[0]}, {sT[0]}, 12")
        e(f"v_lshl_add_u32 v1, v0, 4, {sT[0]}")
        e("v_min_u32 v1, L_end - L_pc - 4, v1")
        e.label("L_pc")
        e.op("global_load_dword v1, v1, s[44:45]")
        e(f"s_and_b32 {sX}, s2, 7")
        e(f"s_lshr_b32 {sT[0]}, s2, 3")
        e(f"s_mul_i32 {sJQ}, {sT[0]}, 37")
        e(f"s_lshr_b32 {sJQ}, {sJQ}, 8")
        e(f"s_mul_i32 {sJR}, {sJQ}, 7")
        e(f"s_sub_u32 {sJR}, {sT[0]}, {sJR}")
        e(f"s_lshl_b32 {sLN}, {sX}, 5")
        e(f"s_add_u32 {sLN}, {sLN}, {sT[0]}")
        e("v_lshrrev_b32 v2, 6, v0")
        e(f"s_mov_b32 {sMASK}, 0xffff0000")
        e(f"v_readfirstlane_b32 {sW}, v2")
        if self.diag:
            for k in range(2 if "entry" in self.pts else 0, 12): e(f"s_mov_b32 s{STAMP0+k}, 0")
            e("s_mov_b32 s3, 0")
        e(f"s_cmp_ge_u32 {sT[0]}, 28")
        e("s_cbranch_scc1 L_helper")
        vm0 = list(e.vm)
        self.main()
        e.forget(); e.vm = list(vm0)
        for t in vm0: t.done = False
        e.label("L_helper")
        self.in_helper = True
        self.helper()
        for t in self.tail: t()
        e.label("L_exit")
        e("s_endpgm")
        e.label("L_end")
        return e.text()

    def main(self):
        e = self.e
        o = self.opt.get
        def unpack(dst, src, hi):
            return f"v_and_b32 {v(dst)}, {sMASK}, {v(src)}" if hi else f"v_lshlrev_b32 {v(dst)}, 16, {v(src)}"
        self.srd(SRD_K, 8, 1835008)
        self.srd(SRD_V, 16, 1835008)
        self.srd(SRD_SH, 24, 3584)
        e(f"s_lshl_b32 {sI}, {sX}, 2")
        e(f"s_add_u32 {sI}, {sI}, {sJQ}")
        e(f"s_lshl_b32 {sD0}, {sJR}, 5")
        e(f"s_add_u32 {sD0}, {sD0}, {sI}")
        e(f"s_lshl_b32 {sD0}, {sD0}, 1")
        e(f"s_mul_i32 {sT[0]}, {sI}, 57344")
        e(f"s_lshl_b32 {sT[1]}, {sJR}, 7")
        e(f"s_add_u32 {sT[0]}, {sT[0]}, {sT[1]}")
        vKo, vKh, vSh, vLn, vSs, vRk, vRh, vTw, vP1, vP2 = range(232, 242)
        vGs = 31
        e(f"s_mul_i32 {sLO}, {sW}, 14336")
        e(f"s_add_u32 {sT[0]}, {sT[0]}, {sLO}")
        e(f"v_bfe_u32 {v(vKo)}, v0, 3, 3")
        e(f"v_and_b32 v2, 4, {v(vKo)}")
        e(f"v_cmp_lt_u32 vcc, 4, {v(vKo)}")
        e(f"v_mul_u32_u24 {v(vKo)}, 896, {v(vKo)}")
        e("v_and_b32 v3, 7, v0")
        e("v_xor_b32 v3, v3, v2")
        e(f"v_lshl_add_u32 v3, v3, 4, {sT[0]}")
        e(f"v_add_u32 {v(vKo)}, {v(vKo)}, v3")
        e(f"v_subrev_u32 {v(vKh)}, 7168, {v(vKo)}")
        e(f"v_mov_b32 v3, {BIG}")
        e(f"v_cndmask_b32 {v(vKh)}, v3, {v(vKh)}, vcc")
        e(f"v_bfe_u32 {v(vSh)}, v0, 2, 4")
        e(f"s_lshl_b32 {sT[1]}, {sJR}, 9")
        e(f"v_lshl_add_u32 {v(vSh)}, {v(vSh)}, 5, {sT[1]}")
        self.srd(SRD_SSM, 32, 1835008)
        e("s_load_dwordx2 s[88:89], s[0:1], 40")
        self.srd(SRD_WG, 56, 1605632)
        self.srd(SRD_WU, 64, 1605632)
        self.srd(SRD_WD, 72, 1605632)
        self.srd(SRD_OUT, 96, 1835008)
        self.srd("s[72:75]", 88, 2408448)
        K, V_, SH, X, SS, LR = 32, 46, 56, 64, 72, 84
        e("v_and_b32 v24, 63, v0")
        e("v_lshlrev_b32 v24, 4, v24")
        e(f"s_lshl_b32 {sT[1]}, {sD0}, 1")
        e(f"s_add_u32 {sT[2]}, {sT[1]}, {sW}")
        e(f"s_lshl_b32 {sT[2]}, {sT[2]}, 11")
        e(f"v_add_u32 {v(vSs)}, {sT[2]}, v24")
        e(f"s_and_b32 {sT[3]}, {sW}, 1")
        e(f"s_lshl_b32 {sT[3]}, {sT[3]}, 2")
        e(f"s_sub_u32 {sT[2]}, {sT[2]}, {sT[3]}")
        e(f"s_movk_i32 {sT[3]}, 7168")
        e(f"s_add_u32 m0, {sLO}, 1152")
        self.stamp("pre")
        e("s_waitcnt lgkmcnt(0)")
        self.stamp("start")
        e.op(f"buffer_load_dwordx4 {v(vKo)}, {SRD_K}, 0 offen lds")
        e(f"s_add_u32 m0, {sLO}, 2304")
        self.load_tag()
        e.op(f"buffer_load_dwordx4 {v(vKo)}, {SRD_K}, {sT[3]} offen lds")
        e(f"s_mov_b32 m0, {sLO}")
        e(f"s_load_dword {sDV}, s[88:89], {sT[1]}")
        e.op(f"buffer_load_dwordx4 {v(vKh)}, {SRD_K}, 0 offen lds")
        e(f"s_add_u32 m0, {sLO}, 3456")
        e.op(f"buffer_load_dwordx4 {v(SH,4)}, {v(vSh)}, {SRD_SH}, 0 offen")
        tK = e.op(f"buffer_load_dwordx4 {v(SH+4,4)}, {v(vSh)}, {SRD_SH}, 0 offen offset:16")
        e.op(f"buffer_load_dwordx4 {v(vKo)}, {SRD_V}, 0 offen lds")
        e(f"s_add_u32 m0, {sLO}, 4608")
        e(f"s_load_dword s76, s[24:25], {sT[2]}")
        tV = e.op(f"buffer_load_dwordx4 {v(vKo)}, {SRD_V}, {sT[3]} offen lds")
        tk = {}
        def ld_x():
            e(f"s_add_u32 m0, {sLO}, 5760")
            e(f"s_movk_i32 {sT[0]}, 7168")
            e.op(f"buffer_load_dwordx4 {v(vKo)}, {SRD_X}, 0 offen lds")
            e(f"s_add_u32 m0, {sLO}, 6912")
            e.op(f"buffer_load_dwordx4 {v(vKo)}, {SRD_X}, {sT[0]} offen lds")
            tk["X"] = self.ln1_loads(vLn, LR)
        def ld_s():
            e.op(f"buffer_load_dwordx4 {v(SS,4)}, {v(vSs)}, {SRD_SSM}, 0 offen")
            tk["S"] = e.op(f"buffer_load_dwordx4 {v(SS+4,4)}, {v(vSs)}, {SRD_SSM}, 0 offen offset:1024")
        def touch_m(): tk["M"] = e.op(f"buffer_load_dword v1, v22, s[72:75], 0 offen")
        def touch_s(): self.touch_small(23)
        def touch_prep():
            e("v_and_b32 v22, 63, v0")
            e("v_min_u32 v22, 13, v22")
            e("v_lshlrev_b32 v22, 7, v22")
            e(f"s_lshr_b32 {sT[0]}, s2, 3")
            e(f"s_lshl_b32 {sT[0]}, {sT[0]}, 2")
            e(f"s_add_u32 {sT[0]}, {sT[0]}, {sW}")
        def touch_w():
            touch_prep()
            e(f"s_lshr_b32 {sT[1]}, {sX}, 1")
            e(f"s_lshl_b32 {sT[0]}, {sT[0]}, 2")
            e(f"s_add_u32 {sT[0]}, {sT[0]}, {sT[1]}")
            e(f"s_lshl_b32 {sT[0]}, {sT[0]}, 1")
            e(f"s_and_b32 {sT[1]}, {sX}, 1")
            e(f"s_add_u32 {sT[0]}, {sT[0]}, {sT[1]}")
            e(f"s_mul_i32 {sT[0]}, {sT[0]}, 1792")
            e.op(f"buffer_load_dword v1, v22, {SRD_WG}, {sT[0]} offen")
            e.op(f"buffer_load_dword v1, v22, {SRD_WU}, {sT[0]} offen")
        def touch_d():
            touch_prep()
            e(f"s_lshl_b32 {sT[0]}, {sT[0]}, 3")
            e(f"s_add_u32 {sT[0]}, {sT[0]}, {sX}")
            e(f"s_mul_i32 {sT[0]}, {sT[0]}, 1792")
            e.op(f"buffer_load_dword v1, v22, {SRD_WD}, {sT[0]} offen")
        def place(pos):
            for key, dflt, f in (("ps", 0, ld_s), ("px", 1, ld_x), ("pm", 1, touch_m), ("pt", 0, touch_s), ("pw", 3, touch_w), ("pd", 3, touch_d)):
                if o(key, dflt) == pos: f()
        place(6)
        self.stamp("ldiss")
        self.ln1_addr(vLn, LR)
        if o("pm", 5) != 9:
            e("v_bfe_u32 v22, v0, 2, 4")
            e(f"v_min_u32 v22, {o('pmn', 5)}, v22")
            e(f"v_lshl_add_u32 v22, v22, 3, {sX}")
            e("v_subrev_u32 v23, 21, v22")
            e("v_cmp_gt_u32 vcc, 7, v23")
            e("v_cndmask_b32 v25, 0, 14, vcc")
            e("v_cmp_gt_u32 vcc, 14, v23")
            e("v_cndmask_b32 v23, 0, -7, vcc")
            e("v_add3_u32 v22, v22, v23, v25")
            e("v_min_u32 v22, 41, v22")
            e("v_and_b32 v23, 3, v0")
            e(f"s_lshr_b32 {sT[0]}, s2, 3")
            e(f"s_lshl_b32 {sT[0]}, {sT[0]}, 2")
            e(f"s_add_u32 {sT[0]}, {sT[0]}, {sW}")
            e(f"s_mul_i32 {sT[0]}, {sT[0]}, {4*5376}")
            e("v_mul_u32_u24 v23, 5376, v23")
            e("v_lshl_add_u32 v22, v22, 7, v23")
            e(f"v_add_u32 v22, {sT[0]}, v22")
        G, GS = 128, 92
        place(0)
        e(f"s_lshl_b32 {sT[1]}, {sW}, 12")
        e(f"v_add_u32 v9, {sT[1]}, v24")
        e("v_bfe_u32 v2, v0, 2, 4")
        e("v_and_b32 v3, 3, v0")
        e(f"v_mul_u32_u24 {v(vGs)}, {2*PP}, v2")
        e(f"v_lshl_add_u32 {v(vGs)}, v3, 4, {v(vGs)}")
        e("v_mul_u32_u24 v10, 3584, v2")
        e("v_lshl_add_u32 v10, v3, 4, v10")
        e(f"v_mul_u32_u24 {v(vP1)}, 4256, v3")
        e("v_min_u32 v4, 4, v2")
        e(f"v_lshl_add_u32 {v(vP1)}, v4, 4, {v(vP1)}")
        e(f"v_add_u32 {v(vP1)}, {L_TK}, {v(vP1)}")
        e("v_lshlrev_b32 v2, 3, v2")
        for dst, g1 in ((vRk, "v_add_u32 v4, 2, v3"), (vRh, "v_add_u32 v4, 1, v3")):
            e(g1)
            e("v_and_b32 v5, 1, v4")
            e("v_lshrrev_b32 v4, 1, v4")
            e("v_mul_u32_u24 v5, 576, v5")
            e("v_mul_u32_u24 v4, 1152, v4")
            e("v_xor_b32 v5, v5, v2")
            e(f"v_add3_u32 {v(dst)}, v4, v5, {sLO}")
        e(f"s_mul_i32 {sT[0]}, {sJR}, {32*PP}")
        e(f"s_lshl_b32 {sT[1]}, {sI}, 8")
        e(f"s_lshl_b32 {sT[2]}, {sW}, 6")
        e(f"s_add_u32 {sT[1]}, {sT[1]}, {sT[2]}")
        e(f"s_add_u32 {sT[0]}, {sT[0]}, {sT[1]}")
        for c in range(4): e(f"s_add_u32 {sT[4+c]}, {sT[0]}, {WS_KVG + PP*(c>>1) + 8192*(c&1)}")
        place(5)
        e(f"s_lshr_b32 {sRB}, {sX}, 1")
        e(f"s_lshl_b32 {sRB}, {sRB}, 2")
        e(f"s_add_u32 {sRB}, {sRB}, {sJQ}")
        e(f"s_and_b32 {sFS}, {sX}, 1")
        e(f"s_mul_i32 {sFS}, {sFS}, 7")
        e(f"s_add_u32 {sFS}, {sFS}, {sJR}")
        e(f"s_lshl_b32 {sT[0]}, {sFS}, 8")
        e(f"s_lshl_b32 {sT[1]}, {sW}, 6")
        e(f"s_add_u32 {sT[0]}, {sT[0]}, {sT[1]}")
        e(f"v_add_u32 v10, {sT[0]}, v10")
        self.unit_addr(19, 2, 896)
        e(f"s_lshr_b32 {sT[0]}, {sW}, 1")
        e(f"s_mul_i32 {sT[0]}, {sT[0]}, {896*896}")
        e(f"s_and_b32 {sT[1]}, {sW}, 1")
        e(f"s_mul_i32 {sT[1]}, {sT[1]}, {64*896}")
        e(f"s_add_u32 {sT[0]}, {sT[0]}, {sT[1]}")
        e(f"s_lshl_b32 {sT[1]}, {sJR}, 7")
        e(f"s_add_u32 {sT[0]}, {sT[0]}, {sT[1]}")
        e(f"v_add_u32 v19, {sT[0]}, v19")
        e(f"s_mul_i32 {sEXT}, {sW}, 10240")
        e(f"s_add_u32 {sEXT}, {sEXT}, {L_EXT}")
        for k in range(1, 4):
            e(f"s_mov_b32 {sKW[k]}, {56320*k}")
            e(f"s_mov_b32 {sKD[k]}, {(0, 13312, 5120, 18432)[k]}")
        self.tr_addr(11, 2, 8)
        e(f"v_add_u32 v16, {sLO}, v11")
        e(f"v_add_u32 v17, {L_HI}, v16")
        e("v_bfe_u32 v2, v0, 4, 1")
        e("v_mul_u32_u24 v2, 224, v2")
        e("v_bfe_u32 v3, v0, 5, 1")
        e("v_lshl_add_u32 v2, v3, 9, v2")
        e(f"v_add_u32 v18, {sEXT}, v11")
        e("v_add_u32 v20, v17, v2")
        e("v_add_u32 v21, v18, v2")
        e(f"s_lshr_b32 {sT[0]}, {sW}, 1")
        e(f"s_mul_i32 {sT[0]}, {sT[0]}, {8512 - 4096}")
        e(f"s_lshl_b32 {sT[1]}, {sW}, 11")
        e(f"s_add_u32 {sT[0]}, {sT[0]}, {sT[1]}")
        e(f"s_add_u32 {sT[0]}, {sT[0]}, {L_TK + 80}")
        e(f"v_add_u32 {v(vTw)}, {sT[0]}, v24")
        e("v_and_b32 v3, 1, v0")
        e(f"v_mul_u32_u24 {v(vP2)}, 4608, v3")
        e("v_bfe_u32 v2, v0, 1, 5")
        e(f"v_lshl_add_u32 {v(vP2)}, v2, 4, {v(vP2)}")
        e(f"v_add_u32 {v(vP2)}, {L_UR + 4096}, {v(vP2)}")
        for i in range(4): e(f"v_mov_b32 v{96+i}, 0")
        e("v_and_b32 v8, 3, v0")
        e("v_and_b32 v2, v2, v3")
        e("v_add_u32 v8, v8, v2")
        e("v_mul_u32_u24 v8, 1792, v8")
        e("v_mul_u32_u24 v3, 4256, v3")
        e("v_and_b32 v2, 7, v0")
        e("v_or_b32 v2, 1, v2")
        e("v_bfe_u32 v4, v0, 3, 1")
        e("v_lshl_add_u32 v2, v4, 5, v2")
        e("v_bfe_u32 v25, v0, 4, 2")
        e("v_lshl_add_u32 v2, v25, 3, v2")
        e("v_lshlrev_b32 v2, 1, v2")
        e("v_sub_u32 v2, v2, v3")
        sHW, sCH = sT[3], sT[2]
        e(f"s_and_b32 {sHW}, {sW}, 1")
        e(f"s_lshr_b32 {sCH}, {sW}, 1")
        e(f"s_mul_i32 {sT[0]}, {sCH}, 8512")
        e(f"s_lshl_b32 {sT[1]}, {sHW}, 8")
        e(f"s_add_u32 {sT[0]}, {sT[0]}, {sT[1]}")
        e(f"s_add_u32 {sT[0]}, {sT[0]}, {L_TK + 4256 + 2}")
        e(f"v_add_u32 v2, {sT[0]}, v2")
        e("v_lshrrev_b32 v30, 1, v9")
        e(f"v_add_u32 v30, {L_ST}, v30")
        e("v_and_b32 v5, 3, v0")
        e("v_bfe_u32 v6, v0, 2, 2")
        e("v_lshlrev_b32 v4, 4, v5")
        e("v_lshl_add_u32 v5, v6, 3, v5")
        e("v_lshl_add_u32 v4, v6, 10, v4")
        e("v_bfe_u32 v6, v0, 4, 1")
        e("v_bfe_u32 v28, v0, 5, 1")
        e("v_lshl_add_u32 v7, v5, 1, v6")
        e("v_lshl_add_u32 v7, v28, 3, v7")
        e("v_lshl_add_u32 v4, v6, 12, v4")
        e("v_lshl_add_u32 v4, v28, 9, v4")
        e("v_sub_u32 v5, v25, v5")
        e(f"s_mul_i32 {sT[1]}, {sCH}, 4608")
        e(f"s_lshl_b32 {sT[0]}, {sHW}, 8")
        e(f"s_add_u32 {sT[0]}, {sT[0]}, {sT[1]}")
        e(f"s_add_u32 {sT[0]}, {sT[0]}, {L_UR + 2*(2008-1792)}")
        e(f"v_lshl_add_u32 v5, v5, 4, {sT[0]}")
        e(f"s_lshl_b32 {sT[0]}, {sHW}, 10")
        e(f"s_sub_u32 {sT[0]}, {sT[1]}, {sT[0]}")
        e(f"s_add_u32 {sT[0]}, {sT[0]}, {L_UR + 2*(2044-1280)}")
        e("v_lshlrev_b32 v6, 3, v7")
        e(f"v_sub_u32 v6, {sT[0]}, v6")
        e(f"s_lshl_b32 {sT[1]}, {sHW}, 11")
        e(f"s_add_u32 {sT[0]}, {sT[1]}, {L_ST}")
        e(f"v_lshl_add_u32 v7, v7, 4, {sT[0]}")
        e(f"v_add_u32 v28, {L_TK}, v9")
        e(f"v_subrev_u32 v29, {sT[1]}, v28")
        self.stamp("setup")
        e("s_waitcnt lgkmcnt(0)")
        self.stamp("tag")
        e(f"s_lshl_b32 {sT[0]}, {sCH}, 4")
        e(f"s_lshr_b32 {sDV}, {sDV}, {sT[0]}")
        e(f"s_lshl_b32 {sDV}, {sDV}, 16")
        e(f"s_mul_i32 s76, s76, {sHW}")
        e(f"v_mov_b32 {v(SS+8)}, s76")
        e.op(f"ds_write_b128 {v(vP1)}, v[96:99]")
        e.op(f"ds_write_b128 {v(vP2)}, v[96:99]")
        self.make_tag()
        self.flag_regs()
        def go_load(): e.op(f"buffer_load_dwordx4 {v(SH,4)}, v23, {SRD_WS}, 0 offen offset:{WS_GO} sc1")
        if o("go", 1):
            e(f"s_lshl_b32 {sT[0]}, {sX}, 7")
            e("s_cmp_ge_u32 s2, 8")
            e("s_cbranch_scc1 L_nogo")
            self.flag(sT[0], WS_GO)
            e.label("L_nogo")
        place(1)
        WF, KF, AC, VF, PK = 96, 176, 112, 208, 224
        self.stamp("issued")
        e.wait(tK)
        self.stamp("kin")
        kt = [e.op(f"ds_read_b64 {v(K+2*r,2)}, {v(vRh)} offset:{128*(r+1)}") for r in range(3)]
        kt += [e.op(f"ds_read_b64 {v(K+6+2*r,2)}, {v(vRk)} offset:{128*r}") for r in range(4)]
        for c in range(4):
            for j in range(4): e(unpack(WF+4*j+c, SH+2*c+j//2, j & 1))
        for r in range(7):
            e.wait(kt[r])
            for c in range(4): e(unpack(KF+4*r+c, K+2*r+c//2, c & 1))
        for j in (3, 2, 1, 0):
            if j == 1:
                e.wait(tV)
                self.stamp("vin")
                vt_ = [e.op(f"ds_read_b64 {v(V_+2*r,2)}, {v(vRk)} offset:{2304 + 128*r}") for r in range(4)]
            for r in range(4):
                for p in (0, 2):
                    d_, k_, w_ = v(AC+4*r+p, 2), v(KF+4*(r+3-j)+p, 2), v(WF+4*j+p, 2)
                    e(f"v_pk_mul_f32 {d_}, {k_}, {w_}" if j == 3 else f"v_pk_fma_f32 {d_}, {k_}, {w_}, {d_}")
        e.wait(vt_[3])
        def kvstore(c): tk["kst"] = e.op(f"buffer_store_dwordx4 {v(G+4*c,4)}, {v(vGs)}, {SRD_WS}, {sT[4+c]} offen sc1")
        for p in (0, 2):
            for r in range(4):
                for c in (p, p+1): e(unpack(VF+4*r+c, V_+2*r+c//2, c & 1))
                e(f"v_pk_mul_f32 {v(AC+4*r+p,2)}, {v(AC+4*r+p,2)}, {v(VF+4*r+p,2)}")
            for c in (p, p+1):
                e(f"v_cvt_pk_bf16_f32 {v(G+4*c)}, {v(AC+12+c)}, {v(AC+8+c)}")
                e(f"v_cvt_pk_bf16_f32 {v(G+4*c+1)}, {v(AC+4+c)}, {v(AC+c)}")
        self.stamp("kv")
        place(2)
        e.wait(tk["S"])
        self.stamp("sin")
        CB = 96
        e(f"v_readlane_b32 s76, {v(SS+3)}, 63")
        e.op(f"ds_write_b128 {v(vTw)}, {v(SS,4)}")
        e.op(f"ds_write_b128 {v(vTw)}, {v(SS+4,4)} offset:1024")
        e(f"v_mov_b32 {v(SS+9)}, s76")
        for h in range(2):
            for i in range(1, 4): e(f"v_alignbit_b32 {v(CB+4*h+i)}, {v(SS+4*h+i)}, {v(SS+4*h+i-1)}, 16")
            e(f"v_mov_b32_dpp {v(SS+8+h)}, {v(SS+4*h+3)} wave_shr:1 row_mask:0xf bank_mask:0xf")
            e(f"v_alignbit_b32 {v(CB+4*h)}, {v(SS+4*h)}, {v(SS+8+h)}, 16")
            e.op(f"ds_write_b128 {v(vTw)}, {v(CB+4*h,4)} offset:{4256 + 1024*h}")
        sKVG, sFL, sHH, sMOD, sST1, sAS = sP[0], sP[1], sP[2], sP[3], sP[4], sP[5]
        e(f"s_mul_i32 {sT[0]}, {sD0}, {PP//2}")
        e(f"s_lshl_b32 {sT[1]}, {sCH}, 13")
        e(f"s_add_u32 {sKVG}, {sT[0]}, {sT[1]}")
        e(f"s_add_u32 {sKVG}, {sKVG}, {WS_KVG - L_ST}")
        e(f"s_lshl_b32 {sT[1]}, {sCH}, 6")
        e(f"s_add_u32 {sT[0]}, {sT[0]}, {sT[1]}")
        e(f"s_lshl_b32 {sT[1]}, {sHW}, 7")
        e(f"s_add_u32 {sT[0]}, {sT[0]}, {sT[1]}")
        e(f"s_add_u32 {sAS}, {sT[0]}, {WS_KVG}")
        e(f"s_add_u32 {sT[8]}, {sKVG}, 4096")
        e(f"s_add_u32 {sP[6]}, {sAS}, 8192")
        e(f"s_mov_b32 {sST1}, {WS_ST1}")
        e(f"s_lshr_b32 {sMOD}, {sD0}, 2")
        e(f"s_lshl_b32 {sMOD}, {sMOD}, 4")
        e(f"s_add_u32 {sMOD}, {sMOD}, {WS_MOD}")
        e(f"s_mul_i32 {sHH}, {sD0}, {HP//2}")
        e(f"s_lshl_b32 {sT[0]}, {sW}, 10")
        e(f"s_add_u32 {sHH}, {sHH}, {sT[0]}")
        e(f"s_add_u32 {sHH}, {sHH}, {WS_HH}")
        e(f"s_lshl_b32 {sFL}, {sD0}, 5")
        e(f"s_add_u32 {sFL}, {sFL}, {WS_F2}")
        e(f"s_lshl_b32 {sP[7]}, {sD0}, 8")
        e(f"s_add_u32 {sP[7]}, {sP[7]}, {WS_F3}")
        e(f"s_mov_b32 {sT[0]}, 0x05040100")
        e(f"s_mov_b32 {sT[1]}, 0x07060302")
        e("v_and_b32 v23, 7, v0")
        e("v_lshlrev_b32 v23, 7, v23")
        e.wait(tk["X"])
        self.stamp("xin")
        if o("go", 1):
            e(f"s_cmp_lg_u32 {sW}, 0")
            e("s_cbranch_scc1 L_nogo1")
            go_load()
            e.label("L_nogo1")
        for r in range(4): t = e.op(f"ds_read_b64 {v(X+2*r,2)}, {v(vRk)} offset:{4608 + 128*r}")
        e.wait(t)
        for c in range(4):
            e(f"v_perm_b32 {v(G+4*c+2)}, {v(X+2+c//2)}, {v(X+c//2)}, {sT[c&1]}")
            e(f"v_perm_b32 {v(G+4*c+3)}, {v(X+6+c//2)}, {v(X+4+c//2)}, {sT[c&1]}")
        early = o("early", 0)
        if not early: gather = self.ln1_stats(LR, GS)
        if o("nw", 0): e.wait(tk.get("M")); e.waitall(vm=False)
        else: e.waitall()
        if o("go", 1):
            e(f"s_cmp_lg_u32 {sW}, 0")
            e("s_cbranch_scc1 L_nogo2")
            self.checked(go_load, lambda: self.tagcheck([SH]), 28, spin=12)
            e.label("L_nogo2")
        e("s_barrier")
        self.stamp("allin")
        for c in range(4): kvstore(c)
        if early:
            gather = self.ln1_stats(LR, GS)
            e.waitall(vm=False)
            e("s_barrier")
        tg = gather()
        ws = WStream(e)
        ws.pace, ws.lag = o("pace", 64), o("lag", 1300)
        ws.limit, ws.rlimit = 56, 56
        ws.skip = str(o("skip", ""))
        def treg(rl, p, off=0, n=4):
            return v(160 + (rl*8+p)*4 + off, n) if rl < 3 else a_(224 + p*4 + off, n)
        tr = []
        for pp in range(4):
            for p in (2*pp, 2*pp+1):
                for rl in range(4):
                    def f(pp=pp, p=p, rl=rl):
                        of = rl*16 + (p & 1)*128
                        e.op(f"ds_read2_b32 {treg(rl,p,0,2)}, v2 offset0:{of} offset1:{of+1}")
                        e.op(f"ds_read2_b32 {treg(rl,p,2,2)}, v2 offset0:{of+2} offset1:{of+3}")
                        if (p & 1) and rl == 3 and pp < 3: e("v_add_u32 v2, 1024, v2")
                    tr.append(f)
        BR, DA, NB = 64, 96, 6
        XQ, SQ, MQ, EE, GG, RS, MR = 128, 144, 88, 32, 48, 144, 148
        cA, cB, cC, cD = 25, 26, 22, 23
        def sloads():
            for i in range(4): tk["s"] = e.op(f"buffer_load_dwordx4 {v(SQ+4*i,4)}, v9, {SRD_WS}, {sST1} offen offset:{1024*i} sc1")
        def mload(): tk["m"] = e.op(f"buffer_load_dwordx4 {v(MQ,4)}, v8, {SRD_WS}, {sMOD} offen sc1")
        kvat = o("kvat", 32)
        for f in tr[:kvat]: f()
        e.wait(tk["kst"], tg)
        e("s_barrier")
        self.stamp("clr")
        self.flag(sLN)
        place(3)
        ws.burst(o("wc", 0))
        for f in tr[kvat:]: f()
        if o("wcw", 0): e.wait(ws.pend[o("wcw", 0) - 1][3])
        elif o("pw", 3) == 3: e.waitall(lg=False)
        self.stamp("stc")
        sloads()
        mload()
        place(7)
        ws.burst(o("w0", 4))
        ws.drain_done()
        e.wait(tk["s"])
        self.checked(sloads, lambda: self.tagcheck([SQ+4*i for i in range(4)]), 0)
        e("s_barrier")
        self.stamp("toep")
        xt = [e.op(f"buffer_load_dwordx4 {v(XQ+4*t,4)}, v7, {SRD_WS}, {(sKVG, sT[8])[t >> 1]} offen offset:{1024*(t & 1)} sc1") for t in range(4)]
        nrel = [0, 1, 4, 5]
        place(8)
        ws.burst(o("w1", 4))
        for i in range(4):
            q = SQ + 4*i
            for r in range(2):
                e(f"v_and_b32 {v(q+2+r)}, {sMASK}, {v(q+r)}")
                e(f"v_rcp_f32 {v(q+2+r)}, {v(q+2+r)}")
                e(f"v_lshlrev_b32 {v(q+r)}, 16, {v(q+r)}")
                e(f"v_mul_f32 {v(q+r)}, -{v(q+r)}, {v(q+2+r)}")
            e.op(f"ds_write_b64 v30, {v(q+2,2)} offset:{512*i}")
            e.op(f"ds_write_b64 v30, {v(q,2)} offset:{8192+512*i}")
        e.wait(tk["m"])
        self.checked(mload, lambda: self.tagcheck([MQ]), 1)
        e(f"s_bitcmp1_b32 {sD0}, 1")
        e("s_cselect_b64 vcc, -1, 0")
        e(f"v_cndmask_b32 {v(MQ)}, {v(MQ)}, {v(MQ+1)}, vcc")
        e(f"s_lshl_b32 {sT[1]}, {sCH}, 4")
        e(f"v_lshrrev_b32 {v(MQ)}, {sT[1]}, {v(MQ)}")
        e(f"v_lshlrev_b32 {v(MQ)}, 16, {v(MQ)}")
        e(f"v_add_f32 {v(MQ+1)}, 1.0, {v(MQ)}")
        self.bfround(MQ+1)
        e(f"v_mov_b32_dpp {v(cB)}, {v(MQ)} quad_perm:[0,0,0,0] row_mask:0xf bank_mask:0xf")
        e(f"v_mov_b32_dpp {v(cD)}, {v(MQ)} quad_perm:[2,2,2,2] row_mask:0xf bank_mask:0xf")
        e(f"v_mov_b32_dpp {v(cA)}, {v(MQ+1)} quad_perm:[1,1,1,1] row_mask:0xf bank_mask:0xf")
        e(f"v_mov_b32_dpp {v(cC)}, {v(MQ+1)} quad_perm:[3,3,3,3] row_mask:0xf bank_mask:0xf")
        e(f"v_mul_f32 {v(cA)}, {v(cA)}, {v(cD)}")
        e(f"v_mul_f32 {v(cB)}, {v(cB)}, {v(cD)}")
        sA = [f"s{4+i}" for i in range(7)]
        e("v_bfe_u32 v3, v0, 3, 3")
        e(f"v_mul_u32_u24 v3, {PP}, v3")
        e("v_and_b32 v2, 7, v0")
        e("v_lshl_add_u32 v3, v2, 4, v3")
        e(f"s_mul_i32 {sT[5]}, {sW}, 7168")
        e("v_min_u32 v2, 880, v24")
        e(f"s_mul_i32 {sT[0]}, {sW}, 3584")
        e(f"s_add_u32 {sT[0]}, {sT[0]}, {WS_F2}")
        e(f"v_lshl_add_u32 v2, v2, 2, {sT[0]}")
        e(f"s_lshl_b32 {sT[1]}, {sRB}, 9")
        e(f"s_add_u32 {sT[1]}, {sT[1]}, {WS_KVG}")
        e(f"s_mul_i32 {sA[1]}, {sW}, {56*PP}")
        e(f"s_add_u32 {sA[1]}, {sA[1]}, {sT[1]}")
        e(f"s_mul_i32 {sT[0]}, {sCH}, {112*PP - 128}")
        e(f"s_sub_u32 {sA[0]}, {sA[1]}, {sT[0]}")
        e(f"s_mov_b32 s88, {F2B}")
        e(f"s_add_u32 s89, {sFL}, {F2B}")
        ws.drain_keep(o("w1", 4))
        for t in range(4):
            e.wait(xt[t])
            e.op(f"ds_write_b64 v6, {v(XQ+4*t,2)} offset:{512*(5-nrel[t])}")
        e.waitall(vm=False)
        e("s_barrier")
        self.stamp("kvin")
        if self.stop <= 1: return self.finish()

        seq = [(rl, m, range(4 - m)) for rl in range(4) for m in range(4)]
        seq += [(rl, m, range(max(4 - m, 0), 8 - m)) for rl in range(4) for m in range(8)]
        btok = {}
        def bread(n):
            rl, m, _ = seq[n]
            btok[n] = e.op(f"ds_read_b128 {v(BR+4*(n%NB),4)}, v5 offset:{rl*64 + (7-m)*512}")
        mm = []
        for n, (rl, m, ps) in enumerate(seq):
            for p in ps:
                def f(n=n, rl=rl, m=m, p=p, first=(p == ps[0])):
                    if first: e.wait(btok[n])
                    c_ = "0" if (rl == 0 and m == 0) else v(DA+4*(p+m), 4)
                    e(f"v_mfma_f32_16x16x32_bf16 {v(DA+4*(p+m),4)}, {treg(rl,p)}, {v(BR+4*(n%NB),4)}, {c_}")
                    if first and n + NB - 1 < len(seq): bread(n + NB - 1)
                mm.append(f)
        for n in range(NB - 1): bread(n)
        T_ = lambda txt: (lambda: e(txt))
        def eg(t):
            rs, mr = RS + 8*(t & 1), MR + 8*(t & 1)
            def rd():
                e.op(f"ds_read_b128 {v(rs,4)}, v7 offset:{1024*nrel[t]}")
                tk["r"] = e.op(f"ds_read_b128 {v(mr,4)}, v7 offset:{8192+1024*nrel[t]}")
            ops = [rd] + [T_(unpack(EE+4*t+r, XQ+4*t+2+r//2, r & 1)) for r in range(4)] + [lambda: e.wait(tk["r"])]
            for r in range(4):
                g_, x_ = v(GG+4*t+r), v(EE+4*t+r)
                ops += [T_(f"v_fma_f32 {g_}, {x_}, {v(rs+r)}, {v(mr+r)}"), T_(unpack(rs+r, XQ+4*t+1-r//2, not (r & 1))),
                        T_(f"v_fma_f32 {g_}, {g_}, {v(cA)}, {v(cB)}"), T_(f"v_mul_f32 {v(rs+r)}, {sDV}, {v(rs+r)}"),
                        T_(f"v_fmac_f32 {x_}, {g_}, {v(rs+r)}")]
            return ops
        PA, PX = 88, 92
        def red(pi, pk):
            Y = DA + 16*pi
            ops = []
            for t in range(4):
                def f(t=t): tk["rw"] = e.op(f"ds_write_b128 v28, {v(Y+4*t,4)} offset:{1024*t}")
                ops.append(f)
            ops.append(lambda: (e.wait(tk["rw"]), e("s_barrier")))
            for i in range(2):
                def f(i=i):
                    e.op(f"ds_read_b128 {v(Y+8*i,4)}, v29 offset:{1024*i}")
                    tk["rr", i] = e.op(f"ds_read_b128 {v(Y+8*i+4,4)}, v29 offset:{4096 + 1024*i}")
                ops.append(f)
            for i in range(2):
                ops.append(lambda i=i: e.wait(tk["rr", i]))
                y, g, x = Y + 8*i, GG + 8*pi + 4*i, EE + 8*pi + 4*i
                for p in (0, 2):
                    if pk:
                        ops += [T_(f"v_pk_add_f32 {v(y+p,2)}, {v(y+p,2)}, {v(y+4+p,2)}"),
                                T_(f"v_pk_fma_f32 {v(y+p,2)}, {v(g+p,2)}, {v(y+p,2)}, {v(x+p,2)}"),
                                T_(f"v_pk_mul_f32 {v(g+p,2)}, {v(y+p,2)}, {v(cC,2)} op_sel_hi:[1,0]")]
                    else:
                        for q in (p, p+1):
                            ops += [T_(f"v_add_f32 {v(y+q)}, {v(y+q)}, {v(y+4+q)}"),
                                    T_(f"v_fma_f32 {v(y+q)}, {v(g+q)}, {v(y+q)}, {v(x+q)}"),
                                    T_(f"v_mul_f32 {v(g+q)}, {v(y+q)}, {v(cC)}")]
                    ops += [T_(f"v_cvt_pk_bf16_f32 {v(PA+2*i+p//2)}, {v(g+p)}, {v(g+p+1)}"),
                            T_(f"v_cvt_pk_bf16_f32 {v(PX+2*i+p//2)}, {v(y+p)}, {v(y+p+1)}")]
            for q in (PA, PX):
                ops += [T_(f"v_permlane16_swap_b32 {v(q)}, {v(q+2)}"), T_(f"v_permlane16_swap_b32 {v(q+1)}, {v(q+3)}")]
            return ops
        def astore(pi, k):
            tk["as"] = e.op(f"buffer_store_dwordx4 {v((PA, PX)[k],4)}, v4, {SRD_WS}, {(sAS, sP[6])[k]} offen offset:{256*pi} sc1")
        FQ2 = 96
        def fload(h): tk["f"] = e.op(f"buffer_load_dwordx4 {v((FQ2, 52)[h],4)}, v2, {SRD_WS}, {('0', 's88')[h]} offen sc1")
        def fcheck(h):
            e.wait(tk["f"])
            self.checked(lambda: fload(h), lambda: self.tagcheck([(FQ2, 52)[h]]), 2 + 2*h)
        def ban(): ws.banned = {"lo"}
        def flag_a():
            while any(p[1] == "lo" for p in ws.pend): ws.read()
            e.wait(tk["as"], *[t for _, _, t in ws.free])
            e("s_barrier")
            self.flag(sFL)
            self.stamp("fla")
        def hold(): ws.limit = ws.next
        def free_(): ws.limit = 56
        r0, fl0, p0 = o("r0", 68), o("fl0", 96), o("p0", 150)
        ra = red(0, False)
        rw = o("rw", 3)
        c1 = (span(eg(0) + eg(1), 0, 38) + [(42 + rw*i, 42 + rw*i, f) for i, f in enumerate(ra[:5])] + span(ra[5:], 43 + 4*rw, r0) + span([lambda: astore(0, 0), lambda: astore(0, 1)], r0, r0 + 1)
              + span(eg(2) + eg(3) + [T_(f"s_lshl_b32 {sT[0]}, {sCH}, 12"), T_(f"s_add_u32 {sT[0]}, {sT[0]}, {L_X1}"), T_(f"v_add_u32 v28, {sT[0]}, v24")], r0 + 2, 138))
        c2 = (span([ban], o("ban", 60), o("ban", 60)) + span([hold], fl0 - o("hold", 10), fl0 - o("hold", 10))
              + span([flag_a, free_], fl0, fl0) + span([hold], o("h2", 140), o("h2", 140)) + (span([lambda: fload(0)], p0, p0) if p0 < 144 else []))
        sched(e, ws, mm, [c1, c2], 0)
        free_()
        self.stamp("conv")
        def aload1(b, i):
            e(f"s_add_u32 m0, {sT[5]}, {28672*(b & 1) + 1024*i}")
            e(f"s_add_u32 {sWT}, {sA[b >> 1]}, {8*PP*i + (0, 112*PP, 256, 384)[b]}")
            tk["a", b] = e.op(f"buffer_load_dwordx4 v3, {SRD_WS}, {sWT} offen sc1 lds")
            ws.grp = None
        e(f"s_cmp_eq_u32 {sHW}, 0")
        e("s_cbranch_scc0 L_red1")
        save = (list(e.vm), list(e.lg))
        Y = 64
        for hw in (0, 1):
            if hw:
                e.label("L_red1"); e("s_nop 7")
                e.vm, e.lg = list(save[0]), list(save[1])
            keep, send = DA + 16 + 8*hw, DA + 16 + 8*(1 - hw)
            for i in range(2): e.op(f"ds_write_b128 v28, {v(send+4*i,4)} offset:{2048*hw + 1024*i}")
            if p0 == 144: fload(0)
            e.waitall(vm=False)
            e("s_barrier")
            rt = [e.op(f"ds_read_b128 {v(Y+4*i,4)}, v28 offset:{2048*(1 - hw) + 1024*i}") for i in range(2)]
            if p0 == 150: fload(0)
            for i in range(2):
                e.wait(rt[i])
                for p in (0, 2): e(f"v_pk_add_f32 {v(Y+4*i+p,2)}, {v(Y+4*i+p,2)}, {v(keep+4*i+p,2)}")
            if not hw: e("s_branch L_red2")
        e.label("L_red2")
        ws.free += [("ext", i, None) for i in range(10)]
        for p in range(0, 8, 2): e(f"v_pk_fma_f32 {v(Y+p,2)}, {v(GG+8+p,2)}, {v(Y+p,2)}, {v(EE+8+p,2)}")
        for p in range(0, 8, 2): e(f"v_pk_mul_f32 {v(GG+8+p,2)}, {v(Y+p,2)}, {v(cC,2)} op_sel_hi:[1,0]")
        for p in range(0, 8, 2): e(f"v_cvt_pk_bf16_f32 {v(PA+p//2)}, {v(GG+8+p)}, {v(GG+8+p+1)}")
        for p in range(0, 8, 2): e(f"v_cvt_pk_bf16_f32 {v(PX+p//2)}, {v(Y+p)}, {v(Y+p+1)}")
        for k_, q in enumerate((PA, PX)):
            e(f"v_permlane16_swap_b32 {v(q)}, {v(q+2)}")
            e(f"v_permlane16_swap_b32 {v(q+1)}, {v(q+3)}")
            astore(1, k_)
        self.stamp("a1st")
        if self.stop <= 2: return self.finish()

        if p0 > 200: fload(0)
        ws.burst(o("w1b", 2))
        ws.drain_keep(o("w1b", 2) + o("w1k", 4))
        fcheck(0)
        e("s_barrier")
        self.stamp("a0in")
        for i in range(7): aload1(0, i)
        ws.burst(o("w2", 8))
        ws.drain_done()
        real_e, setup = e, []
        e = lambda txt: setup.append(T_(txt))
        sST2, sHS, sOUT, sUT, sF3, sHF = sP[0], "s11", sP[4], sP[5], sT[4], sP[3]
        e(f"s_and_b32 {sHF}, {sX}, 1")
        e("v_min_u32 v26, 96, v24")
        e("v_lshlrev_b32 v26, 10, v26")
        e(f"s_lshl_b32 {sST2}, {sRB}, 11")
        e(f"s_add_u32 {sST2}, {sST2}, {WS_ST2}")
        e(f"s_and_b32 {sT[0]}, {sX}, 6")
        e(f"s_add_u32 {sT[0]}, {sT[0]}, {sCH}")
        e(f"s_lshl_b32 {sT[0]}, {sT[0]}, 2")
        e(f"s_add_u32 {sT[0]}, {sT[0]}, {sJQ}")
        e(f"s_lshl_b32 {sF3}, {sT[0]}, 9")
        e(f"s_add_u32 {sF3}, {sF3}, {WS_F3}")
        e(f"s_mul_i32 {sHS}, {sT[0]}, {HP}")
        e(f"s_lshl_b32 {sT[0]}, {sHF}, 1")
        e(f"s_add_u32 {sT[0]}, {sT[0]}, {sHW}")
        e(f"s_lshl_b32 {sT[0]}, {sT[0]}, 11")
        e(f"s_add_u32 {sHS}, {sHS}, {sT[0]}")
        e(f"s_add_u32 {sHS}, {sHS}, {WS_HH}")
        e(f"s_lshl_b32 {sUT}, {sFS}, 2")
        e(f"s_add_u32 {sUT}, {sUT}, {sW}")
        e(f"s_lshl_b32 {sUT}, {sUT}, 9")
        e(f"s_add_u32 {sUT}, {sUT}, {WS_UT}")
        e("v_bfe_u32 v5, v0, 5, 1")
        e(f"v_mul_u32_u24 v30, {28672 - 512}, v5")
        e("v_add_u32 v30, v30, v24")
        e("v_lshlrev_b32 v22, 8, v5")
        e("v_bfe_u32 v5, v0, 4, 1")
        e("v_lshl_add_u32 v22, v5, 12, v22")
        e("v_and_b32 v5, 15, v0")
        e("v_bfe_u32 v6, v0, 4, 2")
        e("v_lshlrev_b32 v25, 4, v5")
        e("v_add_u32 v22, v22, v25")
        e("v_mul_u32_u24 v8, 272, v5")
        e(f"s_mul_i32 {sT[1]}, {sW}, 4352")
        e(f"v_lshl_add_u32 v6, v6, 4, {sT[1]}")
        e("v_add_u32 v8, v8, v6")
        e("v_lshrrev_b32 v6, 4, v0")
        e(f"s_lshl_b32 {sT[1]}, {sHF}, 6")
        e(f"v_lshl_add_u32 v9, v6, 2, {sT[1]}")
        e("v_mul_u32_u24 v28, 272, v6")
        e("v_add_u32 v28, v28, v25")
        e("v_bfe_u32 v7, v0, 4, 2")
        e("v_lshl_add_u32 v16, v7, 2, v25")
        e("v_and_b32 v29, 3, v0")
        e("v_lshl_add_u32 v29, v7, 2, v29")
        e("v_bfe_u32 v7, v0, 2, 2")
        e("v_lshl_add_u32 v29, v29, 2, v7")
        e(f"s_lshl_b32 {sT[1]}, {sW}, 3")
        e(f"s_add_u32 {sT[1]}, {sT[1]}, {L_X1}")
        e(f"v_lshl_add_u32 v29, v29, 5, {sT[1]}")
        e("v_mul_u32_u24 v31, 896, v6")
        e("v_lshl_add_u32 v31, v5, 3, v31")
        e("v_bfe_u32 v23, v0, 2, 4")
        e(f"v_mul_u32_u24 v23, {PP}, v23")
        e("v_bfe_u32 v5, v0, 1, 1")
        e("v_lshl_add_u32 v23, v5, 6, v23")
        e("v_and_b32 v5, 1, v0")
        e("v_lshl_add_u32 v23, v5, 4, v23")
        e(f"s_lshl_b32 {sT[1]}, {sRB}, 1")
        e(f"s_add_u32 {sT[1]}, {sT[1]}, {sHF}")
        e(f"s_mul_i32 {sOUT}, {sT[1]}, 14336")
        e(f"s_lshl_b32 {sT[1]}, {sJR}, 7")
        e(f"s_add_u32 {sOUT}, {sOUT}, {sT[1]}")
        e(f"s_lshl_b32 {sT[8]}, {sJR}, 8")
        e(f"s_add_u32 {sT[8]}, {sT[8]}, {WS_MOD + 560*16}")
        e(f"s_mul_i32 {sT[10]}, {sJR}, {32*PP}")
        e(f"s_lshl_b32 {sT[0]}, {sRB}, 2")
        e(f"s_add_u32 {sT[0]}, {sT[0]}, {sW}")
        e(f"s_lshl_b32 {sT[0]}, {sT[0]}, 2")
        e(f"s_add_u32 {sT[0]}, {sT[0]}, {sHF}")
        e(f"s_lshl_b32 {sT[0]}, {sT[0]}, 5")
        e(f"s_add_u32 {sT[10]}, {sT[10]}, {sT[0]}")
        e(f"s_add_u32 {sT[10]}, {sT[10]}, {WS_KVG + 8192}")
        e(f"s_add_u32 {sT[9]}, {sT[10]}, {16*PP}")
        e(f"s_lshl_b32 {sT[11]}, {sW}, 11")
        e = real_e
        BR, ACC, PH, XA, XL, SG = 32, [64, 96, 128, 64], 48, 56, 48, 4
        for f in setup[:o("su", 40)]: f()
        e.wait(tk["a", 0])
        e("s_barrier")
        self.flag("s89")
        ws.limit, ws.rlimit = 112, 88
        self.stamp("g1go")

        bt = {}
        def bread1(n, h):
            b, j = divmod(n, 28)
            if b == 0: j = 14*(j & 1) + (j >> 1)
            bt[n] = e.op(f"ds_read_b64_tr_b16 {v(BR+4*(n%4)+2*h,2)}, v11 offset:{28672*(b & 1) + 1024*j + 256*h}")
        def sgload(h): tk["sg"] = e.op(f"buffer_load_dwordx4 {v(SG,4)}, v24, {SRD_WS}, {sST2} offen offset:{1024*h} sc1")
        def sgcheck(h):
            e.wait(tk["sg"])
            self.checked(lambda: sgload(h), lambda: self.tagcheck([SG]), 8 + h)
        def utload(): tk["ut"] = e.op(f"buffer_load_dwordx4 {v(XL,4)}, v30, {SRD_WS}, {sUT} offen sc1")
        def utcheck():
            e.wait(tk["ut"])
            self.checked(utload, lambda: self.tagcheck([XL]), 3)
        utops = []
        for r in range(2):
            utops += [T_(f"v_mov_b32 {v(XA+r)}, {v(XL+r)}"), T_(f"v_mov_b32 {v(XA+2+r)}, 0"),
                      T_(f"v_mov_b32 {v(XA+4+r)}, 0"), T_(f"v_mov_b32 {v(XA+6+r)}, {v(XL+r)}")]
        for r in range(2):
            utops += [T_(f"v_permlane32_swap_b32 {v(XA+r)}, {v(XA+2+r)}"), T_(f"v_permlane32_swap_b32 {v(XA+4+r)}, {v(XA+6+r)}")]
        GB, XR, R2 = 96, 104, 12
        RQ = [12, 13, 120, 121]
        def extra(T):
            A = ACC[T]
            for m in range(2):
                e(f"v_mfma_f32_32x32x8_bf16 {v(A+16*m,16)}, {v(XA+4*(T&1)+2*m,2)}, {v(SG,2)}, {v(A+16*m,16) if T < 3 else '0'}")
            tk["rq"] = e.op(f"ds_bpermute_b32 {v(RQ[T])}, v9, {v(SG)} offset:{128*(T&1)}")
        nop = lambda: None
        def epi(T):
            ops = []
            A = ACC[T]
            for r in range(16):
                ops.append(T_(f"v_max_f32 {v(A+r)}, 0, {v(A+r)}"))
                ops.append(T_(f"v_mul_f32 {v(A+r)}, {v(A+r)}, {v(A+16+r)}"))
                if r & 1: ops.append(T_(f"v_cvt_pk_bf16_f32 {v(PH+r//2)}, {v(A+r-1)}, {v(A+r)}"))
                if r == 3: ops.append(T_(f"s_add_u32 {sT[6]}, {sHH}, {8192*T}"))
                if r % 8 == 7:
                    def g(ph=r//8):
                        tk["hs"] = tk["hs", T] = e.op(f"buffer_store_dwordx4 {v(PH+4*ph,4)}, v22, {SRD_WS}, {sT[6]} offen offset:{512*ph} sc1")
                    ops.append(g)
            return ops
        htok = {}
        order = [(T, kk) for kk in range(14) for T in (0, 1)] + [(T, kk) for T in (2, 3) for kk in range(14)]
        ws.rank = {x: n for n, x in enumerate(order)}
        hreg = lambda T, kk: a_(4*((14*T + kk) % 28), 4)
        def hload(T, kk):
            so = (sT[7], "s10", "s9", "s8")[T]
            if kk % 2 == 0: e(f"s_add_u32 {so}, {sHS}, {8192*T + 32*HP*(kk >> 1)}")
            htok[T, kk] = e.op(f"buffer_load_dwordx4 {hreg(T,kk)}, v24, {SRD_WS}, {so} offen offset:{1024*(kk & 1)} sc1")
        def gload(): tk["g"] = e.op(f"buffer_load_dwordx4 {v(GB+4,4)}, v25, {SRD_WS}, {sT[8]} offen sc1")
        def gcheck():
            e.wait(tk["g"])
            self.checked(gload, lambda: self.tagcheck([GB+4]), 26)
        def x1load(i):
            e(f"s_add_u32 m0, {sT[11]}, {L_X1 + 1024*i}")
            tk["x1"] = e.op(f"buffer_load_dwordx4 v23, {SRD_WS}, {(sT[10], sT[9])[i]} offen sc1 lds")
            ws.grp = None
        gops = [T_(unpack(GB+r, GB+4+r//2, r & 1)) for r in range(4)] + [lambda: e.wait(tk["rq"])]
        for q in RQ:
            gops += [T_(f"v_and_b32 {v(q)}, {sMASK}, {v(q)}"), T_(f"v_mul_f32 {v(q)}, {v(q)}, {v(q)}"), T_(f"v_rcp_f32 {v(q)}, {v(q)}")]
        for n in range(3): bread1(n, 0); bread1(n, 1)
        ws.pace, ws.lagw = o("pacea", 68), o("lagw", 900)
        ws.hload = hload
        mm = []
        for n in range(112):
            for m in range(2):
                def f(n=n, m=m):
                    b, j = divmod(n, 28)
                    T, ks = (n & 1, n >> 1) if b == 0 else (j // 14, 14 + j % 14) if b == 1 else (b, j)
                    A = ACC[T]
                    if m == 0: e.wait(bt[n])
                    if T == 0: ws.need("gu"[m], ks)
                    c_ = "0" if ks == 0 and T < 3 else v(A+16*m, 16)
                    e(f"v_mfma_f32_32x32x16_bf16 {v(A+16*m,16)}, {a_(112*m+4*ks,4)}, {v(BR+4*(n%4),4)}, {c_}")
                    if T == 3 and m == 0: ws.hfree.add(ks)
                    if j == 25 and m == 0:
                        e.wait(tk.get(("a", b+1)), bt[n+2], tk["hs"] if b >= 2 else None, tk["x1"] if b == 3 else None)
                        e("s_barrier")
                        if b >= 2: self.flag(sP[7], 128*(b - 1))
                    if n + 3 < 112: bread1(n + 3, m)
                    if j == 27 and m == 1: self.stamp(f"t{b}")
                mm.append(f)
        ld = lambda T2: [vm(lambda i=i: aload1(T2, i)) for i in range(7)]
        FQ = 124
        def hfload(st): tk["hf"] = e.op(f"buffer_load_dwordx4 {v(FQ,4)}, v26, {SRD_WS}, {sF3} offen offset:{128*st} sc1")
        def hfcheck(st):
            e.wait(tk["hf"])
            self.checked(lambda: hfload(st), lambda: self.tagcheck([FQ]), 12 + st)
            ws.hok.add(st)
        slow = lambda ops, a, b: [(a + ((b - a) * k) // len(ops), d, f) for k, (_, d, f) in enumerate(span(ops, a + 2, b + 2))]
        s0, s2, f0, e0, e1, ck = o("s0", 50), o("s2", 130), o("fe0", 132), o("e0", 160), o("e1", 192), o("ck", 24)
        def flag0():
            e.wait(tk["hs", 0]); e("s_barrier"); self.flag(sP[7], 0)
        def slower(): ws.pace = o("pace1", 64)
        pb = o("pb2", 30)
        cf = (span([vm(lambda: fload(1))], pb, pb + 1) + span([lambda: fcheck(1)], pb + 22, pb + 22)
              + span([slower], 100, 100) + span([flag0], f0, f0)
              + span([vm(lambda: hfload(0))], e0, e0 + 1) + span([lambda: hfcheck(0)], e0 + ck, e0 + ck)
              + span([vm(lambda: hfload(1))], e1, e1 + 1) + span([lambda: hfcheck(1)], e1 + ck, e1 + ck))
        ca = (span(ld(1), 0, o("a1d", 22)) + span(ld(2), pb + 23, pb + 42) + span(ld(3), 107, 128) + span([vm(lambda: sgload(1))], s2, s2 + 2)
              + span([vm(lambda: gload()), vm(lambda: x1load(0)), vm(lambda: x1load(1))], 140, 160))
        cs = (span(setup[o("su", 40):], 0, 20) + span([vm(lambda: utload())], 20, 26) + span([vm(lambda: sgload(0))], s0, s0 + 2) + span([utcheck] + utops, s0 + 4, s0 + 22)
              + span([lambda: sgcheck(0), lambda: extra(1)], s0 + 26, s0 + 30) + span([lambda: extra(0)], 86, 86)
              + span(epi(0), 90, o("ep0", 108)) + span(epi(1), 115, o("ep1", 136)) + span([lambda: sgcheck(1), lambda: extra(3)], 158, 163)
              + span([lambda: extra(2)], 170, 170) + span(epi(2), 174, o("ep2", 194)) + span([gcheck] + gops, 198, 222))
        ws.lead = o("lead", 4)
        sched(e, ws, mm, [ca, cs, cf], o("rsv", 8))
        if self.stop <= 3:
            for op in epi(3): op()
            return self.finish()

        A2 = [128, 144, 64, 80]
        age = o("age", 9)
        ws.rlimit = 112
        side = []
        k = 0
        def old(t): return t.done or e.nvm - t.seq >= age
        def pump(): return ws.step()
        def filler():
            if first: first.pop(0)()
            elif ws.head() and old(ws.head()): ws.read()
            elif side: side.pop(0)()
        def ready(n):
            T, kk = order[n]
            h = htok.get((T, kk))
            if h is None or not old(h): return False
            while 56 + 4*kk + 3 not in ws.rtok and ws.head() and old(ws.head()): ws.read()
            return 56 + 4*kk + 3 in ws.rtok
        def frag(n_side=None):
            nonlocal k
            T, kk = order[k]
            ws.hneed(T, kk)
            e.wait(htok[T, kk])
            ws.need("d", 4*kk + 3)
            for nt in range(4):
                c_ = "0" if kk == 0 else v(A2[T]+4*nt, 4)
                e(f"v_mfma_f32_16x16x32_bf16 {v(A2[T]+4*nt,4)}, {ws.dreg(kk,nt)}, {hreg(T,kk)}, {c_}")
                if n_side:
                    for _ in range(n_side): filler()
                elif nt == 0 and pump(): pass
                else:
                    filler()
                    if e.t + 4 < e.mfree: filler()
            ws.hfree.add((14*T + kk) % 28)
            k += 1
            spaced = lambda ops: [x for f in ops for x in [f] + [nop]*o("wsp", 4)]
            if k == 28: side.extend([nop]*3 + spaced(red_w(0) + red_w(1)) + [bar] + red_r(0) + red_r(1) + red_g(0) + red_f(0, False) + red_g(1) + red_f(1, False))
            if k == 42: side.extend([nop]*3 + spaced(red_w(2)) + red_g(2) + red_g(3))
        def advance(nv, nk, kmax):
            n0, k0 = e.nvm, k
            while e.nvm - n0 < nv and k - k0 < nk and k < kmax:
                if ready(k) or not pump(): frag()
        def red_w(T): return [lambda nt=nt: e.op(f"ds_write_b128 v8, {v(A2[T]+4*nt,4)} offset:{L_RED*T + 64*nt}") for nt in range(4)]
        def bar(): e.waitall(vm=False); e("s_barrier")
        def red_r(T):
            q = 32 + 16*(T & 1)
            def f(w_): tk["rd", T, w_] = e.op(f"ds_read_b128 {v(q+4*w_,4)}, v28 offset:{L_RED*T + 4352*w_}")
            return [lambda w_=w_: f(w_) for w_ in range(4)]
        GR = [100, 100, 100, 124]
        def red_g(T): return [T_(f"v_mul_f32 {v(GR[T]+r)}, {v(GB+r)}, {v(RQ[T])}") for r in range(4)] + [T_(f"s_add_u32 {sT[T & 1]}, {sOUT}, {16*28672*T}")]
        def red_f(T, pk):
            q, x = 32 + 16*(T & 1), XR + 4*T
            def add(d_, s_):
                if pk: return [T_(f"v_pk_add_f32 {v(d_+p,2)}, {v(d_+p,2)}, {v(s_+p,2)}") for p in (0, 2)]
                return [T_(f"v_add_f32 {v(d_+r)}, {v(d_+r)}, {v(s_+r)}") for r in range(4)]
            ops = [lambda: e.wait(tk["rd", T, 1])] + add(q, q+4) + [lambda: e.wait(tk["rd", T, 3])] + add(q+8, q+12) + add(q, q+8)
            if pk: ops += [T_(f"v_pk_fma_f32 {v(q+p,2)}, {v(q+p,2)}, {v(GR[T]+p,2)}, {v(x+p,2)}") for p in (0, 2)]
            else: ops += [T_(f"v_fma_f32 {v(q+r)}, {v(q+r)}, {v(GR[T]+r)}, {v(x+r)}") for r in range(4)]
            ops += [T_(f"v_cvt_pk_bf16_f32 {v(x+p//2)}, {v(q+p)}, {v(q+p+1)}") for p in (0, 2)]
            ops.append(lambda: e.op(f"buffer_store_dwordx2 {v(x,2)}, v31, {SRD_OUT}, {sT[T & 1]} offen {'sc1' if o('outsc1', 1) else ''}"))
            return ops
        first = []
        for _ in range(o("e3f", 1)): frag()
        first = epi(3)
        while first: frag(o("e3", 6))
        self.stamp("g1end")
        for T in range(4):
            def f(T=T): tk["xr"] = e.op(f"ds_read_b64_tr_b16 {v(XR+4*T,2)}, v29 offset:{2048*T}")
            side.append(f)
        side += [nop]*4 + [lambda: e.wait(tk["xr"])]
        for r in range(8):
            def f(r=r): tk["xr"] = e.op(f"ds_bpermute_b32 {v(32+r)}, v16, {v(XR+4*(r//2)+(r&1))}")
            side.append(f)
        side += [nop]*4 + [lambda: e.wait(tk["xr"])]
        side += [T_(unpack(XR+r, 32+r//2, r & 1)) for r in range(16)]
        advance(o("f0", 8), o("f0k", 7), 28)
        hfload(2)
        advance(o("fa", 8), o("fak", 8), 28)
        e.wait(tk["hs"])
        e("s_barrier")
        self.flag(sP[7], 384)
        hfcheck(2)
        self.stamp("ok2")
        advance(o("fb", 13), o("fbk", 14), 42)
        hfload(3)
        advance(o("fc", 10), o("fck", 12), 42)
        if k == 42:
            while len(side) > 10 + 4*o("wsp", 4) + 7: side.pop(0)()
        hfcheck(3)
        self.stamp("lok")
        for _ in range(o("fd", 0)): pump()
        advance(99, 99, 42)
        self.stamp("g2m")
        if o("fl", 0):
            while pump(): pass
            while side: side.pop(0)()
        advance(99, 99, 56)
        self.stamp("g2l")
        for f in side + red_w(3) + [bar] + red_r(2) + red_r(3) + red_f(2, True) + red_f(3, True): f()
        e("s_cmp_lg_u32 s2, 0")
        e("s_cbranch_scc1 L_noepoch")
        e("v_lshlrev_b32 v4, 25, v0")
        e("v_lshrrev_b32 v5, 7, v0")
        e("v_lshl_or_b32 v4, v5, 25, v4")
        e.op(f"buffer_store_dwordx2 v[14:15], v4, {SRD_WS}, 0 offen")
        e.label("L_noepoch")
        self.stamp("out")
        self.finish()

    def helper(self):
        e = self.e
        if self.opt.get("nohelp"):
            e("s_waitcnt lgkmcnt(0)")
            self.stamp("start")
            return self.finish()
        self.srd(SRD_C, 80, 896)
        self.srd(SRD_WM, 88, 2408448)
        self.srd(SRD_WD, 72, 1605632)
        e(f"s_lshr_b32 {sRB}, {sX}, 1")
        e(f"s_lshl_b32 {sRB}, {sRB}, 2")
        e(f"s_add_u32 {sRB}, {sRB}, {sJR}")
        e(f"s_cmp_ge_u32 {sRB}, 7")
        e(f"s_cselect_b32 {sP[6]}, 1, 0")
        e(f"s_cselect_b32 {sT[0]}, 64, 56")
        e(f"s_load_dwordx2 s[28:29], s[0:1], {sT[0]}")
        e("s_mov_b32 s30, 1605632")
        e("s_mov_b32 s31, 0x20000")
        e(f"s_and_b32 {sT[0]}, {sX}, 1")
        e(f"s_sub_u32 {sT[0]}, {sT[0]}, {sP[6]}")
        e(f"s_mul_i32 {sT[0]}, {sT[0]}, 7")
        e(f"s_add_u32 {sP[7]}, {sT[0]}, {sRB}")
        sH = sI
        e(f"s_lshl_b32 {sH}, {sJR}, 3")
        e(f"s_add_u32 {sH}, {sH}, {sX}")
        e(f"s_add_u32 {sT[0]}, {sH}, 7")
        e(f"s_sub_u32 {sT[1]}, {sH}, 7")
        e(f"s_cmp_lt_u32 {sH}, 28")
        e(f"s_cselect_b32 {sT[0]}, {sT[0]}, {sT[1]}")
        e(f"s_cmp_lt_u32 {sH}, 21")
        e(f"s_cselect_b32 {sP[0]}, {sH}, {sT[0]}")
        e(f"s_add_u32 {sT[0]}, {sH}, 25")
        e(f"s_add_u32 {sT[1]}, {sH}, 32")
        e(f"s_cmp_lt_u32 {sH}, 3")
        e(f"s_cselect_b32 {sP[1]}, {sT[0]}, {sT[1]}")
        self.unit_addr(10, 2, 5376)
        e(f"s_mul_i32 {sT[0]}, {sW}, {112*5376}")
        e(f"v_add_u32 v10, {sT[0]}, v10")
        e("v_lshlrev_b32 v3, 1, v0")
        e(f"s_mul_i32 {sP[2]}, {sW}, 14336")
        self.ln1_addr(6, 84)
        e("v_and_b32 v24, 63, v0")
        e("v_lshlrev_b32 v24, 4, v24")
        e("s_waitcnt lgkmcnt(0)")
        self.stamp(self.pts[0])
        e.op(f"buffer_load_ushort v32, v3, {SRD_C}, 0 offen")
        tc = e.op(f"buffer_load_ushort v33, v3, {SRD_C}, 0 offen offset:512")
        self.load_tag()
        LR, GS = 84, 160
        def mdma(task):
            e(f"s_lshl_b32 {sT[2]}, {sP[task]}, 7")
            for u in range(14):
                e(f"s_add_u32 m0, {sP[2]}, {57344*task + 1024*u}")
                e(f"s_add_u32 {sT[1]}, {sT[2]}, {43008*u}")
                t = e.op(f"buffer_load_dwordx4 v10, {SRD_WM}, {sT[1]} offen lds")
            return t
        tL = self.ln1_loads(6, LR)
        if self.opt.get("pt", 0) != 9: self.touch_small(23)
        tm0 = mdma(0)
        L_SC, L_PART = 114688, 116736
        e.wait(tc)
        for r in (32, 33):
            e(f"v_lshlrev_b32 v{r}, 16, v{r}")
            e(f"v_mul_f32 v34, 0xbfb8aa3b, v{r}")
            e("v_exp_f32 v34, v34")
            e("v_add_f32 v34, 1.0, v34")
            e("v_rcp_f32 v34, v34")
            e(f"v_mul_f32 v{r}, v{r}, v34")
            e(f"v_cvt_pk_bf16_f32 v{r}, v{r}, v{r}")
        e(f"v_add_u32 v3, {L_SC}, v3")
        e("s_waitcnt lgkmcnt(0)")
        e.op("ds_write_b16 v3, v32")
        e.op("ds_write_b16 v3, v33 offset:512")
        self.make_tag()
        self.flag_regs()
        for q in (GS, GS+4):
            e(f"v_mov_b32 {v(q+2)}, s46")
            e(f"v_mov_b32 {v(q+3)}, s47")
        self.tr_addr(4, 2, 4)
        e(f"v_add_u32 v4, {sP[2]}, v4")
        e("v_bfe_u32 v5, v0, 5, 1")
        e(f"s_mul_i32 {sT[0]}, {sW}, 224")
        e(f"s_add_u32 {sT[0]}, {sT[0]}, {L_SC}")
        e(f"v_lshl_add_u32 v5, v5, 3, {sT[0]}")
        e("v_lshlrev_b32 v7, 2, v0")
        e(f"v_add_u32 v7, {L_PART}, v7")
        e("v_and_b32 v8, 15, v0")
        e("v_lshlrev_b32 v8, 4, v8")
        e("v_lshrrev_b32 v9, 4, v0")
        e("v_lshl_or_b32 v9, v9, 25, v8")
        e(f"v_add_u32 v8, {L_PART}, v8")
        e.wait(tL)
        gather = self.ln1_stats(LR, GS)
        e.waitall(vm=False)
        e("s_barrier")
        e.wait(gather())
        self.flag(sLN)
        SC, WB, AC = 32, 192, 128
        for ks in range(7):
            e.op(f"ds_read_b64 {v(SC+4*ks,2)}, v5 offset:{32*ks}")
            e.op(f"ds_read_b64 {v(SC+4*ks+2,2)}, v5 offset:{32*ks+16}")
        def gemv(task):
            for ks in range(7):
                for nt in range(2):
                    for half in range(2):
                        e.op(f"ds_read_b64_tr_b16 {v(WB+8*ks+4*nt+2*half,2)}, v4 offset:{1024*(2*ks+half) + 512*nt}")
            e.waitall(vm=False)
            for ks in range(7):
                for nt in range(2):
                    c_ = "0" if ks == 0 else v(AC+16*nt, 16)
                    e(f"v_mfma_f32_32x32x16_bf16 {v(AC+16*nt,16)}, {v(SC+4*ks,4)}, {v(WB+8*ks+4*nt,4)}, {c_}")
            e("v_and_b32 v2, 32, v0")
            e("v_cmp_eq_u32 vcc, 0, v2")
            e(f"v_cndmask_b32 v2, {v(AC+16)}, {v(AC)}, vcc")
            e.op(f"ds_write_b32 v7, v2 offset:{1024*task}")
            e.waitall(vm=False)
            e("s_barrier")
            for w_ in range(4): e.op(f"ds_read_b128 {v(WB+4*w_,4)}, v8 offset:{1024*task + 256*w_}")
            e.waitall(vm=False)
            for w_ in range(1, 4):
                for p in (0, 2): e(f"v_pk_add_f32 {v(WB+p,2)}, {v(WB+p,2)}, {v(WB+4*w_+p,2)}")
            e(f"v_cvt_pk_bf16_f32 {v(GS+4)}, {v(WB)}, {v(WB+1)}")
            e(f"v_cvt_pk_bf16_f32 {v(GS+5)}, {v(WB+2)}, {v(WB+3)}")
            e(f"s_lshl_b32 {sT[0]}, {sP[task]}, 8")
            e(f"s_add_u32 {sT[0]}, {sT[0]}, {WS_MOD}")
            e.op(f"buffer_store_dwordx4 {v(GS+4,4)}, v9, {SRD_WS}, {sT[0]} offen sc1")
        e.wait(tm0)
        gemv(0)
        self.stamp(self.pts[1])
        e(f"s_cmp_lt_u32 {sH}, 10")
        e("s_cbranch_scc0 L_h_two")
        mdma(1)
        e("v_add_u32 v4, 57344, v4")
        e.waitall(lg=False)
        gemv(1)
        e.label("L_h_two")
        self.stamp(self.pts[2])
        if self.stop <= 2: return self.finish()
        self.tr_addr(11, 2, 8)
        self.stamp(self.pts[3])
        e(f"s_cmp_ge_u32 {sRB}, 14")
        e("s_cbranch_scc1 L_h_nout")
        e("v_bfe_u32 v10, v0, 2, 4")
        e("v_mul_u32_u24 v10, 3584, v10")
        e("v_and_b32 v2, 3, v0")
        e(f"s_lshl_b32 {sT[0]}, {sP[7]}, 2")
        e(f"s_add_u32 {sT[3]}, {sT[0]}, {sW}")
        e(f"s_lshl_b32 {sT[0]}, {sT[3]}, 6")
        e(f"v_lshl_add_u32 v2, v2, 4, {sT[0]}")
        e("v_add_u32 v10, v10, v2")
        e(f"s_mul_i32 {sT[2]}, {sW}, 28672")
        e(f"v_add_u32 v4, {sT[2]}, v11")
        for ks in range(28):
            e(f"s_add_u32 m0, {sT[2]}, {1024*ks}")
            e(f"s_mov_b32 {sT[1]}, {57344*ks}")
            e.op(f"buffer_load_dwordx4 v10, {SRD_WG}, {sT[1]} offen lds")
        VQ = 32
        e("v_min_u32 v2, 223, v0")
        e("v_lshlrev_b32 v3, 4, v2")
        e(f"s_mov_b32 {sT[8]}, {WS_MOD + 336*16}")
        self.poll(lambda: e.op(f"buffer_load_dwordx4 {v(VQ,4)}, v3, {SRD_WS}, {sT[8]} offen sc1"), lambda: self.tagcheck([VQ]), nap=4)
        for ks in range(28):
            e.op(f"ds_read_b64_tr_b16 {a_(4*ks,2)}, v4 offset:{1024*ks}")
            e.op(f"ds_read_b64_tr_b16 {a_(4*ks+2,2)}, v4 offset:{1024*ks+256}")
        e("v_cmp_le_u32 vcc, 112, v2")
        e("v_cndmask_b32 v5, 0, 1.0, vcc")
        for r in range(4):
            src = v(VQ + r//2)
            e(f"v_and_b32 {v(VQ+4+r)}, {sMASK}, {src}" if r & 1 else f"v_lshlrev_b32 {v(VQ+4+r)}, 16, {src}")
            e(f"v_add_f32 {v(VQ+4+r)}, v5, {v(VQ+4+r)}")
        e(f"v_cvt_pk_bf16_f32 {v(VQ)}, {v(VQ+4)}, {v(VQ+5)}")
        e(f"v_cvt_pk_bf16_f32 {v(VQ+1)}, {v(VQ+6)}, {v(VQ+7)}")
        e("v_lshlrev_b32 v2, 3, v2")
        e(f"v_add_u32 v2, {L_VEC}, v2")
        e.op(f"ds_write_b64 v2, {v(VQ,2)}")
        e("v_and_b32 v2, 1, v0")
        e("v_mul_u32_u24 v2, 896, v2")
        e("v_bfe_u32 v3, v0, 5, 1")
        e("v_lshlrev_b32 v5, 4, v3")
        e("v_sub_u32 v2, v5, v2")
        e(f"v_add_u32 v2, {L_VEC + 896}, v2")
        e("v_lshl_or_b32 v3, v3, 25, v24")
        e(f"s_lshl_b32 {sT[3]}, {sT[3]}, 9")
        e(f"s_mul_i32 {sT[0]}, {sP[6]}, 28672")
        e(f"s_add_u32 {sT[3]}, {sT[3]}, {sT[0]}")
        e(f"s_add_u32 {sT[3]}, {sT[3]}, {WS_UT}")
        e.waitall(vm=False)
        e("s_barrier")
        vt = [e.op(f"ds_read_b128 {a_(112+4*ks,4)}, v2 offset:{32*ks}") for ks in range(28)]
        for ks in range(28):
            e.wait(vt[ks])
            e(f"v_mfma_f32_32x32x16_bf16 {v(AC,16)}, {a_(112+4*ks,4)}, {a_(4*ks,4)}, {'0' if ks == 0 else v(AC,16)}")
        q = GS + 4
        e(f"v_cvt_pk_bf16_f32 {v(q)}, {v(AC)}, {v(AC+1)}")
        e(f"v_lshlrev_b32 v2, 16, {v(q)}")
        e(f"v_and_b32 v5, {sMASK}, {v(q)}")
        e(f"v_sub_f32 v2, {v(AC)}, v2")
        e(f"v_sub_f32 v5, {v(AC+1)}, v5")
        e(f"v_cvt_pk_bf16_f32 {v(q+1)}, v2, v5")
        e.op(f"buffer_store_dwordx4 {v(q,4)}, v3, {SRD_WS}, {sT[3]} offen sc1")
        e.label("L_h_nout")
        e("s_barrier")
        self.stamp(self.pts[4])
        e(f"s_mul_i32 {sT[5]}, {sW}, 7168")
        e(f"v_add_u32 v11, {sT[5]}, v11")
        e("v_bfe_u32 v25, v0, 3, 3")
        e(f"v_mul_u32_u24 v25, {PP}, v25")
        e("v_and_b32 v5, 7, v0")
        e("v_lshl_add_u32 v25, v5, 4, v25")
        e(f"s_lshl_b32 {sP[3]}, {sRB}, 2")
        e(f"s_and_b32 {sT[0]}, {sX}, 1")
        e(f"s_add_u32 {sP[3]}, {sP[3]}, {sT[0]}")
        e(f"s_mul_i32 {sT[0]}, {sW}, {56*PP}")
        e(f"s_lshl_b32 {sT[1]}, {sP[3]}, 7")
        e(f"s_add_u32 {sT[0]}, {sT[0]}, {sT[1]}")
        sA = [f"s{4+i}" for i in range(7)]
        for i in range(7): e(f"s_add_u32 {sA[i]}, {sT[0]}, {WS_KVG + 8192 + 8*PP*i}")
        e(f"s_lshl_b32 {sP[3]}, {sP[3]}, 9")
        e(f"s_add_u32 {sP[3]}, {sP[3]}, {WS_ST2}")
        e("v_and_b32 v8, 31, v0")
        e("v_lshrrev_b32 v9, 5, v0")
        e("v_lshlrev_b32 v2, 4, v8")
        e("v_lshl_or_b32 v9, v9, 25, v2")
        e("v_lshlrev_b32 v8, 2, v8")
        e(f"v_add_u32 v8, {L_PART}, v8")
        e(f"s_mov_b32 {sP[5]}, 0x3f803f80")
        FR = 64
        e("v_min_u32 v2, 880, v24")
        e(f"s_mul_i32 {sT[0]}, {sW}, 3584")
        e(f"s_add_u32 {sT[0]}, {sT[0]}, {WS_F2}")
        e(f"v_lshl_add_u32 v2, v2, 2, {sT[0]}")
        e(f"s_lshl_b32 {sT[1]}, {sH}, 6")
        e(f"s_add_u32 {sT[0]}, {sT[0]}, {sT[1]}")
        e(f"v_mov_b32 v3, {sT[0]}")
        e("v_mov_b32 v22, v2")
        e("v_mov_b32 v23, v3")
        e(f"s_mov_b32 s88, {F2B}")
        pf = self.opt.get("pf", 0)
        e("v_min_u32 v26, 880, v24")
        e(f"v_lshl_add_u32 v26, v26, 3, {sT[5]}")
        e(f"s_lshr_b32 {sT[0]}, {sJR}, 1")
        e(f"s_mul_i32 s82, {sT[0]}, {896*896}")
        e(f"s_add_u32 s83, s82, {896*896}")
        e(f"s_and_b32 {sT[0]}, {sJR}, 1")
        e(f"s_mul_i32 {sT[0]}, {sT[0]}, 57344")
        e(f"s_add_u32 s82, s82, {sT[0]}")
        e("s_mov_b32 s84, 28672")
        def pstep():
            e("s_cmp_lt_u32 s82, s83")
            e(f"s_cselect_b32 s85, s82, {BIG}")
            e.op(f"buffer_load_dword v1, v26, {SRD_WD}, s85 offen")
            e("s_add_u32 s82, s82, s84")
            e("s_sub_u32 s84, 114688, s84")
            e("s_min_u32 s82, s82, s83")
        for job in range(2):
            if pf:
                top, out = e.newlabel("pf"), e.newlabel("pfend")
                e(f"s_mov_b32 {sSPIN}, {SPIN}")
                e.label(top)
                t = e.op(f"buffer_load_dwordx4 v[32:35], v23, {SRD_WS}, {('0', 's88')[job]} offen sc1")
                pstep()
                e.wait(t)
                self.tagcheck([32])
                e(f"s_cbranch_vccz {out}")
                e("s_sleep 2")
                e(f"s_sub_u32 {sSPIN}, {sSPIN}, 1")
                e(f"s_cbranch_scc0 {top}")
                e.label(out)
            for va, nap in (("v23", self.opt.get("nap2", 6)), ("v22", 2))[1 if pf else 0:]:
                self.poll(lambda: e.op(f"buffer_load_dwordx4 v[32:35], {va}, {SRD_WS}, {('0', 's88')[job]} offen sc1"), lambda: self.tagcheck([32]), nap=nap)
            for i in range(7):
                e(f"s_add_u32 m0, {sT[5]}, {(28672 - 256)*job + 1024*i}")
                t = e.op(f"buffer_load_dwordx4 v25, {SRD_WS}, {sA[i]} offen offset:{256*job} sc1 lds")
            if pf: pstep()
            e.wait(t)
            rt = []
            for i in range(7):
                e.op(f"ds_read_b64_tr_b16 {v(FR+4*i,2)}, v11 offset:{28672*job + 1024*i}")
                rt.append(e.op(f"ds_read_b64_tr_b16 {v(FR+4*i+2,2)}, v11 offset:{28672*job + 1024*i+256}"))
            e("v_mov_b32 v2, 0")
            e("v_mov_b32 v3, 0")
            for i in range(7):
                e.wait(rt[i])
                for r in range(4):
                    e(f"v_dot2c_f32_bf16 v2, {sP[5]}, {v(FR+4*i+r)}")
                    e(f"v_dot2c_f32_bf16 v3, {v(FR+4*i+r)}, {v(FR+4*i+r)}")
            e("v_permlane32_swap_b32 v2, v3")
            e("v_add_f32 v2, v2, v3")
            e.op(f"ds_write_b32 v7, v2 offset:{1024*job}")
            e.waitall(vm=False)
            e("s_barrier")
            for w_ in range(4):
                o = 256*job + 64*w_
                e.op(f"ds_read_b32 {v(FR+2*w_)}, v8 offset:{4*o}")
                e.op(f"ds_read_b32 {v(FR+2*w_+1)}, v8 offset:{4*o+128}")
            e.waitall(vm=False)
            e(f"v_pk_add_f32 {v(FR,2)}, {v(FR,2)}, {v(FR+2,2)}")
            e(f"v_pk_add_f32 {v(FR+4,2)}, {v(FR+4,2)}, {v(FR+6,2)}")
            e(f"v_pk_add_f32 {v(GS,2)}, {v(FR,2)}, {v(FR+4,2)}")
            self.stats_finish(GS, GS+1, True)
            e(f"v_mov_b32 {v(GS+1)}, {v(GS)}")
            e.op(f"buffer_store_dwordx4 {v(GS,4)}, v9, {SRD_WS}, {sP[3]} offen offset:{1024*job} sc1")
            self.stamp(self.pts[5 + job])
        if pf:
            e.label("L_pfrest")
            pstep()
            e("s_waitcnt vmcnt(1)")
            e("s_cmp_lt_u32 s82, s83")
            e("s_cbranch_scc1 L_pfrest")
        self.finish()


HEADER = "".join(l for l in open(f"cdna_kernels/{NAME}.s.ref").readlines()[:18] if "@launch" not in l) \
    if __import__("os").path.exists(f"cdna_kernels/{NAME}.s.ref") else ""


def generate(**kw):
    body = Gen(**kw).build()
    return f"""{HEADER}; @launch grid=(256,1,1) block=(256,1,1) lds={LDS_BYTES}
.amdgcn_target "amdgcn-amd-amdhsa--gfx950"
.text
.globl {NAME}_kernel
.p2align 8
.type {NAME}_kernel,@function
{NAME}_kernel:
{body}
.section .rodata,"a"
.p2align 6
.amdhsa_kernel {NAME}_kernel
  .amdhsa_next_free_vgpr 512
  .amdhsa_next_free_sgpr 102
  .amdhsa_accum_offset 256
  .amdhsa_group_segment_fixed_size 0
  .amdhsa_kernarg_size 120
  .amdhsa_user_sgpr_count 2
  .amdhsa_user_sgpr_kernarg_segment_ptr 1
  .amdhsa_system_sgpr_workgroup_id_x 1
  .amdhsa_float_denorm_mode_32 3
.end_amdhsa_kernel
"""


if __name__ == "__main__":
    out = sys.argv[1] if len(sys.argv) > 1 else f"cdna_kernels/{NAME}.s"
    kw = {}
    for a in sys.argv[2:]:
        k, val = a.split("=")
        kw[k] = int(val) if val.lstrip('-').isdigit() else val
    open(out, "w").write(generate(**kw))
```
